```python
import torch

def _softmax(x, axis=-1):
    return torch.softmax(x, dim=axis)
def _gelu(x):
    return torch.nn.functional.gelu(x, approximate="tanh")
def _silu(x):
    return torch.nn.functional.silu(x)
def _sigmoid(x):
    return torch.sigmoid(x)
def _layernorm(x, axis=-1, eps=1e-5):
    m = x.mean(dim=axis, keepdim=True)
    v = x.var(dim=axis, keepdim=True, unbiased=False)
    return (x - m) / torch.sqrt(v + eps)
def _scatter_add(tgt, idx, src, axis=0):
    return tgt.clone().index_add_(axis, idx, src)
def _segment_sum(src, seg, n):
    out = torch.zeros((n,) + src.shape[1:], dtype=src.dtype)
    return out.index_add_(0, seg, src)
def _pad(x, pw):
    flat = tuple(v for pair in reversed(pw) for v in pair)
    return torch.nn.functional.pad(x, flat)

kernel_name = 'gated_mix__grouped_kv_mqa__dense_activation_mish__prompt'

def setup_inputs():

    _w = (lambda a: (lambda t: t.to(torch.bfloat16) if t.is_floating_point() else t)(torch.as_tensor(a)))
    def _A_setup():
        B, S, D, H = 1, 2048, 1024, 32
        Dh = D // H
        return {
            "x": _w((lambda *s: torch.randn(*s, dtype=torch.bfloat16) * 0.05)(B, S, D)),
            "wq": _w((lambda *s: torch.randn(*s, dtype=torch.bfloat16) * 0.8)(D, H * Dh)),
            "wk": _w((lambda *s: torch.randn(*s, dtype=torch.bfloat16) * 0.8)(D, Dh)),
            "wv": _w((lambda *s: torch.randn(*s, dtype=torch.bfloat16) * 0.05)(D, Dh)),
            "wo": _w((lambda *s: torch.randn(*s, dtype=torch.bfloat16) * 0.05)(H * Dh, D)),
        }
    _A_in = _A_setup()

    def _B_setup():
        B, S, D, F = 1, 2048, 1024, 3584
        return {
            "x": _w((lambda *s: torch.randn(*s, dtype=torch.bfloat16) * 0.05)(B, S, D)),
            "w1": _w((lambda *s: torch.randn(*s, dtype=torch.bfloat16) * 6.4)(D, F) * (D ** -0.5)),
            "b1": _w((lambda *s: torch.randn(*s, dtype=torch.bfloat16) * 0.1)(F)),
            "w2": _w((lambda *s: torch.randn(*s, dtype=torch.bfloat16) * 0.1)(F, D) * (F ** -0.5)),
        }
    _B_in = _B_setup()

    return {
        "A_x": _A_in["x"],
        "A_wq": _A_in["wq"],
        "A_wk": _A_in["wk"],
        "A_wv": _A_in["wv"],
        "A_wo": _A_in["wo"],
        "B_x": _B_in["x"],
        "B_w1": _B_in["w1"],
        "B_b1": _B_in["b1"],
        "B_w2": _B_in["w2"],
        "gate_w": _w((lambda *s: torch.randn(*s, dtype=torch.bfloat16) * 0.05)(1024) * 16.0),
    }

def reference(A_x, A_wq, A_wk, A_wv, A_wo, B_x, B_w1, B_b1, B_w2, gate_w):
    def _A_ref(x, wq, wk, wv, wo):
        B, S, D = x.shape
        H = 32
        Dh = D // H
        q = (lambda x, *d: x.permute(*d))((x @ wq).reshape(B, S, H, Dh), 0, 2, 1, 3)
        k = x @ wk
        v = x @ wv
        scores = torch.einsum("bhqd,bkd->bhqk", q, k) * (Dh ** -0.5)
        p = _softmax(scores, axis=-1)
        o = torch.einsum("bhqk,bkd->bhqd", p, v)
        return (lambda x, *d: x.permute(*d))(o, 0, 2, 1, 3).reshape(B, S, H * Dh) @ wo

    def _B_ref(x, w1, b1, w2):
        h = torch.einsum("bsd,df->bsf", x, w1) + b1
        sp = torch.log1p(torch.exp(-torch.abs(h))) + torch.where(h > 0, h, torch.zeros_like(h))
        act = h * torch.tanh(sp)
        return torch.einsum("bsf,fd->bsd", act, w2)

    x = A_x
    g = _sigmoid((x * gate_w).sum(-1, keepdims=True))
    a = _A_ref(x, A_wq, A_wk, A_wv, A_wo)
    b = _B_ref(x, B_w1, B_b1, B_w2)
    return g * a + (1 - g) * b
```

```python
class Asm:
    def __init__(self):
        self.L = []
        self.vm_n = 0; self.vm_done = 0
        self.lg_n = 0; self.lg_done = 0
    def e(self, s):
        self.L.append("    " + s)
    def c(self, s):
        self.L.append("    ; " + s)
    def label(self, s):
        self.L.append(s + ":")
    def raw(self, s):
        self.L.append(s)
    def vm(self, s):
        self.e(s); i = self.vm_n; self.vm_n += 1; return i
    def ds(self, s):
        self.e(s); i = self.lg_n; self.lg_n += 1; return i
    def wait(self, vm=None, lg=None):
        parts = []
        if vm is not None and vm >= self.vm_done:
            n = min(self.vm_n - 1 - vm, 63)
            parts.append("vmcnt(%d)" % n); self.vm_done = self.vm_n - n
        if lg is not None and lg >= self.lg_done:
            n = min(self.lg_n - 1 - lg, 15)
            parts.append("lgkmcnt(%d)" % n); self.lg_done = self.lg_n - n
        if parts:
            self.e("s_waitcnt " + " ".join(parts))
    def wait_all(self, vm=True, lg=True):
        parts = []
        if vm: parts.append("vmcnt(0)"); self.vm_done = self.vm_n
        if lg: parts.append("lgkmcnt(0)"); self.lg_done = self.lg_n
        self.e("s_waitcnt " + " ".join(parts))
    def reset_counts(self):
        self.vm_n = self.vm_done = self.lg_n = self.lg_done = 0
    prof = False
    PROF_V = 254
    def stamp(self, idx, real=False):
        if not self.prof: return
        self.e("s_memtime s[98:99]")
        self.e("s_memrealtime s[100:101]")
        self.e("s_waitcnt lgkmcnt(0)"); self.lg_done = self.lg_n
        self.e("v_writelane_b32 v%d, s98, %d" % (self.PROF_V, idx))
        self.e("v_writelane_b32 v%d, s100, %d" % (self.PROF_V, idx + 8))
    def stamp_flush(self, ws_lo, ws_hi, off, wave_sreg, nwaves):
        if not self.prof: return
        self.e("s_add_u32 s92, s%d, 0x%x" % (ws_lo, off)); self.e("s_addc_u32 s93, s%d, 0" % ws_hi)
        self.e("s_mov_b32 s94, 0x100000"); self.e("s_mov_b32 s95, 0x00020000")
        self.e("s_mul_i32 s96, s2, %d" % nwaves); self.e("s_add_u32 s96, s96, s%d" % wave_sreg); self.e("s_lshl_b32 s96, s96, 6")
        T = self.PROF_V - 1
        self.e("v_and_b32 v%d, 63, v0" % T); self.e("v_lshlrev_b32 v%d, 2, v%d" % (T, T))
        self.e("v_cmp_gt_u32 vcc, 64, v%d" % T); self.e("s_nop 1")
        self.e("s_and_saveexec_b64 s[96:97], vcc".replace("s[96:97]", "s[90:91]"))
        self.e("buffer_store_dword v%d, v%d, s[92:95], s96 offen" % (self.PROF_V, T))
        self.e("s_mov_b64 exec, s[90:91]")
    def text(self):
        return "\n".join(self.L) + "\n"

def vr(b, n=1):
    return "v%d" % b if n == 1 else "v[%d:%d]" % (b, b + n - 1)
def ar(b, n=1):
    return "a%d" % b if n == 1 else "a[%d:%d]" % (b, b + n - 1)
def sr(b, n=1):
    return "s%d" % b if n == 1 else "s[%d:%d]" % (b, b + n - 1)

def srd(a, d, lo, hi, nbytes):
    a.e("s_mov_b32 s%d, s%d" % (d, lo))
    a.e("s_mov_b32 s%d, s%d" % (d + 1, hi))
    a.e("s_mov_b32 s%d, 0x%x" % (d + 2, nbytes))
    a.e("s_mov_b32 s%d, 0x00020000" % (d + 3))

def add64(a, lo, imm_or_s):
    a.e("s_add_u32 s%d, s%d, %s" % (lo, lo, imm_or_s))
    a.e("s_addc_u32 s%d, s%d, 0" % (lo + 1, lo + 1))

def kernel_header(name):
    return (".globl %s\n.p2align 8\n.type %s,@function\n%s:\n" % (name, name, name))

def kernel_desc(name, nfv, accum, nsg=102):
    return (".amdhsa_kernel %s\n  .amdhsa_next_free_vgpr %d\n  .amdhsa_next_free_sgpr %d\n  .amdhsa_accum_offset %d\n"
            "  .amdhsa_group_segment_fixed_size 0\n  .amdhsa_kernarg_size 104\n  .amdhsa_user_sgpr_count 2\n"
            "  .amdhsa_user_sgpr_kernarg_segment_ptr 1\n  .amdhsa_system_sgpr_workgroup_id_x 1\n"
            ".end_amdhsa_kernel\n") % (name, nfv, nsg, accum)
```

```python
import sys
sys.path.insert(0, "work")
from asmlib import *
HEAD = open("gated_mix__grouped_kv_mqa__dense_activation_mish__prompt.s.ref").read().split("; Override launch geometry")[0]
NOTES = """;
"""
def build(kernels, plain=False):
    out = HEAD
    for k in kernels:
        if plain: out += "; @launch grid=(%d,1,1) block=(%d,1,1) lds=%d\n" % (k["grid"], k["block"], k["lds"])
        else: out += "; @launch kernel=%s grid=(%d,1,1) block=(%d,1,1) lds=%d\n" % (k["name"], k["grid"], k["block"], k["lds"])
    out += NOTES
    out += '.amdgcn_target "amdgcn-amd-amdhsa--gfx950"\n.text\n'
    seen = []
    for k in kernels:
        if k["name"] in seen: continue
        seen.append(k["name"])
        out += k["text"]
    out += '.section .rodata,"a"\n'
    seen = []
    for k in kernels:
        if k["name"] in seen: continue
        seen.append(k["name"])
        out += ".p2align 6\n" + kernel_desc(k["name"], k["nfv"], k["accum"], k.get("nsg", 102))
    return out
```

```python
from asmlib import *

WS_Q = 0
WS_H = 4 << 20
WS_H_BYTES = 64 * 224 * 1024
WS_KV = 20 << 20
WS_O = 21 << 20
WS_G = 25 << 20
WS_B = 26 << 20
WS_PROF = 48 << 20
QSCALE = 0.25503486322159136
LOG2E = 1.4426950408889634

import struct
def f2u(x): return struct.unpack("<I", struct.pack("<f", x))[0]

WBASE = 98304
WSLOT = 10240
NWS = 6
ACC = 64
def acc(j, tb): return ACC + 16 * j + 4 * tb
ACCKV = 208
BIAS = 28
T0 = 216

def gen_variant(a, isQ, pfx):
    NG = 10 if isQ else 9
    def x_dma(s, q):
        slot = s % 3
        if q % 4 == 0:
            a.e("s_add_u32 m0, s38, %d" % (slot * 8192 + (q // 4) * 4096))
            a.e("s_nop 0")
        i = a.vm("buffer_load_dwordx4 v10, s[4:7], s%d offen offset:%d lds" % (28 + q, (q % 4) * 1024))
        if q == 7:
            add64(a, 4, 128)
        return i
    def w_dma(h, part):
        slot = h % NWS
        if part == 0:
            a.e("s_add_u32 m0, s39, %d" % (slot * WSLOT))
            a.e("s_nop 0")
            return a.vm("buffer_load_dwordx4 v11, s[8:11], s36 offen lds")
        if part == 1:
            i = a.vm("buffer_load_dwordx4 v11, s[8:11], s37 offen offset:1024 lds")
            a.e("s_add_u32 s8, s8, s41"); a.e("s_addc_u32 s9, s9, 0")
            return i
        if part == 2:
            a.e("s_add_u32 m0, s40, %d" % (slot * WSLOT))
            a.e("s_nop 0")
            i = a.vm("buffer_load_dword v12, s[12:15], 0 offen lds")
            add64(a, 12, 32 * 7168)
            return i
        if part == 3:
            a.e("s_add_u32 m0, s40, %d" % (slot * WSLOT + 1024))
            a.e("s_nop 0")
            i = a.vm("buffer_load_dword v13, s[16:19], 0 offen lds")
            add64(a, 16, 32 * 64)
            return i
    nW = 4 if isQ else 3
    wid = {}
    xid = {}
    bias_ids = []
    jl = [8] if isQ else list(range(9))
    for j in jl:
        if j < 8:
            i = a.vm("buffer_load_dwordx2 v[%d:%d], v2, s[24:27], s43 offen offset:%d" % (BIAS + 4 * j, BIAS + 4 * j + 1, 32 * j))
        else:
            i = a.vm("buffer_load_dwordx2 v[%d:%d], v2, s[24:27], s42 offen" % (BIAS + 4 * j, BIAS + 4 * j + 1))
        bias_ids.append(i)
    for h in range(5):
        for p in range(nW): wid[h] = w_dma(h, p)
        if h == 0:
            for q in range(8): xid[0] = x_dma(0, q)
        if h == 1:
            for q in range(8): xid[1] = x_dma(1, q)
        if h == 3:
            for q in range(4): xid[2] = x_dma(2, q)
    a.wait(vm=bias_ids[-1])
    for j in jl:
        b = BIAS + 4 * j
        a.e("v_and_b32 v%d, 0xffff0000, v%d" % (b + 3, b + 1))
        a.e("v_lshlrev_b32 v%d, 16, v%d" % (b + 2, b + 1))
        a.e("v_and_b32 v%d, 0xffff0000, v%d" % (b + 1, b))
        a.e("v_lshlrev_b32 v%d, 16, v%d" % (b, b))
    a.wait(vm=max(wid[0], xid[0]))
    a.e("s_barrier")
    a.stamp(1)
    wfrag = {}
    def w_read(h, G):
        gi = h * NG + G
        f = gi % 4
        slot = h % NWS
        if G < 8:
            va, off = 16 + G, slot * WSLOT
            o2 = off + 1024
        elif G == 8:
            va, off = 24, slot * WSLOT
            o2 = off + 256
        else:
            va, off = 24, slot * WSLOT + 1024
            o2 = off + 256
        return [("ds_read_b64_tr_b16 a[%d:%d], v%d offset:%d" % (4 * f, 4 * f + 1, va, off), gi, 0),
                ("ds_read_b64_tr_b16 a[%d:%d], v%d offset:%d" % (4 * f + 2, 4 * f + 3, va, o2), gi, 1)]
    xfrag = {}
    def x_read(h, tb):
        s, kk = h // 2, h % 2
        base = 16 + 16 * (h % 2) + 4 * tb
        i = a.ds("ds_read_b128 a[%d:%d], v%d offset:%d" % (base, base + 3, 14 + kk, (s % 3) * 8192 + tb * 2048))
        xfrag[(h, tb)] = i
    def do_wread(item):
        txt, gi, half = item
        i = a.ds(txt)
        if half == 1: wfrag[gi] = i
    for tb in range(4): x_read(0, tb)
    for G in range(2):
        for it in w_read(0, G): do_wread(it)
    for h in range(32):
        s, kk = h // 2, h % 2
        xops = []
        if kk == 1 and s + 3 <= 15: xops = [(s + 3, q) for q in range(4)]
        if kk == 0 and s + 2 <= 15 and s + 2 >= 2: xops = [(s + 2, q) for q in range(4, 8)]
        wops = [(h + 5, p) for p in range(nW)] if h + 5 <= 31 else []
        for G in range(NG):
            gi = h * NG + G
            f = gi % 4
            G2 = G + 2; h2 = h
            if G2 >= NG: G2 -= NG; h2 = h + 1
            reads = w_read(h2, G2) if h2 <= 31 else []
            need = wfrag[gi]
            if G == 0: need = max(need, xfrag[(h, 3)])
            a.wait(lg=need)
            ntb = 2 if G == 9 else 4
            for tb in range(ntb):
                d = acc(G, tb) if G < 9 else ACCKV + 4 * tb
                xb = 16 + 16 * (h % 2) + 4 * tb
                if h == 0:
                    if G == 9 or (isQ and G < 8): csrc = "0"
                    else: csrc = "v[%d:%d]" % (BIAS + 4 * G, BIAS + 4 * G + 3)
                else:
                    csrc = "v[%d:%d]" % (d, d + 3)
                a.e("v_mfma_f32_16x16x32_bf16 v[%d:%d], a[%d:%d], a[%d:%d], %s" % (d, d + 3, 4 * f, 4 * f + 3, xb, xb + 3, csrc))
                if tb == 0 and reads: do_wread(reads[0])
                if tb == 1 and reads: do_wread(reads[1])
                if tb == min(2, ntb - 1):
                    if G < 4 and xops:
                        st, q = xops.pop(0); xid[st] = x_dma(st, q)
                    elif G >= 5 and wops:
                        hh, p = wops.pop(0); wid[hh] = w_dma(hh, p)
                if tb == ntb - 1 and G >= 5 and G <= 8 and h + 1 <= 31:
                    x_read(h + 1, G - 5)
            if G == 4 and h + 1 <= 31:
                need = wid[h + 1]
                if kk == 1: need = max(need, xid[s + 1])
                a.wait(vm=need)
                a.e("s_barrier")
        assert not xops and not wops, (h, xops, wops)
    a.stamp(2)
    a.e("s_nop 7")
    a.e("s_nop 1")
    def mish_pair(src, t0, t1, t2):
        pass
    def pack_store(j, pair, dst_srd, soff_reg, imm, kind):
        A = acc(j, 2 * pair); B = acc(j, 2 * pair + 1)
        t = T0 + (16 if (j * 2 + pair) % 2 else 0)
        q = t + 12
        if kind == "H":
            for k in range(4):
                a.e("v_pk_mul_f32 v[%d:%d], v[%d:%d], s[44:45]" % (t + 2 * k, t + 2 * k + 1, A + 2 * k, A + 2 * k + 1))
            for k in range(8):
                a.e("v_exp_f32 v%d, v%d" % (t + k, t + k))
            for k in range(4):
                u = (t + 8 + 2 * k)
                a.e("v_pk_add_f32 v[%d:%d], v[%d:%d], 2.0 op_sel_hi:[1,0]" % (u, u + 1, t + 2 * k, t + 2 * k + 1))
            for k in range(4):
                u = (t + 8 + 2 * k)
                a.e("v_pk_fma_f32 v[%d:%d], v[%d:%d], v[%d:%d], 2.0 op_sel_hi:[1,1,0]" % (t + 2 * k, t + 2 * k + 1, t + 2 * k, t + 2 * k + 1, u, u + 1))
            for k in range(8):
                a.e("v_rcp_f32 v%d, v%d" % (t + k, t + k))
            for k in range(4):
                a.e("v_pk_fma_f32 v[%d:%d], v[%d:%d], s[46:47], 1.0 op_sel_hi:[1,1,0]" % (t + 2 * k, t + 2 * k + 1, t + 2 * k, t + 2 * k + 1))
            for k in range(4):
                a.e("v_pk_mul_f32 v[%d:%d], v[%d:%d], v[%d:%d]" % (t + 2 * k, t + 2 * k + 1, t + 2 * k, t + 2 * k + 1, A + 2 * k, A + 2 * k + 1))
        else:
            for k in range(4):
                a.e("v_pk_mul_f32 v[%d:%d], v[%d:%d], s[48:49]" % (t + 2 * k, t + 2 * k + 1, A + 2 * k, A + 2 * k + 1))
        a.e("v_cvt_pk_bf16_f32 v%d, v%d, v%d" % (q, t, t + 1))
        a.e("v_cvt_pk_bf16_f32 v%d, v%d, v%d" % (q + 1, t + 2, t + 3))
        a.e("v_cvt_pk_bf16_f32 v%d, v%d, v%d" % (q + 2, t + 4, t + 5))
        a.e("v_cvt_pk_bf16_f32 v%d, v%d, v%d" % (q + 3, t + 6, t + 7))
        a.e("s_nop 1")
        a.e("v_permlane16_swap_b32 v%d, v%d" % (q, q + 2))
        a.e("v_permlane16_swap_b32 v%d, v%d" % (q + 1, q + 3))
        a.vm("buffer_store_dwordx4 v[%d:%d], v25, s[%d:%d], s%d offen offset:%d" % (q, q + 3, dst_srd, dst_srd + 3, soff_reg, imm))
    for j in range(8):
        for pair in range(2):
            pack_store(j, pair, 20, (50 if j < 4 else 54) + pair, (j % 4) * 1024, "Q" if isQ else "H")
    for pair in range(2):
        pack_store(8, pair, 56, 52 + pair, 0, "H")
    if isQ:
        a.e("s_cmp_ge_u32 s60, 2")
        a.e("s_cbranch_scc1 %s_V" % pfx)
        for tb in range(2):
            d = ACCKV + 4 * tb
            a.e("v_cvt_pk_bf16_f32 v%d, v%d, v%d" % (T0 + 2 * tb, d, d + 1))
            a.e("v_cvt_pk_bf16_f32 v%d, v%d, v%d" % (T0 + 2 * tb + 1, d + 2, d + 3))
            a.vm("buffer_store_dwordx2 v[%d:%d], v26, s[64:67], s61 offen offset:%d" % (T0 + 2 * tb, T0 + 2 * tb + 1, tb * 256))
        a.e("s_branch %s_done" % pfx)
        a.label("%s_V" % pfx)
        for tb in range(2):
            d = ACCKV + 4 * tb
            a.e("v_cvt_pk_bf16_f32 v%d, v%d, v%d" % (T0 + 2 * tb, d, d + 1))
            a.e("v_cvt_pk_bf16_f32 v%d, v%d, v%d" % (T0 + 2 * tb + 1, d + 2, d + 3))
            for r in range(4):
                op = "buffer_store_short" if r % 2 == 0 else "buffer_store_short_d16_hi"
                a.vm("%s v%d, v27, s[64:67], s61 offen offset:%d" % (op, T0 + 2 * tb + r // 2, tb * 1024 + r * 16))
        a.label("%s_done" % pfx)
    a.stamp(3)
    a.e("s_waitcnt vmcnt(0)") if a.prof else None
    a.stamp(4)
    a.stamp_flush(80, 81, WS_PROF, 82, 4)
    a.e("s_endpgm")

def gen_k1(name, prof=False):
    a = Asm()
    a.prof = prof
    a.raw(kernel_header(name))
    a.e("s_cmp_ge_u32 s2, 256")
    a.e("s_cbranch_scc1 %s_exit" % name)
    if prof: a.e("v_mov_b32 v254, 0")
    a.stamp(0)
    a.e("s_load_dwordx4 s[68:71], s[0:1], 0")
    a.e("s_load_dwordx4 s[72:75], s[0:1], 16")
    a.e("s_load_dwordx4 s[76:79], s[0:1], 48")
    a.e("s_load_dwordx2 s[80:81], s[0:1], 96")
    a.e("v_and_b32 v1, 63, v0")
    a.e("v_lshrrev_b32 v3, 6, v0")
    a.e("s_nop 0")
    a.e("v_readfirstlane_b32 s82, v3")
    a.e("s_and_b32 s83, s2, 7")
    a.e("s_lshr_b32 s84, s2, 3")
    a.e("s_and_b32 s85, s83, 1")
    a.e("s_lshr_b32 s86, s83, 1")
    a.e("s_and_b32 s87, s84, 7")
    a.e("s_lshl_b32 s88, s86, 3")
    a.e("s_add_u32 s88, s88, s87")
    a.e("s_lshr_b32 s87, s84, 3")
    a.e("s_lshl_b32 s89, s85, 2")
    a.e("s_add_u32 s89, s89, s87")
    a.e("s_lshr_b32 s90, s88, 2")
    a.e("s_cmp_lt_u32 s88, 8")
    a.e("s_cselect_b32 s90, s90, 0")
    a.e("s_and_b32 s60, s88, 3")
    a.e("v_lshrrev_b32 v3, 3, v1")
    a.e("v_and_b32 v4, 6, v3")
    a.e("v_and_b32 v5, 7, v1")
    a.e("v_xor_b32 v4, v4, v5")
    a.e("v_lshlrev_b32 v4, 4, v4")
    a.e("v_lshl_add_u32 v10, v3, 11, v4")
    a.e("v_and_b32 v5, 15, v1")
    a.e("v_lshrrev_b32 v6, 4, v1")
    a.e("v_bfe_u32 v7, v1, 2, 2")
    a.e("v_and_b32 v8, 3, v1")
    a.e("v_lshlrev_b32 v2, 3, v6")
    a.e("v_lshlrev_b32 v25, 4, v1")
    a.e("s_mul_i32 s38, s82, 24576")
    a.e("v_and_b32 v3, 6, v5")
    a.e("v_xor_b32 v3, v3, v6")
    a.e("v_lshlrev_b32 v4, 4, v3")
    a.e("v_lshl_add_u32 v4, v5, 7, v4")
    a.e("v_add_u32 v14, s38, v4")
    a.e("v_xor_b32 v15, 64, v14")
    a.e("v_and_b32 v3, 1, v6")
    a.e("v_lshl_or_b32 v3, v3, 2, v7")
    a.e("v_lshl_add_u32 v4, v6, 3, v7")
    a.e("v_lshlrev_b32 v4, 8, v4")
    a.e("v_lshl_add_u32 v4, v8, 3, v4")
    a.e("v_add_u32 v4, %d, v4" % WBASE)
    for j in range(8):
        a.e("v_xor_b32 v9, %d, v3" % j)
        a.e("v_lshl_add_u32 v%d, v9, 5, v4" % (16 + j))
    a.e("v_lshrrev_b32 v9, 1, v6")
    a.e("v_lshl_or_b32 v9, v9, 4, v3")
    a.e("v_lshlrev_b32 v9, 5, v9")
    a.e("v_lshl_add_u32 v9, v8, 3, v9")
    a.e("v_add_u32 v24, %d, v9" % (WBASE + 8192))
    a.e("v_lshrrev_b32 v3, 3, v1")
    a.e("s_lshl_b32 s91, s82, 3")
    a.e("v_add_u32 v3, s91, v3")
    a.e("v_and_b32 v4, 0x13, v3")
    a.e("v_bfe_u32 v9, v3, 2, 1")
    a.e("v_lshl_or_b32 v4, v9, 3, v4")
    a.e("v_bfe_u32 v9, v3, 3, 1")
    a.e("v_lshl_or_b32 v4, v9, 2, v4")
    a.e("v_and_b32 v9, 7, v1")
    a.e("v_lshlrev_b32 v9, 2, v9")
    a.e("v_lshl_add_u32 v13, v4, 6, v9")
    a.e("s_movk_i32 s91, 7168")
    a.e("v_mul_lo_u32 v4, v4, s91")
    a.e("v_add_u32 v12, v4, v9")
    a.e("v_lshrrev_b32 v3, 1, v6")
    a.e("v_lshl_add_u32 v3, v3, 5, v5")
    a.e("v_lshlrev_b32 v3, 4, v3")
    a.e("v_and_b32 v4, 1, v6")
    a.e("v_lshl_add_u32 v26, v4, 3, v3")
    a.e("v_bfe_u32 v3, v5, 2, 1")
    a.e("v_lshlrev_b32 v3, 5, v3")
    a.e("v_lshl_add_u32 v3, v6, 2, v3")
    a.e("v_lshlrev_b32 v3, 4, v3")
    a.e("v_and_b32 v4, 3, v5")
    a.e("v_lshrrev_b32 v9, 3, v5")
    a.e("v_lshl_add_u32 v4, v9, 2, v4")
    a.e("v_lshl_add_u32 v27, v4, 1, v3")
    a.e("s_waitcnt lgkmcnt(0)")
    srd(a, 4, 68, 69, 2048 * 2048)
    a.e("s_lshl_b32 s91, s89, 8")
    a.e("s_lshl_b32 s92, s82, 6")
    a.e("s_add_u32 s91, s91, s92")
    for q in range(8):
        tb = q // 2
        a.e("s_lshl_b32 s92, s90, 1")
        a.e("s_add_u32 s92, s92, %d" % tb)
        a.e("s_and_b32 s92, s92, 3")
        a.e("s_lshl_b32 s92, s92, 4")
        a.e("s_add_u32 s92, s92, s91")
        a.e("s_add_u32 s92, s92, %d" % (8 * (q & 1)))
        a.e("s_lshl_b32 s92, s92, 11")
        a.e("s_sub_u32 s%d, s92, %d" % (28 + q, (q & 3) * 1024))
    a.e("s_lshl_b32 s39, s82, 11")
    a.e("s_add_u32 s39, s39, %d" % WBASE)
    a.e("s_lshl_b32 s40, s82, 8")
    a.e("s_add_u32 s40, s40, %d" % (WBASE + 8192))
    a.e("s_mov_b32 s44, 0x%x" % f2u(LOG2E)); a.e("s_mov_b32 s45, s44")
    a.e("s_mov_b32 s46, 0x%x" % f2u(-2.0)); a.e("s_mov_b32 s47, s46")
    a.e("s_mov_b32 s48, 0x%x" % f2u(QSCALE)); a.e("s_mov_b32 s49, s48")
    a.e("s_lshl_b32 s91, s88, 5")
    a.e("s_add_u32 s91, s91, 6144")
    a.e("s_add_u32 s92, s76, s91"); a.e("s_addc_u32 s93, s77, 0")
    srd(a, 12, 92, 93, 1024 * 7168)
    srd(a, 24, 78, 79, 3584 * 2)
    a.e("s_mov_b32 s42, s91")
    a.e("s_lshl_b32 s94, s89, 3")
    a.e("s_lshl_b32 s95, s82, 1")
    a.e("s_add_u32 s94, s94, s95")
    a.e("s_add_u32 s95, s94, s90")
    a.e("s_xor_b32 s96, s90, 1")
    a.e("s_add_u32 s96, s94, s96")
    a.e("s_add_u32 s92, s80, 0x%x" % WS_H); a.e("s_addc_u32 s93, s81, 0")
    srd(a, 56, 92, 93, WS_H_BYTES)
    for pair, sT in ((0, 95), (1, 96)):
        a.e("s_mul_i32 s91, s%d, 224" % sT)
        a.e("s_add_u32 s91, s91, s88")
        a.e("s_add_u32 s91, s91, 192")
        a.e("s_lshl_b32 s%d, s91, 10" % (52 + pair))
    a.e("s_cmp_lt_u32 s88, 8")
    a.e("s_cbranch_scc0 %s_H" % name)
    a.e("s_lshl_b32 s91, s88, 8")
    a.e("s_add_u32 s92, s70, s91"); a.e("s_addc_u32 s93, s71, 0")
    srd(a, 8, 92, 93, 1024 * 2048)
    a.e("s_mov_b32 s41, %d" % (32 * 2048))
    a.e("s_lshl_b32 s36, s82, 14")
    a.e("s_add_u32 s37, s36, %d" % (4 * 2048 - 1024))
    def wvaddr(RS):
        a.e("s_and_b32 s91, s82, 1")
        a.e("s_lshl_b32 s91, s91, 2")
        a.e("v_or_b32 v3, s91, v6")
        a.e("v_bfe_u32 v4, v1, 1, 3")
        a.e("v_xor_b32 v3, v3, v4")
        a.e("v_lshlrev_b32 v3, 5, v3")
        a.e("v_and_b32 v4, 1, v1")
        a.e("v_lshl_add_u32 v3, v4, 4, v3")
        a.e("s_movk_i32 s91, %d" % RS)
        a.e("v_mul_lo_u32 v4, v6, s91")
        a.e("v_add_u32 v11, v3, v4")
    wvaddr(2048)
    a.e("s_cmp_lt_u32 s60, 2")
    a.e("s_cselect_b32 s92, s72, s74")
    a.e("s_cselect_b32 s93, s73, s75")
    a.e("s_and_b32 s91, s60, 1")
    a.e("s_lshl_b32 s91, s91, 5")
    a.e("s_add_u32 s92, s92, s91"); a.e("s_addc_u32 s93, s93, 0")
    srd(a, 16, 92, 93, 1024 * 64)
    a.e("s_add_u32 s92, s80, 0x%x" % WS_KV); a.e("s_addc_u32 s93, s81, 0")
    srd(a, 64, 92, 93, 64 * 4096)
    a.e("s_lshl_b32 s61, s95, 12")
    a.e("s_lshl_b32 s91, s60, 10")
    a.e("s_sub_u32 s92, s60, 2")
    a.e("s_lshl_b32 s92, s92, 8")
    a.e("s_add_u32 s92, s92, 2048")
    a.e("s_cmp_lt_u32 s60, 2")
    a.e("s_cselect_b32 s91, s91, s92")
    a.e("s_add_u32 s61, s61, s91")
    a.e("s_add_u32 s92, s80, 0x%x" % WS_Q); a.e("s_addc_u32 s93, s81, 0")
    srd(a, 20, 92, 93, 4 << 20)
    for pair, sT in ((0, 95), (1, 96)):
        a.e("s_lshl_b32 s91, s%d, 6" % sT)
        a.e("s_lshl_b32 s92, s88, 3")
        a.e("s_add_u32 s91, s91, s92")
        a.e("s_lshl_b32 s%d, s91, 10" % (50 + pair))
        a.e("s_add_u32 s%d, s%d, 4096" % (54 + pair, 50 + pair))
    a.e("s_mov_b32 s43, 0")
    gen_variant(a, True, name + "_q")
    a.label("%s_H" % name)
    a.reset_counts()
    a.e("s_sub_u32 s97, s88, 8")
    a.e("s_lshl_b32 s91, s97, 8")
    a.e("s_add_u32 s92, s76, s91"); a.e("s_addc_u32 s93, s77, 0")
    srd(a, 8, 92, 93, 1024 * 7168)
    a.e("s_mov_b32 s43, s91")
    a.e("s_mov_b32 s41, %d" % (32 * 7168))
    a.e("s_mul_i32 s36, s82, %d" % (8 * 7168))
    a.e("s_add_u32 s37, s36, %d" % (4 * 7168 - 1024))
    wvaddr(7168)
    a.e("s_add_u32 s92, s80, 0x%x" % WS_H); a.e("s_addc_u32 s93, s81, 0")
    srd(a, 20, 92, 93, WS_H_BYTES)
    for pair, sT in ((0, 95), (1, 96)):
        a.e("s_mul_i32 s91, s%d, 224" % sT)
        a.e("s_lshl_b32 s92, s97, 3")
        a.e("s_add_u32 s91, s91, s92")
        a.e("s_lshl_b32 s%d, s91, 10" % (50 + pair))
        a.e("s_add_u32 s%d, s%d, 4096" % (54 + pair, 50 + pair))
    gen_variant(a, False, name + "_h")
    a.label("%s_exit" % name)
    a.e("s_endpgm")
    return a.text()

if __name__ == "__main__":
    print(gen_k1("k1_kernel"))
```

```python
from asmlib import *
from k1 import WS_Q, WS_KV, WS_O, WS_G, WS_PROF, f2u, LOG2E

VQ = 8
VK = 16
VV = 24
VS = 32
VP = 64
VO = 72
VL = 88
VSEL = 92
VNM = 96
VT = 112
NFV = 128

def tile_iter(a, i, slotoff, prof=False):
    Sc = VS + 16 * (i % 2); Sn = VS + 16 * ((i + 1) % 2)
    def koff(t): return ((t // 4) % 4) * 16384 + (t % 4) * 4096
    if i % 4 == 2:
        a.e("s_waitcnt vmcnt(2)")
        a.e("s_barrier")
        c3 = (i // 4 + 3) % 4
        a.e("s_add_u32 m0, s30, %d" % (c3 * 16384))
        a.e("s_add_u32 s31, s31, 16384")
        a.e("buffer_load_dwordx4 v2, s[8:11], s31 offen lds")
        a.e("buffer_load_dwordx4 v2, s[8:11], s31 offen offset:1024 lds")
    a.e("s_waitcnt lgkmcnt(2)")
    a.e("v_mfma_f32_32x32x16_bf16 v[%d:%d], v[%d:%d], v[%d:%d], v[%d:%d]" % (Sn, Sn + 15, VK, VK + 3, VQ, VQ + 3, VNM, VNM + 15))
    for k in range(0, 4): a.e("v_exp_f32 v%d, v%d" % (Sc + k, Sc + k))
    a.e("v_mfma_f32_32x32x16_bf16 v[%d:%d], v[%d:%d], v[%d:%d], v[%d:%d]" % (Sn, Sn + 15, VK + 4, VK + 7, VQ + 4, VQ + 7, Sn, Sn + 15))
    for k in range(4, 8): a.e("v_exp_f32 v%d, v%d" % (Sc + k, Sc + k))
    a.e("ds_read_b128 v[%d:%d], v2 offset:%d" % (VK, VK + 3, koff(i + 2)))
    a.e("ds_read_b128 v[%d:%d], v2 offset:%d" % (VK + 4, VK + 7, koff(i + 2) + 1024))
    for k in range(4): a.e("v_cvt_pk_bf16_f32 v%d, v%d, v%d" % (VP + k, Sc + 2 * k, Sc + 2 * k + 1))
    a.e("v_exp_f32 v%d, v%d" % (Sc + 8, Sc + 8))
    a.e("v_exp_f32 v%d, v%d" % (Sc + 9, Sc + 9))
    a.e("s_waitcnt lgkmcnt(2)")
    a.e("v_mfma_f32_32x32x16_bf16 v[%d:%d], v[%d:%d], v[%d:%d], v[%d:%d]" % (VO, VO + 15, VV, VV + 3, VP, VP + 3, VO, VO + 15))
    a.e("v_exp_f32 v%d, v%d" % (Sc + 10, Sc + 10))
    a.e("v_exp_f32 v%d, v%d" % (Sc + 11, Sc + 11))
    a.e("v_mfma_f32_16x16x32_bf16 v[%d:%d], v[%d:%d], v[%d:%d], v[%d:%d]" % (VL, VL + 3, VSEL, VSEL + 3, VP, VP + 3, VL, VL + 3))
    for k in range(12, 16): a.e("v_exp_f32 v%d, v%d" % (Sc + k, Sc + k))
    a.e("ds_read_b128 v[%d:%d], v2 offset:%d" % (VV, VV + 3, koff(i + 1) + 2048))
    for k in range(4, 8): a.e("v_cvt_pk_bf16_f32 v%d, v%d, v%d" % (VP + k, Sc + 2 * k, Sc + 2 * k + 1))
    a.e("s_nop 1")
    a.e("v_mfma_f32_32x32x16_bf16 v[%d:%d], v[%d:%d], v[%d:%d], v[%d:%d]" % (VO, VO + 15, VV + 4, VV + 7, VP + 4, VP + 7, VO, VO + 15))
    a.e("v_mfma_f32_16x16x32_bf16 v[%d:%d], v[%d:%d], v[%d:%d], v[%d:%d]" % (VL, VL + 3, VSEL, VSEL + 3, VP + 4, VP + 7, VL, VL + 3))
    a.e("ds_read_b128 v[%d:%d], v2 offset:%d" % (VV + 4, VV + 7, koff(i + 1) + 3072))

def gen_k2(name, prof=False):
    a = Asm(); a.prof = prof
    a.PROF_V = 126
    a.raw(kernel_header(name))
    a.e("s_cmp_ge_u32 s2, 256")
    a.e("s_cbranch_scc1 %s_exit" % name)
    if prof: a.e("v_mov_b32 v126, 0")
    a.stamp(0)
    a.e("s_load_dwordx2 s[68:69], s[0:1], 0")
    a.e("s_load_dwordx2 s[70:71], s[0:1], 72")
    a.e("s_load_dwordx2 s[80:81], s[0:1], 96")
    a.e("v_and_b32 v1, 63, v0")
    a.e("v_lshrrev_b32 v3, 6, v0")
    a.e("v_lshlrev_b32 v2, 4, v1")
    a.e("v_readfirstlane_b32 s82, v3")
    a.e("s_lshr_b32 s83, s2, 2")
    a.e("s_and_b32 s84, s2, 3")
    a.e("s_lshl_b32 s85, s84, 3")
    a.e("s_waitcnt lgkmcnt(0)")
    a.e("s_add_u32 s85, s85, s82")
    a.e("s_add_u32 s92, s80, 0x%x" % WS_Q); a.e("s_addc_u32 s93, s81, 0"); srd(a, 4, 92, 93, 4 << 20)
    a.e("s_add_u32 s92, s80, 0x%x" % WS_KV); a.e("s_addc_u32 s93, s81, 0"); srd(a, 8, 92, 93, 64 * 4096)
    a.e("s_lshl_b32 s86, s83, 5"); a.e("s_add_u32 s86, s86, s85"); a.e("s_lshl_b32 s86, s86, 11")
    a.label("%s_restart" % name) if False else None
    a.vm("buffer_load_dwordx4 v[%d:%d], v2, s[4:7], s86 offen" % (VQ, VQ + 3))
    qid = a.vm("buffer_load_dwordx4 v[%d:%d], v2, s[4:7], s86 offen offset:1024" % (VQ + 4, VQ + 7))
    a.e("s_lshl_b32 s30, s82, 11")
    a.e("s_mov_b32 s88, 0")
    a.label("%s_pass" % name)
    a.e("s_mov_b32 s31, s30")
    for c in range(3):
        a.e("s_add_u32 m0, s30, %d" % (c * 16384))
        if c: a.e("s_add_u32 s31, s31, 16384")
        else: a.e("s_nop 0")
        a.vm("buffer_load_dwordx4 v2, s[8:11], s31 offen lds")
        a.vm("buffer_load_dwordx4 v2, s[8:11], s31 offen offset:1024 lds")
    a.e("s_cmp_lg_u32 s88, 0")
    a.e("s_cbranch_scc1 %s_nog" % name)
    a.e("s_add_u32 s92, s80, 0x%x" % WS_G); a.e("s_addc_u32 s93, s81, 0"); srd(a, 24, 92, 93, 8192)
    srd(a, 16, 68, 69, 2048 * 2048)
    srd(a, 20, 70, 71, 2048)
    a.e("s_lshl_b32 s87, s83, 5"); a.e("s_add_u32 s87, s87, s85")
    a.e("s_lshl_b32 s89, s87, 11")
    a.e("v_lshlrev_b32 v3, 5, v1")
    a.e("buffer_load_dwordx4 v[%d:%d], v3, s[16:19], s89 offen" % (VS, VS + 3))
    a.e("buffer_load_dwordx4 v[%d:%d], v3, s[16:19], s89 offen offset:16" % (VS + 4, VS + 7))
    a.e("buffer_load_dwordx4 v[%d:%d], v3, s[20:23], 0 offen" % (VS + 8, VS + 11))
    a.e("buffer_load_dwordx4 v[%d:%d], v3, s[20:23], 0 offen offset:16" % (VS + 12, VS + 15))
    a.e("v_mov_b32 v4, 0")
    a.e("s_waitcnt vmcnt(0)")
    for k in range(8): a.e("v_dot2c_f32_bf16 v4, v%d, v%d" % (VS + k, VS + 8 + k))
    a.e("s_nop 2")
    for sh in (1, 2, 4, 8):
        a.e("v_add_f32_dpp v4, v4, v4 row_shr:%d row_mask:0xf bank_mask:0xf bound_ctrl:0" % sh)
        a.e("s_nop 1")
    a.e("v_add_f32_dpp v4, v4, v4 row_bcast:15 row_mask:0xa bank_mask:0xf")
    a.e("s_nop 1")
    a.e("v_add_f32_dpp v4, v4, v4 row_bcast:31 row_mask:0xc bank_mask:0xf")
    a.e("s_nop 1")
    a.e("v_mul_f32 v4, 0x%x, v4" % f2u(-LOG2E))
    a.e("v_exp_f32 v4, v4")
    a.e("s_nop 0")
    a.e("v_add_f32 v4, 1.0, v4")
    a.e("v_rcp_f32 v4, v4")
    a.e("s_lshl_b32 s87, s87, 2")
    a.e("v_mov_b32 v5, s87")
    a.e("v_cmp_eq_u32 vcc, 63, v1")
    a.e("s_nop 1")
    a.e("s_and_saveexec_b64 s[90:91], vcc")
    a.e("buffer_store_dword v4, v5, s[24:27], 0 offen")
    a.e("s_mov_b64 exec, s[90:91]")
    a.label("%s_nog" % name)
    a.e("v_mov_b32 v4, 0x10000"); a.e("v_mov_b32 v5, 0")
    a.e("ds_write_b32 v4, v5")
    a.e("s_add_u32 s92, s80, 0x%x" % WS_O); a.e("s_addc_u32 s93, s81, 0"); srd(a, 12, 92, 93, 4 << 20)
    a.e("v_bfe_u32 v4, v1, 2, 1"); a.e("v_bfe_u32 v5, v1, 4, 1")
    a.e("v_cmp_eq_u32 vcc, v4, v5")
    a.e("v_mov_b32 v6, 0x3f803f80")
    a.e("v_mov_b32 v7, 0")
    for k in range(4): a.e("v_cndmask_b32 v%d, v7, v6, vcc" % (VSEL + k))
    for k in range(16): a.e("v_mov_b32 v%d, 0" % (VO + k))
    for k in range(4): a.e("v_mov_b32 v%d, 0" % (VL + k))
    a.e("s_waitcnt vmcnt(0) lgkmcnt(0)")
    a.e("s_barrier")
    a.stamp(1)
    a.e("ds_read_b128 v[%d:%d], v2 offset:0" % (VK, VK + 3))
    a.e("ds_read_b128 v[%d:%d], v2 offset:1024" % (VK + 4, VK + 7))
    a.e("s_cmp_lg_u32 s88, 0")
    a.e("s_cbranch_scc1 %s_havemax" % name)
    a.e("s_waitcnt lgkmcnt(0)")
    a.e("v_mfma_f32_32x32x16_bf16 v[%d:%d], v[%d:%d], v[%d:%d], 0" % (VS, VS + 15, VK, VK + 3, VQ, VQ + 3))
    a.e("v_mfma_f32_32x32x16_bf16 v[%d:%d], v[%d:%d], v[%d:%d], v[%d:%d]" % (VS, VS + 15, VK + 4, VK + 7, VQ + 4, VQ + 7, VS, VS + 15))
    a.e("s_nop 15")
    a.e("v_max3_f32 v4, v%d, v%d, v%d" % (VS, VS + 1, VS + 2))
    for k in range(3, 15, 2): a.e("v_max3_f32 v4, v4, v%d, v%d" % (VS + k, VS + k + 1))
    a.e("v_max_f32 v4, v4, v%d" % (VS + 15))
    a.label("%s_setmax" % name)
    a.e("v_mov_b32 v5, v4")
    a.e("s_nop 1")
    a.e("v_permlane32_swap_b32 v4, v5")
    a.e("s_nop 1")
    a.e("v_max_f32 v4, v4, v5")
    a.e("v_sub_f32 v4, 0, v4")
    for k in range(16): a.e("v_mov_b32 v%d, v4" % (VNM + k))
    a.label("%s_havemax" % name)
    a.e("s_waitcnt lgkmcnt(0)")
    a.e("s_nop 0")
    a.e("v_mfma_f32_32x32x16_bf16 v[%d:%d], v[%d:%d], v[%d:%d], v[%d:%d]" % (VS, VS + 15, VK, VK + 3, VQ, VQ + 3, VNM, VNM + 15))
    a.e("v_mfma_f32_32x32x16_bf16 v[%d:%d], v[%d:%d], v[%d:%d], v[%d:%d]" % (VS, VS + 15, VK + 4, VK + 7, VQ + 4, VQ + 7, VS, VS + 15))
    a.e("ds_read_b128 v[%d:%d], v2 offset:%d" % (VK, VK + 3, 4096))
    a.e("ds_read_b128 v[%d:%d], v2 offset:%d" % (VK + 4, VK + 7, 4096 + 1024))
    a.e("ds_read_b128 v[%d:%d], v2 offset:%d" % (VV, VV + 3, 2048))
    a.e("ds_read_b128 v[%d:%d], v2 offset:%d" % (VV + 4, VV + 7, 3072))
    a.e("s_nop 7")
    a.e("s_mov_b32 s33, 4")
    a.label("%s_loop" % name)
    for i in range(16): tile_iter(a, i, 0)
    a.e("s_sub_u32 s33, s33, 1")
    a.e("s_cmp_lg_u32 s33, 0")
    a.e("s_cbranch_scc1 %s_loop" % name)
    a.stamp(2)
    a.e("s_waitcnt vmcnt(0) lgkmcnt(0)")
    a.e("s_nop 15")
    a.e("v_rcp_f32 v4, v%d" % VL)
    a.e("v_mov_b32 v5, 0x%x" % f2u(2.0 ** 30))
    a.e("v_cmp_nle_f32 vcc, v%d, v5" % VL)
    for k in range(16): a.e("v_mul_f32 v%d, v%d, v4" % (VO + k, VO + k))
    a.e("s_mov_b64 s[34:35], vcc")
    a.e("v_mov_b32 v5, 0x207")
    for k in range(16):
        a.e("v_cmp_class_f32 vcc, v%d, v5" % (VO + k))
        a.e("s_or_b64 s[34:35], s[34:35], vcc")
    a.e("s_cmp_lg_u32 s88, 0")
    a.e("s_cbranch_scc1 %s_store" % name)
    a.e("s_cmp_eq_u64 s[34:35], 0")
    a.e("s_cbranch_scc1 %s_ok" % name)
    a.e("v_mov_b32 v4, 0x10000"); a.e("v_mov_b32 v5, 1")
    a.e("ds_write_b32 v4, v5")
    a.e("s_waitcnt lgkmcnt(0)")
    a.label("%s_ok" % name)
    a.e("s_barrier")
    a.e("v_mov_b32 v4, 0x10000")
    a.e("ds_read_b32 v5, v4")
    a.e("s_waitcnt lgkmcnt(0)")
    a.e("v_readfirstlane_b32 s36, v5")
    a.e("s_nop 3")
    a.e("s_cmp_eq_u32 s36, 0")
    a.e("s_cbranch_scc1 %s_store" % name)
    a.e("s_barrier")
    a.e("s_mov_b32 s88, 1")
    a.e("v_mov_b32 v4, 0xff800000")
    a.e("s_mov_b32 s37, 0")
    a.label("%s_mx" % name)
    a.e("buffer_load_dwordx4 v[%d:%d], v2, s[8:11], s37 offen" % (VK, VK + 3))
    a.e("buffer_load_dwordx4 v[%d:%d], v2, s[8:11], s37 offen offset:1024" % (VK + 4, VK + 7))
    a.e("s_waitcnt vmcnt(0)")
    a.e("v_mfma_f32_32x32x16_bf16 v[%d:%d], v[%d:%d], v[%d:%d], 0" % (VS, VS + 15, VK, VK + 3, VQ, VQ + 3))
    a.e("v_mfma_f32_32x32x16_bf16 v[%d:%d], v[%d:%d], v[%d:%d], v[%d:%d]" % (VS, VS + 15, VK + 4, VK + 7, VQ + 4, VQ + 7, VS, VS + 15))
    a.e("s_nop 15")
    for k in range(0, 16, 2): a.e("v_max3_f32 v4, v4, v%d, v%d" % (VS + k, VS + k + 1))
    a.e("s_add_u32 s37, s37, 4096")
    a.e("s_cmp_lt_u32 s37, %d" % (64 * 4096))
    a.e("s_cbranch_scc1 %s_mx" % name)
    a.e("v_mov_b32 v5, v4")
    a.e("s_nop 1")
    a.e("v_permlane32_swap_b32 v4, v5")
    a.e("s_nop 1")
    a.e("v_max_f32 v4, v4, v5")
    a.e("v_sub_f32 v4, 0, v4")
    for k in range(16): a.e("v_mov_b32 v%d, v4" % (VNM + k))
    a.e("s_branch %s_pass" % name)
    a.label("%s_store" % name)
    for k in range(8): a.e("v_cvt_pk_bf16_f32 v%d, v%d, v%d" % (VT + k, VO + 2 * k, VO + 2 * k + 1))
    a.e("buffer_store_dwordx4 v[%d:%d], v2, s[12:15], s86 offen" % (VT, VT + 3))
    a.e("buffer_store_dwordx4 v[%d:%d], v2, s[12:15], s86 offen offset:1024" % (VT + 4, VT + 7))
    a.stamp(3)
    if prof: a.e("s_waitcnt vmcnt(0)")
    a.stamp(4)
    a.stamp_flush(80, 81, WS_PROF + (1 << 20), 82, 8) if prof else None
    a.label("%s_exit" % name)
    a.e("s_endpgm")
    return a.text()

if __name__ == "__main__":
    print(gen_k2("k2_kernel"))
```

```python
from asmlib import *
from k1 import WS_H, WS_H_BYTES, WS_O, WS_G, WS_PROF, f2u

SLOT = 24576
NS = 6
VA = 32
VB = 48
ACA = 64
ACB = 80
VT = 96

def gen_k3(name, prof=False):
    a = Asm(); a.prof = prof; a.PROF_V = 126
    a.raw(kernel_header(name))
    a.e("s_cmp_ge_u32 s2, 256")
    a.e("s_cbranch_scc1 %s_exit" % name)
    if prof: a.e("v_mov_b32 v126, 0")
    a.stamp(0)
    a.e("s_load_dwordx2 s[68:69], s[0:1], 32")
    a.e("s_load_dwordx2 s[70:71], s[0:1], 64")
    a.e("s_load_dwordx2 s[72:73], s[0:1], 80")
    a.e("s_load_dwordx2 s[80:81], s[0:1], 96")
    a.e("v_and_b32 v1, 63, v0")
    a.e("v_lshrrev_b32 v3, 6, v0")
    a.e("v_lshlrev_b32 v2, 4, v1")
    a.e("v_readfirstlane_b32 s82, v3")
    a.e("s_and_b32 s83, s2, 7"); a.e("s_lshr_b32 s84, s2, 3")
    a.e("s_lshr_b32 s85, s83, 1")
    a.e("s_and_b32 s86, s83, 1")
    a.e("s_lshl_b32 s85, s85, 2"); a.e("s_lshr_b32 s87, s84, 3"); a.e("s_add_u32 s85, s85, s87")
    a.e("s_lshl_b32 s86, s86, 3"); a.e("s_and_b32 s87, s84, 7"); a.e("s_add_u32 s86, s86, s87")
    a.e("s_lshr_b32 s87, s82, 1")
    a.e("s_and_b32 s88, s82, 1")
    a.e("v_lshrrev_b32 v3, 3, v1")
    a.e("v_bfe_u32 v4, v1, 4, 1")
    a.e("v_lshlrev_b32 v4, 2, v4")
    a.e("v_and_b32 v5, 7, v1")
    a.e("v_xor_b32 v4, v4, v5")
    a.e("v_lshlrev_b32 v4, 4, v4")
    a.e("v_lshl_add_u32 v10, v3, 11, v4")
    a.e("v_lshrrev_b32 v3, 5, v1")
    a.e("v_bfe_u32 v4, v1, 2, 2")
    a.e("v_bfe_u32 v5, v1, 4, 1")
    a.e("v_and_b32 v6, 3, v1")
    a.e("v_lshrrev_b32 v7, 1, v4")
    a.e("v_xor_b32 v7, s88, v7")
    a.e("v_lshlrev_b32 v7, 6, v7")
    a.e("v_lshl_add_u32 v7, v5, 5, v7")
    a.e("v_lshl_add_u32 v7, v6, 3, v7")
    a.e("v_add_u32 v7, 16384, v7")
    a.e("v_lshl_add_u32 v8, v3, 3, v4")
    a.e("v_lshl_add_u32 v9, v3, 2, v4")
    a.e("v_lshl_add_u32 v8, v8, 7, v7")
    a.e("v_lshl_add_u32 v9, v9, 7, v7")
    a.e("s_lshl_b32 s89, s87, 12")
    a.e("v_add_u32 v11, s89, v2")
    for st in range(3):
        a.e("v_add_u32 v%d, %d, v8" % (12 + st, st * 2 * SLOT))
        a.e("v_add_u32 v%d, %d, v9" % (15 + st, st * 2 * SLOT))
        a.e("v_add_u32 v%d, %d, v11" % (18 + st, st * 2 * SLOT))
    a.e("s_waitcnt lgkmcnt(0)")
    a.e("s_add_u32 s92, s80, 0x%x" % WS_O); a.e("s_addc_u32 s93, s81, 0"); srd(a, 4, 92, 93, 4 << 20)
    a.e("s_add_u32 s92, s80, 0x%x" % WS_H); a.e("s_addc_u32 s93, s81, 0"); srd(a, 8, 92, 93, WS_H_BYTES)
    a.e("s_lshl_b32 s89, s86, 7")
    a.e("s_add_u32 s92, s68, s89"); a.e("s_addc_u32 s93, s69, 0"); srd(a, 12, 92, 93, 1024 * 2048)
    a.e("s_add_u32 s92, s70, s89"); a.e("s_addc_u32 s93, s71, 0"); srd(a, 16, 92, 93, 3584 * 2048)
    a.e("s_add_u32 s92, s80, 0x%x" % WS_G); a.e("s_addc_u32 s93, s81, 0"); srd(a, 20, 92, 93, 8192)
    srd(a, 24, 72, 73, 2048 * 2048)
    a.e("s_lshl_b32 s90, s85, 2"); a.e("s_add_u32 s90, s90, s87")
    a.e("s_lshl_b32 s91, s88, 11")
    a.e("s_lshl_b32 s30, s90, 16"); a.e("s_add_u32 s30, s30, s91")
    a.e("s_mul_i32 s31, s90, %d" % (224 * 1024)); a.e("s_add_u32 s31, s31, s91")
    a.e("s_lshl_b32 s32, s82, 14")
    a.e("s_mov_b32 s33, s32")
    a.e("s_lshl_b32 s34, s87, 12"); a.e("s_add_u32 s34, s34, s91")
    a.e("s_lshl_b32 s35, s82, 10"); a.e("s_add_u32 s35, s35, 16384")
    a.e("v_and_b32 v3, 31, v1")
    a.e("s_lshl_b32 s89, s90, 5")
    a.e("v_add_u32 v3, s89, v3")
    a.e("v_lshlrev_b32 v4, 2, v3")
    gid = a.vm("buffer_load_dword v22, v4, s[20:23], 0 offen")
    a.e("v_lshlrev_b32 v21, 11, v3")
    a.e("v_lshrrev_b32 v4, 5, v1")
    a.e("v_lshl_add_u32 v21, v4, 4, v21")
    a.e("s_lshl_b32 s89, s86, 7"); a.e("s_lshl_b32 s91, s88, 6"); a.e("s_add_u32 s36, s89, s91")
    NST = 72
    sid = {}
    def dma(s):
        slot = s % NS
        isO = s < 16
        a.e("s_add_u32 m0, s34, %d" % (slot * SLOT))
        sreg = 30 if isO else 31
        a.e("s_nop 0")
        a.vm("buffer_load_dwordx4 v2, s[%d:%d], s%d offen lds" % ((4, 7, sreg) if isO else (8, 11, sreg)))
        a.vm("buffer_load_dwordx4 v2, s[%d:%d], s%d offen offset:1024 lds" % ((4, 7, sreg) if isO else (8, 11, sreg)))
        a.e("s_add_u32 s%d, s%d, 4096" % (sreg, sreg))
        a.e("s_add_u32 m0, s35, %d" % (slot * SLOT))
        wreg = 32 if isO else 33
        a.e("s_nop 0")
        sid[s] = a.vm("buffer_load_dwordx4 v10, s[%d:%d], s%d offen lds" % ((12, 15, wreg) if isO else (16, 19, wreg)))
        a.e("s_add_u32 s%d, s%d, %d" % (wreg, wreg, 64 * 2048))
    for s in range(NS - 1): dma(s)
    a.wait(vm=sid[0]); a.e("s_barrier")
    a.stamp(1)
    fr = {}
    def reads(s, kk):
        slot = s % NS; st = slot // 2; so = (slot % 2) * SLOT
        gi = s * 4 + kk; f = gi % 4
        isO = s < 16
        va = (15 if isO else 12) + st
        if isO: o0, o1 = so + kk * 2048, so + kk * 2048 + 1024
        else:   o0, o1 = so + kk * 2048, so + kk * 2048 + 512
        a.ds("ds_read_b128 v[%d:%d], v%d offset:%d" % (VB + 4 * f, VB + 4 * f + 3, 18 + st, so + kk * 1024))
        a.ds("ds_read_b64_tr_b16 v[%d:%d], v%d offset:%d" % (VA + 4 * f, VA + 4 * f + 1, va, o0))
        fr[gi] = a.ds("ds_read_b64_tr_b16 v[%d:%d], v%d offset:%d" % (VA + 4 * f + 2, VA + 4 * f + 3, va, o1))
    reads(0, 0); reads(0, 1)
    for s in range(NST):
        accr = ACA if s < 16 else ACB
        for kk in range(4):
            gi = s * 4 + kk; f = gi % 4
            if kk == 2 and s + 1 < NST:
                a.wait(vm=sid[s + 1]); a.e("s_barrier")
            g2 = gi + 2
            if g2 < NST * 4: reads(g2 // 4, g2 % 4)
            a.wait(lg=fr[gi])
            first = (s == 0 or s == 16) and kk == 0
            a.e("v_mfma_f32_32x32x16_bf16 v[%d:%d], v[%d:%d], v[%d:%d], %s" % (accr, accr + 15, VA + 4 * f, VA + 4 * f + 3, VB + 4 * f, VB + 4 * f + 3,
                                                                             "0" if first else "v[%d:%d]" % (accr, accr + 15)))
            if kk == 2 and s + NS - 1 < NST: dma(s + NS - 1)
    a.stamp(2)
    a.wait(vm=gid)
    a.e("v_sub_f32 v23, 1.0, v22")
    a.e("s_nop 15")
    for k in range(16): a.e("v_mul_f32 v%d, v%d, v22" % (ACA + k, ACA + k))
    for k in range(16): a.e("v_fmac_f32 v%d, v%d, v23" % (ACA + k, ACB + k))
    for k in range(8): a.e("v_cvt_pk_bf16_f32 v%d, v%d, v%d" % (VT + k, ACA + 2 * k, ACA + 2 * k + 1))
    a.e("s_nop 1")
    for pr in range(2):
        b = VT + 4 * pr
        a.e("v_permlane32_swap_b32 v%d, v%d" % (b, b + 2))
        a.e("v_permlane32_swap_b32 v%d, v%d" % (b + 1, b + 3))
    for pr in range(2):
        b = VT + 4 * pr
        a.vm("buffer_store_dwordx4 v[%d:%d], v21, s[24:27], s36 offen offset:%d" % (b, b + 3, 32 * pr))
    a.stamp(3)
    if prof: a.e("s_waitcnt vmcnt(0)")
    a.stamp(4)
    a.stamp_flush(80, 81, WS_PROF + (2 << 20), 82, 8) if prof else None
    a.label("%s_exit" % name)
    a.e("s_endpgm")
    return a.text()
```

```python
import sys
sys.path.insert(0, "work")
from build import build
import k1, k2, k3
prof = "prof" in sys.argv
ks = [dict(name="gm_k1_kernel", text=k1.gen_k1("gm_k1_kernel", prof=prof), grid=256, block=256, lds=159744, nfv=304, accum=256),
      dict(name="gm_k2_kernel", text=k2.gen_k2("gm_k2_kernel", prof=prof), grid=256, block=512, lds=90112, nfv=128, accum=128),
      dict(name="gm_k3_kernel", text=k3.gen_k3("gm_k3_kernel", prof=prof), grid=256, block=512, lds=k3.NS * k3.SLOT, nfv=128, accum=128)]
open(sys.argv[1], "w").write(build(ks))
```

```python
class Asm:
    def __init__(self):
        self.L = []
        self.vm_n = 0; self.vm_done = 0
        self.lg_n = 0; self.lg_done = 0
    def e(self, s):
        self.L.append("    " + s)
    def c(self, s):
        self.L.append("    ; " + s)
    def label(self, s):
        self.L.append(s + ":")
    def raw(self, s):
        self.L.append(s)
    def vm(self, s):
        self.e(s); i = self.vm_n; self.vm_n += 1; return i
    def ds(self, s):
        self.e(s); i = self.lg_n; self.lg_n += 1; return i
    def wait(self, vm=None, lg=None):
        parts = []
        if vm is not None and vm >= self.vm_done:
            n = min(self.vm_n - 1 - vm, 63)
            parts.append("vmcnt(%d)" % n); self.vm_done = self.vm_n - n
        if lg is not None and lg >= self.lg_done:
            n = min(self.lg_n - 1 - lg, 15)
            parts.append("lgkmcnt(%d)" % n); self.lg_done = self.lg_n - n
        if parts:
            self.e("s_waitcnt " + " ".join(parts))
    def wait_all(self, vm=True, lg=True):
        parts = []
        if vm: parts.append("vmcnt(0)"); self.vm_done = self.vm_n
        if lg: parts.append("lgkmcnt(0)"); self.lg_done = self.lg_n
        self.e("s_waitcnt " + " ".join(parts))
    cur_m0 = None
    def set_m0(self, sreg, imm):
        if self.cur_m0 != (sreg, imm):
            self.e("s_add_u32 m0, s%d, %d" % (sreg, imm))
            self.e("s_nop 0")
            self.cur_m0 = (sreg, imm)
    def reset_counts(self):
        self.cur_m0 = None
        self.vm_n = self.vm_done = self.lg_n = self.lg_done = 0
    prof = False
    PROF_V = 254
    def stamp(self, idx, real=False):
        if not self.prof: return
        self.e("s_memtime s[98:99]")
        self.e("s_memrealtime s[100:101]")
        self.e("s_waitcnt lgkmcnt(0)"); self.lg_done = self.lg_n
        self.e("v_writelane_b32 v%d, s98, %d" % (self.PROF_V, idx))
        self.e("v_writelane_b32 v%d, s100, %d" % (self.PROF_V, idx + 8))
    def stamp_flush(self, ws_lo, ws_hi, off, wave_sreg, nwaves):
        if not self.prof: return
        self.e("s_add_u32 s92, s%d, 0x%x" % (ws_lo, off)); self.e("s_addc_u32 s93, s%d, 0" % ws_hi)
        self.e("s_mov_b32 s94, 0x100000"); self.e("s_mov_b32 s95, 0x00020000")
        self.e("s_mul_i32 s96, s2, %d" % nwaves); self.e("s_add_u32 s96, s96, s%d" % wave_sreg); self.e("s_lshl_b32 s96, s96, 6")
        T = self.PROF_V - 1
        self.e("v_and_b32 v%d, 63, v0" % T); self.e("v_lshlrev_b32 v%d, 2, v%d" % (T, T))
        self.e("v_cmp_gt_u32 vcc, 64, v%d" % T); self.e("s_nop 1")
        self.e("s_and_saveexec_b64 s[96:97], vcc".replace("s[96:97]", "s[90:91]"))
        self.e("buffer_store_dword v%d, v%d, s[92:95], s96 offen" % (self.PROF_V, T))
        self.e("s_mov_b64 exec, s[90:91]")
    def text(self):
        return "\n".join(self.L) + "\n"

def vr(b, n=1):
    return "v%d" % b if n == 1 else "v[%d:%d]" % (b, b + n - 1)
def ar(b, n=1):
    return "a%d" % b if n == 1 else "a[%d:%d]" % (b, b + n - 1)
def sr(b, n=1):
    return "s%d" % b if n == 1 else "s[%d:%d]" % (b, b + n - 1)

def srd(a, d, lo, hi, nbytes):
    a.e("s_mov_b32 s%d, s%d" % (d, lo))
    a.e("s_mov_b32 s%d, s%d" % (d + 1, hi))
    a.e("s_mov_b32 s%d, 0x%x" % (d + 2, nbytes))
    a.e("s_mov_b32 s%d, 0x00020000" % (d + 3))

def add64(a, lo, imm_or_s):
    a.e("s_add_u32 s%d, s%d, %s" % (lo, lo, imm_or_s))
    a.e("s_addc_u32 s%d, s%d, 0" % (lo + 1, lo + 1))

def kernel_header(name):
    return (".globl %s\n.p2align 8\n.type %s,@function\n%s:\n" % (name, name, name))

def kernel_desc(name, nfv, accum, nsg=102):
    return (".amdhsa_kernel %s\n  .amdhsa_next_free_vgpr %d\n  .amdhsa_next_free_sgpr %d\n  .amdhsa_accum_offset %d\n"
            "  .amdhsa_group_segment_fixed_size 0\n  .amdhsa_kernarg_size 104\n  .amdhsa_user_sgpr_count 2\n"
            "  .amdhsa_user_sgpr_kernarg_segment_ptr 1\n  .amdhsa_system_sgpr_workgroup_id_x 1\n"
            ".end_amdhsa_kernel\n") % (name, nfv, nsg, accum)
```

```python
VQ = [8, 16]
VK = 24
VV = 32
VS = [40, 56]
VP = [72, 80]
VO = [88, 104]
VL = [120, 124]
VSEL = 128
VNM = [132, 148]
VT = 164
def M32(e, d, x, y, c):
    cs = "v[%d:%d]" % (c, c + 15) if isinstance(c, int) else c
    e("v_mfma_f32_32x32x16_bf16 v[%d:%d], v[%d:%d], v[%d:%d], %s" % (d, d + 15, x, x + 3, y, y + 3, cs))
def M16(e, d, x, y, c):
    e("v_mfma_f32_16x16x32_bf16 v[%d:%d], v[%d:%d], v[%d:%d], v[%d:%d]" % (d, d + 3, x, x + 3, y, y + 3, c, c + 3))

def phase(e, c, i, koff, vaddr="v2", variant=0, extra=None):
    o = 1 - c
    Sc, So = VS[c], VS[o]
    extra = list(extra or [])
    def E(k):
        e("v_exp_f32 v%d, v%d" % (Sc + k, Sc + k))
        if extra and k in (1, 4, 7, 10, 13):
            for x in extra.pop(0): e(x)
    def C(k): e("v_cvt_pk_bf16_f32 v%d, v%d, v%d" % (VP[c] + k, Sc + 2 * k, Sc + 2 * k + 1))
    def R(d, off): e("ds_read_b128 v[%d:%d], %s offset:%d" % (d, d + 3, vaddr, off))
    W = lambda n: e("s_waitcnt lgkmcnt(%d)" % n)
    if variant == 0:
        if c == 0:
            M32(e, So, VK, VQ[o], VNM[o])
            E(0); E(1); E(2)
            M32(e, VO[o], VV + 4, VP[o] + 4, VO[o])
            R(VV + 4, koff(i) + 3072)
            E(3); E(4); E(5)
            M32(e, So, VK + 4, VQ[o] + 4, So)
            R(VK, koff(i + 1)); R(VK + 4, koff(i + 1) + 1024)
            E(6); E(7); E(8)
            M16(e, VL[o], VSEL, VP[o] + 4, VL[o])
            C(0); C(1); E(9); C(2); C(3)
            E(10); E(11)
            W(3)
            M32(e, VO[c], VV, VP[c], VO[c])
            E(12); E(13); E(14)
            M16(e, VL[c], VSEL, VP[c], VL[c])
            E(15)
            C(4); C(5); C(6); C(7)
        else:
            W(0)
            M32(e, So, VK, VQ[o], VNM[o])
            E(0); E(1); E(2)
            M32(e, VO[o], VV + 4, VP[o] + 4, VO[o])
            E(3); E(4); E(5)
            M32(e, So, VK + 4, VQ[o] + 4, So)
            E(6); E(7); E(8)
            M16(e, VL[o], VSEL, VP[o] + 4, VL[o])
            C(0); C(1); E(9); C(2); C(3)
            E(10); E(11)
            M32(e, VO[c], VV, VP[c], VO[c])
            R(VV, koff(i + 1) + 2048)
            E(12); E(13); E(14)
            M16(e, VL[c], VSEL, VP[c], VL[c])
            E(15)
            C(4); C(5); C(6); C(7)
    elif variant == 1:
        M32(e, So, VK, VQ[o], VNM[o])
        E(0); E(1); E(2)
        M32(e, VO[o], VV + 4, VP[o] + 4, VO[o])
        E(3)
        if c == 0: R(VV + 4, koff(i) + 3072)
        E(4); E(5)
        M32(e, So, VK + 4, VQ[o] + 4, So)
        E(6)
        if c == 0: R(VK, koff(i + 1))
        E(7)
        if c == 0: R(VK + 4, koff(i + 1) + 1024)
        E(8)
        M16(e, VL[o], VSEL, VP[o] + 4, VL[o])
        C(0); C(1); E(9); C(2); C(3)
        E(10); E(11)
        if c == 0: W(3)
        E(12)
        M32(e, VO[c], VV, VP[c], VO[c])
        E(13)
        if c == 1: R(VV, koff(i + 1) + 2048)
        E(14); E(15)
        M16(e, VL[c], VSEL, VP[c], VL[c])
        C(4); C(5); C(6)
        if c == 0: W(0)
        C(7)
    elif variant == 2:
        M32(e, So, VK, VQ[o], VNM[o])
        E(0); E(1); E(2)
        M32(e, VO[o], VV + 4, VP[o] + 4, VO[o])
        E(3)
        if c == 0: R(VV + 4, koff(i) + 3072)
        E(4); C(0); C(1)
        M32(e, So, VK + 4, VQ[o] + 4, So)
        E(5)
        if c == 0: R(VK, koff(i + 1))
        E(6)
        if c == 0: R(VK + 4, koff(i + 1) + 1024)
        E(7)
        M16(e, VL[o], VSEL, VP[o] + 4, VL[o])
        E(8); C(2); E(9); C(3)
        E(10)
        if c == 0: W(3)
        E(11)
        M32(e, VO[c], VV, VP[c], VO[c])
        E(12)
        if c == 1: R(VV, koff(i + 1) + 2048)
        E(13); C(4); C(5)
        M16(e, VL[c], VSEL, VP[c], VL[c])
        E(14); E(15)
        if c == 0: W(0)
        C(6); C(7)
    elif variant == 3:
        M32(e, So, VK, VQ[o], VNM[o])
        E(0); E(1); E(2)
        M32(e, VO[o], VV + 4, VP[o] + 4, VO[o])
        E(3); C(0)
        if c == 0: R(VV + 4, koff(i) + 3072)
        E(4); E(5)
        M32(e, So, VK + 4, VQ[o] + 4, So)
        E(6); C(1)
        if c == 0: R(VK, koff(i + 1))
        E(7); C(2)
        if c == 0: R(VK + 4, koff(i + 1) + 1024)
        M16(e, VL[o], VSEL, VP[o] + 4, VL[o])
        E(8); C(3); E(9); E(10)
        if c == 0: W(3)
        M32(e, VO[c], VV, VP[c], VO[c])
        E(11); C(4); E(12)
        if c == 1: R(VV, koff(i + 1) + 2048)
        E(13)
        M16(e, VL[c], VSEL, VP[c], VL[c])
        E(14); C(5); E(15); C(6)
        if c == 0: W(0)
        C(7)
```

```python
from asmlib import *

WS_Q = 0
WS_H = 4 << 20
WS_H_BYTES = 64 * 224 * 1024
WS_KV = 20 << 20
WS_O = 21 << 20
WS_G = 25 << 20
WS_B = 26 << 20
WS_F = 27 << 20
WS_PROF = 48 << 20
QSCALE = 0.25503486322159136
LOG2E = 1.4426950408889634

import struct
def f2u(x): return struct.unpack("<I", struct.pack("<f", x))[0]

STORE_FLAGS = ''
NPRO = 22
MAXOPS = 9
WBASE = 98304
WSLOT = 10240
NWS = 6
ACC = 64
def acc(j, tb): return ACC + 16 * j + 4 * tb
ACCKV = 208
BIAS = 28
T0 = 216

def gen_variant(a, isQ, pfx):
    NG = 10 if isQ else 9
    def x_dma(s, q):
        slot = s % 3
        a.set_m0(38, slot * 8192 + (q // 4) * 4096)
        i = a.vm("buffer_load_dwordx4 v10, s[4:7], s%d offen offset:%d lds" % (28 + q, (q % 4) * 1024))
        if q == 7:
            add64(a, 4, 128)
        return i
    def w_dma(h, part):
        slot = h % NWS
        if part == 0:
            a.set_m0(39, slot * WSLOT)
            return a.vm("buffer_load_dwordx4 v11, s[8:11], s36 offen lds")
        if part == 1:
            a.set_m0(39, slot * WSLOT)
            i = a.vm("buffer_load_dwordx4 v11, s[8:11], s37 offen offset:1024 lds")
            a.e("s_add_u32 s8, s8, s41"); a.e("s_addc_u32 s9, s9, 0")
            return i
        if part == 2:
            a.set_m0(40, slot * WSLOT)
            i = a.vm("buffer_load_dword v12, s[12:15], 0 offen lds")
            add64(a, 12, 32 * 7168)
            return i
        if part == 3:
            a.set_m0(40, slot * WSLOT + 1024)
            i = a.vm("buffer_load_dword v13, s[16:19], 0 offen lds")
            add64(a, 16, 32 * 64)
            return i
    nW = 4 if isQ else 3
    wid = {}
    xid = {}
    ops = []
    for h in range(32):
        for p in range(nW):
            ops.append(dict(dl=h - 1, early=(h - 5, 5) if h >= NWS else (-9, 0), kind="w", i=h, p=p))
    for st in range(16):
        for q in range(8):
            ops.append(dict(dl=2 * st - 1, early=(2 * (st - 3) + 1, 1) if st >= 3 else (-9, 0), kind="x", i=st, p=q))
    ops.sort(key=lambda o: (o["dl"], 0 if o["kind"] == "w" else 1, o["i"], o["p"]))
    def issue(o):
        if o["kind"] == "w": wid[o["i"]] = w_dma(o["i"], o["p"])
        else: xid[o["i"]] = x_dma(o["i"], o["p"])
    def next_op(now):
        seen = set()
        for k, o in enumerate(ops):
            key = o["kind"]
            if key in seen: continue
            if o["early"] <= now:
                return ops.pop(k)
            seen.add(key)
        return None
    bias_ids = []
    jl = [8] if isQ else list(range(9))
    for j in jl:
        if j < 8:
            i = a.vm("buffer_load_dwordx2 v[%d:%d], v2, s[24:27], s43 offen offset:%d" % (BIAS + 4 * j, BIAS + 4 * j + 1, 32 * j))
        else:
            i = a.vm("buffer_load_dwordx2 v[%d:%d], v2, s[24:27], s42 offen" % (BIAS + 4 * j, BIAS + 4 * j + 1))
        bias_ids.append(i)
    first = [o for o in ops if o["dl"] <= -1]
    first.sort(key=lambda o: (0 if (o["kind"] == "w") else 1, o["p"]))
    for o in first:
        ops.remove(o); issue(o)
    for k in range(NPRO - len(first)):
        issue(next_op((-1, 0)))
    late_setup(a, isQ)
    a.wait(vm=bias_ids[-1])
    for j in jl:
        b = BIAS + 4 * j
        a.e("v_and_b32 v%d, 0xffff0000, v%d" % (b + 3, b + 1))
        a.e("v_lshlrev_b32 v%d, 16, v%d" % (b + 2, b + 1))
        a.e("v_and_b32 v%d, 0xffff0000, v%d" % (b + 1, b))
        a.e("v_lshlrev_b32 v%d, 16, v%d" % (b, b))
    a.wait(vm=max(wid[0], xid[0]))
    a.e("s_barrier")
    a.stamp(1)
    wfrag = {}
    def w_read(h, G):
        gi = h * NG + G
        f = gi % 4
        slot = h % NWS
        if G < 8:
            va, off = 16 + G, slot * WSLOT
            o2 = off + 1024
        elif G == 8:
            va, off = 24, slot * WSLOT
            o2 = off + 256
        else:
            va, off = 24, slot * WSLOT + 1024
            o2 = off + 256
        return [("ds_read_b64_tr_b16 a[%d:%d], v%d offset:%d" % (4 * f, 4 * f + 1, va, off), gi, 0),
                ("ds_read_b64_tr_b16 a[%d:%d], v%d offset:%d" % (4 * f + 2, 4 * f + 3, va, o2), gi, 1)]
    xfrag = {}
    def x_read(h, tb):
        s, kk = h // 2, h % 2
        base = 16 + 16 * (h % 2) + 4 * tb
        i = a.ds("ds_read_b128 a[%d:%d], v%d offset:%d" % (base, base + 3, 14 + kk, (s % 3) * 8192 + tb * 2048))
        xfrag[(h, tb)] = i
    def do_wread(item):
        txt, gi, half = item
        i = a.ds(txt)
        if half == 1: wfrag[gi] = i
    for tb in range(4): x_read(0, tb)
    for G in range(2):
        for it in w_read(0, G): do_wread(it)
    for h in range(32):
        s, kk = h // 2, h % 2
        budget = MAXOPS
        for G in range(NG):
            gi = h * NG + G
            f = gi % 4
            G2 = G + 2; h2 = h
            if G2 >= NG: G2 -= NG; h2 = h + 1
            reads = w_read(h2, G2) if h2 <= 31 else []
            need = wfrag[gi]
            if G == 0: need = max(need, xfrag[(h, 3)])
            a.wait(lg=need)
            ntb = 2 if G == 9 else 4
            for tb in range(ntb):
                d = acc(G, tb) if G < 9 else ACCKV + 4 * tb
                xb = 16 + 16 * (h % 2) + 4 * tb
                if h == 0:
                    if G == 9 or (isQ and G < 8): csrc = "0"
                    else: csrc = "v[%d:%d]" % (BIAS + 4 * G, BIAS + 4 * G + 3)
                else:
                    csrc = "v[%d:%d]" % (d, d + 3)
                a.e("v_mfma_f32_16x16x32_bf16 v[%d:%d], a[%d:%d], a[%d:%d], %s" % (d, d + 3, 4 * f, 4 * f + 3, xb, xb + 3, csrc))
                if tb == 0 and reads: do_wread(reads[0])
                if tb == 1 and reads: do_wread(reads[1])
                if tb == min(2, ntb - 1) and budget > 0:
                    o = next_op((h, G))
                    if o is not None:
                        issue(o); budget -= 1
                if tb == ntb - 1 and G >= 5 and G <= 8 and h + 1 <= 31:
                    x_read(h + 1, G - 5)
            if G == 4 and h + 1 <= 31:
                while any(o["dl"] <= h for o in ops):
                    o = next_op((h, G)); assert o is not None and o["dl"] <= h + 1, (h, o); issue(o)
                need = wid[h + 1]
                if kk == 1: need = max(need, xid[s + 1])
                a.wait(vm=need)
                a.e("s_barrier")
    assert not ops
    a.stamp(2)
    a.e("s_load_dwordx2 s[92:93], s[0:1], 64")
    a.e("s_lshl_b32 s91, s2, 2"); a.e("s_add_u32 s91, s91, s82"); a.e("s_mul_i32 s91, s91, 7168")
    a.e("v_lshlrev_b32 v3, 7, v1")
    a.e("s_waitcnt lgkmcnt(0)")
    a.e("s_mov_b32 s68, s92"); a.e("s_mov_b32 s69, s93"); a.e("s_mov_b32 s70, 0x%x" % (3584 * 2048)); a.e("s_mov_b32 s71, 0x00020000")
    a.e("v_cmp_gt_u32 vcc, 56, v1")
    a.e("s_and_saveexec_b64 s[92:93], vcc")
    a.vm("buffer_load_dword v4, v3, s[68:71], s91 offen")
    a.e("s_mov_b64 exec, s[92:93]")
    a.e("s_load_dwordx2 s[92:93], s[0:1], 32")
    a.e("s_lshl_b32 s91, s2, 2"); a.e("s_add_u32 s91, s91, s82"); a.e("s_lshl_b32 s91, s91, 11")
    a.e("s_waitcnt lgkmcnt(0)")
    a.e("s_mov_b32 s72, s92"); a.e("s_mov_b32 s73, s93"); a.e("s_mov_b32 s74, 0x%x" % (1024 * 2048)); a.e("s_mov_b32 s75, 0x00020000")
    a.e("v_cmp_gt_u32 vcc, 16, v1")
    a.e("s_and_saveexec_b64 s[92:93], vcc")
    a.vm("buffer_load_dword v5, v3, s[72:75], s91 offen")
    a.e("s_mov_b64 exec, s[92:93]")
    a.e("s_nop 7")
    a.e("s_nop 1")
    def mish_pair(src, t0, t1, t2):
        pass
    def pack_store(j, pair, dst_srd, soff_reg, imm, kind):
        A = acc(j, 2 * pair); B = acc(j, 2 * pair + 1)
        t = T0 + (16 if (j * 2 + pair) % 2 else 0)
        q = t + 12
        if kind == "H":
            for k in range(4):
                a.e("v_pk_mul_f32 v[%d:%d], v[%d:%d], s[44:45]" % (t + 2 * k, t + 2 * k + 1, A + 2 * k, A + 2 * k + 1))
            for k in range(8):
                a.e("v_exp_f32 v%d, v%d" % (t + k, t + k))
            for k in range(4):
                u = (t + 8 + 2 * k)
                a.e("v_pk_add_f32 v[%d:%d], v[%d:%d], 2.0 op_sel_hi:[1,0]" % (u, u + 1, t + 2 * k, t + 2 * k + 1))
            for k in range(4):
                u = (t + 8 + 2 * k)
                a.e("v_pk_fma_f32 v[%d:%d], v[%d:%d], v[%d:%d], 2.0 op_sel_hi:[1,1,0]" % (t + 2 * k, t + 2 * k + 1, t + 2 * k, t + 2 * k + 1, u, u + 1))
            for k in range(8):
                a.e("v_rcp_f32 v%d, v%d" % (t + k, t + k))
            for k in range(4):
                a.e("v_pk_fma_f32 v[%d:%d], v[%d:%d], s[46:47], 1.0 op_sel_hi:[1,1,0]" % (t + 2 * k, t + 2 * k + 1, t + 2 * k, t + 2 * k + 1))
            for k in range(4):
                a.e("v_pk_mul_f32 v[%d:%d], v[%d:%d], v[%d:%d]" % (t + 2 * k, t + 2 * k + 1, t + 2 * k, t + 2 * k + 1, A + 2 * k, A + 2 * k + 1))
        else:
            for k in range(4):
                a.e("v_pk_mul_f32 v[%d:%d], v[%d:%d], s[48:49]" % (t + 2 * k, t + 2 * k + 1, A + 2 * k, A + 2 * k + 1))
        a.e("v_cvt_pk_bf16_f32 v%d, v%d, v%d" % (q, t, t + 1))
        a.e("v_cvt_pk_bf16_f32 v%d, v%d, v%d" % (q + 1, t + 2, t + 3))
        a.e("v_cvt_pk_bf16_f32 v%d, v%d, v%d" % (q + 2, t + 4, t + 5))
        a.e("v_cvt_pk_bf16_f32 v%d, v%d, v%d" % (q + 3, t + 6, t + 7))
        a.e("s_nop 1")
        a.e("v_permlane16_swap_b32 v%d, v%d" % (q, q + 2))
        a.e("v_permlane16_swap_b32 v%d, v%d" % (q + 1, q + 3))
        a.vm("buffer_store_dwordx4 v[%d:%d], v25, s[%d:%d], s%d offen offset:%d%s" % (q, q + 3, dst_srd, dst_srd + 3, soff_reg, imm, STORE_FLAGS))
    for j in range(8):
        for pair in range(2):
            pack_store(j, pair, 20, (50 if j < 4 else 54) + pair, (j % 4) * 1024, "Q" if isQ else "H")
    for pair in range(2):
        pack_store(8, pair, 56, 52 + pair, 0, "H")
    if isQ:
        a.e("s_cmp_ge_u32 s60, 2")
        a.e("s_cbranch_scc1 %s_V" % pfx)
        for tb in range(2):
            d = ACCKV + 4 * tb
            a.e("v_cvt_pk_bf16_f32 v%d, v%d, v%d" % (T0 + 2 * tb, d, d + 1))
            a.e("v_cvt_pk_bf16_f32 v%d, v%d, v%d" % (T0 + 2 * tb + 1, d + 2, d + 3))
            a.vm("buffer_store_dwordx2 v[%d:%d], v26, s[64:67], s61 offen offset:%d" % (T0 + 2 * tb, T0 + 2 * tb + 1, tb * 256))
        a.e("s_branch %s_done" % pfx)
        a.label("%s_V" % pfx)
        for tb in range(2):
            d = ACCKV + 4 * tb
            a.e("v_cvt_pk_bf16_f32 v%d, v%d, v%d" % (T0 + 2 * tb, d, d + 1))
            a.e("v_cvt_pk_bf16_f32 v%d, v%d, v%d" % (T0 + 2 * tb + 1, d + 2, d + 3))
            for r in range(4):
                op = "buffer_store_short" if r % 2 == 0 else "buffer_store_short_d16_hi"
                a.vm("%s v%d, v27, s[64:67], s61 offen offset:%d" % (op, T0 + 2 * tb + r // 2, tb * 1024 + r * 16))
        a.label("%s_done" % pfx)
    a.stamp(3)
    a.e("s_waitcnt vmcnt(0)") if a.prof else None
    a.stamp(4)
    a.stamp_flush(80, 81, WS_PROF, 82, 4)
    a.e("s_endpgm")

def late_setup(a, isQ):
    a.e("s_mov_b32 s44, 0x%x" % f2u(LOG2E)); a.e("s_mov_b32 s45, s44")
    a.e("s_mov_b32 s46, 0x%x" % f2u(-2.0)); a.e("s_mov_b32 s47, s46")
    a.e("s_mov_b32 s48, 0x%x" % f2u(QSCALE)); a.e("s_mov_b32 s49, s48")
    a.e("s_lshl_b32 s94, s89, 3")
    a.e("s_lshl_b32 s95, s82, 1")
    a.e("s_add_u32 s94, s94, s95")
    a.e("s_add_u32 s95, s94, s90")
    a.e("s_xor_b32 s96, s90, 1")
    a.e("s_add_u32 s96, s94, s96")
    a.e("s_add_u32 s92, s80, 0x%x" % WS_H); a.e("s_addc_u32 s93, s81, 0")
    srd(a, 56, 92, 93, WS_H_BYTES)
    for pair, sT in ((0, 95), (1, 96)):
        a.e("s_mul_i32 s91, s%d, 224" % sT)
        a.e("s_add_u32 s91, s91, s88")
        a.e("s_add_u32 s91, s91, 192")
        a.e("s_lshl_b32 s%d, s91, 10" % (52 + pair))
    a.e("v_lshlrev_b32 v25, 4, v1")
    if isQ:
        a.e("s_cmp_lg_u32 s2, 0")
        a.e("s_cbranch_scc1 %s_noclr" % a.kname)
        a.e("s_add_u32 s92, s80, 0x%x" % WS_F); a.e("s_addc_u32 s93, s81, 0")
        srd(a, 64, 92, 93, 4096)
        a.e("s_lshl_b32 s91, s82, 10")
        a.e("v_mov_b32 v216, 0"); a.e("v_mov_b32 v217, 0"); a.e("v_mov_b32 v218, 0"); a.e("v_mov_b32 v219, 0")
        a.e("buffer_store_dwordx4 v[216:219], v25, s[64:67], s91 offen")
        a.label("%s_noclr" % a.kname)
    if isQ:
        a.e("v_lshrrev_b32 v3, 1, v6")
        a.e("v_lshl_add_u32 v3, v3, 5, v5")
        a.e("v_lshlrev_b32 v3, 4, v3")
        a.e("v_and_b32 v4, 1, v6")
        a.e("v_lshl_add_u32 v26, v4, 3, v3")
        a.e("v_bfe_u32 v3, v5, 2, 1")
        a.e("v_lshlrev_b32 v3, 5, v3")
        a.e("v_lshl_add_u32 v3, v6, 2, v3")
        a.e("v_lshlrev_b32 v3, 4, v3")
        a.e("v_and_b32 v4, 3, v5")
        a.e("v_lshrrev_b32 v9, 3, v5")
        a.e("v_lshl_add_u32 v4, v9, 2, v4")
        a.e("v_lshl_add_u32 v27, v4, 1, v3")
        a.e("s_add_u32 s92, s80, 0x%x" % WS_KV); a.e("s_addc_u32 s93, s81, 0")
        srd(a, 64, 92, 93, 64 * 4096)
        a.e("s_lshl_b32 s61, s95, 12")
        a.e("s_lshl_b32 s91, s60, 10")
        a.e("s_sub_u32 s92, s60, 2")
        a.e("s_lshl_b32 s92, s92, 8")
        a.e("s_add_u32 s92, s92, 2048")
        a.e("s_cmp_lt_u32 s60, 2")
        a.e("s_cselect_b32 s91, s91, s92")
        a.e("s_add_u32 s61, s61, s91")
        a.e("s_add_u32 s92, s80, 0x%x" % WS_Q); a.e("s_addc_u32 s93, s81, 0")
        srd(a, 20, 92, 93, 4 << 20)
        for pair, sT in ((0, 95), (1, 96)):
            a.e("s_lshl_b32 s91, s%d, 6" % sT)
            a.e("s_lshl_b32 s92, s88, 3")
            a.e("s_add_u32 s91, s91, s92")
            a.e("s_lshl_b32 s%d, s91, 10" % (50 + pair))
            a.e("s_add_u32 s%d, s%d, 4096" % (54 + pair, 50 + pair))
    else:
        a.e("s_add_u32 s92, s80, 0x%x" % WS_H); a.e("s_addc_u32 s93, s81, 0")
        srd(a, 20, 92, 93, WS_H_BYTES)
        for pair, sT in ((0, 95), (1, 96)):
            a.e("s_mul_i32 s91, s%d, 224" % sT)
            a.e("s_lshl_b32 s92, s97, 3")
            a.e("s_add_u32 s91, s91, s92")
            a.e("s_lshl_b32 s%d, s91, 10" % (50 + pair))
            a.e("s_add_u32 s%d, s%d, 4096" % (54 + pair, 50 + pair))
    a.e("v_and_b32 v3, 6, v5")
    a.e("v_xor_b32 v3, v3, v6")
    a.e("v_lshlrev_b32 v4, 4, v3")
    a.e("v_lshl_add_u32 v4, v5, 7, v4")
    a.e("v_add_u32 v14, s38, v4")
    a.e("v_xor_b32 v15, 64, v14")
    a.e("v_and_b32 v3, 1, v6")
    a.e("v_lshl_or_b32 v3, v3, 2, v7")
    a.e("v_lshl_add_u32 v4, v6, 3, v7")
    a.e("v_lshlrev_b32 v4, 8, v4")
    a.e("v_lshl_add_u32 v4, v8, 3, v4")
    a.e("v_add_u32 v4, %d, v4" % WBASE)
    for j in range(8):
        a.e("v_xor_b32 v9, %d, v3" % j)
        a.e("v_lshl_add_u32 v%d, v9, 5, v4" % (16 + j))
    a.e("v_lshrrev_b32 v9, 1, v6")
    a.e("v_lshl_or_b32 v9, v9, 4, v3")
    a.e("v_lshlrev_b32 v9, 5, v9")
    a.e("v_lshl_add_u32 v9, v8, 3, v9")
    a.e("v_add_u32 v24, %d, v9" % (WBASE + 8192))

def gen_k1(name, prof=False):
    a = Asm()
    a.prof = prof
    a.kname = name
    a.raw(kernel_header(name))
    a.e("s_cmp_ge_u32 s2, 256")
    a.e("s_cbranch_scc1 %s_exit" % name)
    if prof: a.e("v_mov_b32 v254, 0")
    a.stamp(0)
    a.e("s_load_dwordx4 s[68:71], s[0:1], 0")
    a.e("s_load_dwordx4 s[76:79], s[0:1], 48")
    a.e("s_load_dwordx4 s[72:75], s[0:1], 16")
    a.e("s_load_dwordx2 s[80:81], s[0:1], 96")
    a.e("v_and_b32 v1, 63, v0")
    a.e("v_lshrrev_b32 v3, 6, v0")
    a.e("s_and_b32 s83, s2, 7")
    a.e("v_readfirstlane_b32 s82, v3")
    a.e("s_lshr_b32 s84, s2, 3")
    a.e("s_and_b32 s85, s83, 1")
    a.e("s_lshr_b32 s86, s83, 1")
    a.e("s_and_b32 s87, s84, 7")
    a.e("s_lshl_b32 s88, s86, 3")
    a.e("s_add_u32 s88, s88, s87")
    a.e("s_lshr_b32 s87, s84, 3")
    a.e("s_lshl_b32 s89, s85, 2")
    a.e("s_add_u32 s89, s89, s87")
    a.e("s_lshr_b32 s90, s88, 2")
    a.e("s_cmp_lt_u32 s88, 8")
    a.e("s_cselect_b32 s90, s90, 0")
    a.e("s_and_b32 s60, s88, 3")
    a.e("v_lshrrev_b32 v3, 3, v1")
    a.e("v_and_b32 v4, 6, v3")
    a.e("v_and_b32 v5, 7, v1")
    a.e("v_xor_b32 v4, v4, v5")
    a.e("v_lshlrev_b32 v4, 4, v4")
    a.e("v_lshl_add_u32 v10, v3, 11, v4")
    a.e("v_and_b32 v5, 15, v1")
    a.e("v_lshrrev_b32 v6, 4, v1")
    a.e("v_bfe_u32 v7, v1, 2, 2")
    a.e("v_and_b32 v8, 3, v1")
    a.e("v_lshlrev_b32 v2, 3, v6")
    a.e("v_lshrrev_b32 v3, 3, v1")
    a.e("s_lshl_b32 s91, s82, 3")
    a.e("v_add_u32 v3, s91, v3")
    a.e("v_and_b32 v4, 0x13, v3")
    a.e("v_bfe_u32 v9, v3, 2, 1")
    a.e("v_lshl_or_b32 v4, v9, 3, v4")
    a.e("v_bfe_u32 v9, v3, 3, 1")
    a.e("v_lshl_or_b32 v4, v9, 2, v4")
    a.e("v_and_b32 v9, 7, v1")
    a.e("v_lshlrev_b32 v9, 2, v9")
    a.e("v_lshl_add_u32 v13, v4, 6, v9")
    a.e("s_movk_i32 s91, 7168")
    a.e("v_mul_lo_u32 v4, v4, s91")
    a.e("v_add_u32 v12, v4, v9")
    a.e("s_lshl_b32 s91, s89, 8")
    a.e("s_lshl_b32 s92, s82, 6")
    a.e("s_add_u32 s91, s91, s92")
    a.e("s_lshl_b32 s91, s91, 11")
    a.e("s_lshl_b32 s92, s90, 16")
    for q in range(8):
        tb = q // 2
        a.e("s_add_u32 s93, s92, %d" % (tb * 32768))
        a.e("s_and_b32 s93, s93, 0x1ffff")
        a.e("s_add_u32 s93, s93, s91")
        a.e("s_add_u32 s%d, s93, %d" % (28 + q, 8 * (q & 1) * 2048 - (q & 3) * 1024) if (8 * (q & 1) * 2048 - (q & 3) * 1024) >= 0
            else "s_sub_u32 s%d, s93, %d" % (28 + q, (q & 3) * 1024 - 8 * (q & 1) * 2048))
    a.e("s_mul_i32 s38, s82, 24576")
    a.e("s_lshl_b32 s39, s82, 11")
    a.e("s_add_u32 s39, s39, %d" % WBASE)
    a.e("s_lshl_b32 s40, s82, 8")
    a.e("s_add_u32 s40, s40, %d" % (WBASE + 8192))
    a.e("s_lshl_b32 s42, s88, 5")
    a.e("s_add_u32 s42, s42, 6144")
    def wvaddr(RS):
        a.e("s_and_b32 s91, s82, 1")
        a.e("s_lshl_b32 s91, s91, 2")
        a.e("v_or_b32 v3, s91, v6")
        a.e("v_bfe_u32 v4, v1, 1, 3")
        a.e("v_xor_b32 v3, v3, v4")
        a.e("v_lshlrev_b32 v3, 5, v3")
        a.e("v_and_b32 v4, 1, v1")
        a.e("v_lshl_add_u32 v3, v4, 4, v3")
        a.e("s_movk_i32 s91, %d" % RS)
        a.e("v_mul_lo_u32 v4, v6, s91")
        a.e("v_add_u32 v11, v3, v4")
    def common_srds():
        srd(a, 4, 68, 69, 2048 * 2048)
        a.e("s_add_u32 s92, s76, s42"); a.e("s_addc_u32 s93, s77, 0")
        srd(a, 12, 92, 93, 1024 * 7168)
        srd(a, 24, 78, 79, 3584 * 2)
    a.e("s_cmp_lt_u32 s88, 8")
    a.e("s_cbranch_scc0 %s_H" % name)
    wvaddr(2048)
    a.e("s_mov_b32 s41, %d" % (32 * 2048))
    a.e("s_lshl_b32 s36, s82, 14")
    a.e("s_add_u32 s37, s36, %d" % (4 * 2048 - 1024))
    a.e("s_lshl_b32 s94, s88, 8")
    a.e("s_and_b32 s95, s60, 1")
    a.e("s_lshl_b32 s95, s95, 5")
    a.e("s_mov_b32 s43, 0")
    a.e("s_waitcnt lgkmcnt(0)")
    a.e("s_add_u32 s92, s70, s94"); a.e("s_addc_u32 s93, s71, 0")
    srd(a, 8, 92, 93, 1024 * 2048)
    a.e("s_cmp_lt_u32 s60, 2")
    a.e("s_cselect_b32 s92, s72, s74")
    a.e("s_cselect_b32 s93, s73, s75")
    a.e("s_add_u32 s92, s92, s95"); a.e("s_addc_u32 s93, s93, 0")
    srd(a, 16, 92, 93, 1024 * 64)
    common_srds()
    gen_variant(a, True, name + "_q")
    a.label("%s_H" % name)
    a.reset_counts()
    wvaddr(7168)
    a.e("s_sub_u32 s97, s88, 8")
    a.e("s_lshl_b32 s43, s97, 8")
    a.e("s_mov_b32 s41, %d" % (32 * 7168))
    a.e("s_mul_i32 s36, s82, %d" % (8 * 7168))
    a.e("s_add_u32 s37, s36, %d" % (4 * 7168 - 1024))
    a.e("s_waitcnt lgkmcnt(0)")
    a.e("s_add_u32 s92, s76, s43"); a.e("s_addc_u32 s93, s77, 0")
    srd(a, 8, 92, 93, 1024 * 7168)
    common_srds()
    gen_variant(a, False, name + "_h")
    a.label("%s_exit" % name)
    a.e("s_endpgm")
    return a.text()

if __name__ == "__main__":
    print(gen_k1("k1_kernel"))
```

```python
from asmlib import *
from k1 import WS_F, WS_Q, WS_KV, WS_O, WS_G, WS_H, WS_H_BYTES, WS_B, WS_PROF, f2u, LOG2E
import attn64 as A
from attn64 import VQ, VK, VV, VS, VP, VO, VL, VSEL, VNM, VT
FLAG = 65536
GATE = 180
def M32(a, d, x, y, c): A.M32(a.e, d, x, y, c)
def M16(a, d, x, y, c): A.M16(a.e, d, x, y, c)

def koff(t): return ((t // 4) % 4) * 16384 + (t % 4) * 4096

def kv_dma(a, slot):
    a.e("s_add_u32 m0, s30, %d" % (slot * 16384))
    a.e("s_add_u32 s31, s31, 16384")
    for q in range(4):
        a.e("buffer_load_dwordx4 v2, s[8:11], s31 offen offset:%d lds" % (q * 1024))

def rowmax(a, c):
    S = VS[c]
    a.e("v_max3_f32 v4, v%d, v%d, v%d" % (S, S + 1, S + 2))
    for k in range(3, 15, 2): a.e("v_max3_f32 v4, v4, v%d, v%d" % (S + k, S + k + 1))
    a.e("v_max_f32 v4, v4, v%d" % (S + 15))

def set_negm(a, c, src):
    a.e("v_mov_b32 v5, v%d" % src)
    a.e("v_mov_b32 v6, v%d" % src)
    a.e("s_nop 1")
    a.e("v_permlane32_swap_b32 v5, v6")
    a.e("s_nop 1")
    a.e("v_max_f32 v5, v5, v6")
    a.e("v_sub_f32 v5, 0, v5")
    for k in range(16): a.e("v_mov_b32 v%d, v5" % (VNM[c] + k))

def gen_attn(a, name, prio):
    a.e("s_lshr_b32 s83, s2, 2")
    a.e("s_and_b32 s84, s2, 3")
    a.e("s_lshl_b32 s85, s84, 3")
    a.e("s_lshl_b32 s86, s82, 1")
    a.e("s_add_u32 s85, s85, s86")
    a.e("s_lshl_b32 s86, s83, 5"); a.e("s_add_u32 s86, s86, s85"); a.e("s_lshl_b32 s86, s86, 11")
    a.e("s_lshl_b32 s30, s82, 12")
    a.e("s_mov_b32 s88, 0")
    a.e("s_waitcnt lgkmcnt(0)")
    a.e("s_add_u32 s92, s80, 0x%x" % WS_KV); a.e("s_addc_u32 s93, s81, 0"); srd(a, 8, 92, 93, 64 * 4096)
    a.e("s_add_u32 s92, s80, 0x%x" % WS_Q); a.e("s_addc_u32 s93, s81, 0"); srd(a, 4, 92, 93, 4 << 20)
    for c in range(2):
        for s in range(2):
            a.e("buffer_load_dwordx4 v[%d:%d], v2, s[4:7], s86 offen offset:%d" % (VQ[c] + 4 * s, VQ[c] + 4 * s + 3, c * 2048 + s * 1024))
    a.label("%s_pass" % name)
    a.e("s_sub_u32 s31, s30, 16384")
    kv_dma(a, 0)
    if prio[0]: a.e("s_setprio %d" % prio[0])
    a.e("v_mov_b32 v4, 0x%x" % FLAG); a.e("v_mov_b32 v5, 0")
    a.e("ds_write_b32 v4, v5")
    a.e("s_add_u32 s92, s80, 0x%x" % WS_O); a.e("s_addc_u32 s93, s81, 0"); srd(a, 12, 92, 93, 4 << 20)
    a.e("v_bfe_u32 v4, v1, 2, 1"); a.e("v_bfe_u32 v5, v1, 4, 1")
    a.e("v_cmp_eq_u32 vcc, v4, v5")
    a.e("v_mov_b32 v6, 0x3f803f80")
    a.e("v_mov_b32 v7, 0")
    for k in range(4): a.e("v_cndmask_b32 v%d, v7, v6, vcc" % (VSEL + k))
    for c in range(2):
        for k in range(16): a.e("v_mov_b32 v%d, 0" % (VO[c] + k))
        for k in range(4): a.e("v_mov_b32 v%d, 0" % (VL[c] + k))
    for k in range(4): a.e("v_mov_b32 v%d, 0" % (VP[1] + 4 + k))
    for k in range(4): a.e("v_mov_b32 v%d, 0" % (VV + 4 + k))
    a.e("s_waitcnt vmcnt(0) lgkmcnt(0)")
    a.e("s_barrier")
    a.stamp(1)
    a.e("ds_read_b128 v[%d:%d], v2 offset:0" % (VK, VK + 3))
    a.e("ds_read_b128 v[%d:%d], v2 offset:1024" % (VK + 4, VK + 7))
    kv_dma(a, 1); kv_dma(a, 2)
    a.e("s_cmp_lg_u32 s88, 0")
    a.e("s_cbranch_scc1 %s_nogate" % name)
    srd(a, 20, 68, 69, 2048 * 2048)
    srd(a, 24, 70, 71, 2048)
    a.e("s_lshl_b32 s87, s2, 3"); a.e("s_lshl_b32 s89, s82, 1"); a.e("s_add_u32 s87, s87, s89")
    a.e("s_lshl_b32 s89, s87, 11")
    a.e("v_lshlrev_b32 v3, 5, v1")
    G = GATE
    a.e("buffer_load_dwordx4 v[%d:%d], v3, s[24:27], 0 offen" % (G, G + 3))
    a.e("buffer_load_dwordx4 v[%d:%d], v3, s[24:27], 0 offen offset:16" % (G + 4, G + 7))
    a.e("buffer_load_dwordx4 v[%d:%d], v3, s[20:23], s89 offen" % (G + 8, G + 11))
    a.e("buffer_load_dwordx4 v[%d:%d], v3, s[20:23], s89 offen offset:16" % (G + 12, G + 15))
    a.e("buffer_load_dwordx4 v[%d:%d], v3, s[20:23], s89 offen offset:2048" % (G + 16, G + 19))
    a.e("buffer_load_dwordx4 v[%d:%d], v3, s[20:23], s89 offen offset:2064" % (G + 20, G + 23))
    a.label("%s_nogate" % name)
    a.e("s_cmp_lg_u32 s88, 0")
    a.e("s_cbranch_scc1 %s_havemax" % name)
    a.e("s_waitcnt lgkmcnt(0)")
    for c in range(2):
        M32(a, VS[c], VK, VQ[c], "0")
        M32(a, VS[c], VK + 4, VQ[c] + 4, VS[c])
    a.e("s_nop 15")
    for c in range(2):
        rowmax(a, c); set_negm(a, c, 4)
    a.label("%s_havemax" % name)
    a.e("s_waitcnt lgkmcnt(0)")
    a.e("s_nop 0")
    M32(a, VS[0], VK, VQ[0], VNM[0])
    M32(a, VS[0], VK + 4, VQ[0] + 4, VS[0])
    a.e("ds_read_b128 v[%d:%d], v2 offset:%d" % (VV, VV + 3, 2048))
    a.e("s_nop 15")
    a.e("s_mov_b32 s33, 4")
    a.label("%s_loop" % name)
    for i in range(16):
        ex = None
        if i % 4 == 3:
            a.e("s_waitcnt vmcnt(4)")
            a.e("s_barrier")
            slot = (i // 4 + 3) % 4
            ex = [["s_add_u32 m0, s30, %d" % (slot * 16384), "s_add_u32 s31, s31, 16384", "buffer_load_dwordx4 v2, s[8:11], s31 offen lds"]]
            ex += [["buffer_load_dwordx4 v2, s[8:11], s31 offen offset:%d lds" % (q * 1024)] for q in range(1, 4)]
        A.phase(a.e, 0, i, koff, extra=ex)
        A.phase(a.e, 1, i, koff)
    a.e("s_sub_u32 s33, s33, 1")
    a.e("s_cmp_lg_u32 s33, 0")
    a.e("s_cbranch_scc1 %s_loop" % name)
    a.e("s_waitcnt vmcnt(0) lgkmcnt(0)")
    M32(a, VO[1], VV + 4, VP[1] + 4, VO[1])
    M16(a, VL[1], VSEL, VP[1] + 4, VL[1])
    a.stamp(2)
    a.e("s_nop 15")
    a.e("v_mov_b32 v5, 0x%x" % f2u(2.0 ** 30))
    a.e("v_mov_b32 v7, 0")
    a.e("s_mov_b64 s[34:35], 0")
    for c in range(2):
        a.e("v_rcp_f32 v4, v%d" % VL[c])
        a.e("v_cmp_nle_f32 vcc, v%d, v5" % VL[c])
        a.e("s_or_b64 s[34:35], s[34:35], vcc")
        for k in range(16): a.e("v_mul_f32 v%d, v%d, v4" % (VO[c] + k, VO[c] + k))
        for k in range(16): a.e("v_fma_f32 v7, v%d, 0, v7" % (VO[c] + k))
    a.e("v_cmp_u_f32 vcc, v7, v7")
    a.e("s_or_b64 s[34:35], s[34:35], vcc")
    a.e("s_cmp_lg_u32 s88, 0")
    a.e("s_cbranch_scc1 %s_store" % name)
    a.e("s_cmp_eq_u64 s[34:35], 0")
    a.e("s_cbranch_scc1 %s_ok" % name)
    a.e("v_mov_b32 v4, 0x%x" % FLAG); a.e("v_mov_b32 v5, 1")
    a.e("ds_write_b32 v4, v5")
    a.e("s_waitcnt lgkmcnt(0)")
    a.label("%s_ok" % name)
    a.e("s_barrier")
    a.e("v_mov_b32 v4, 0x%x" % FLAG)
    a.e("ds_read_b32 v5, v4")
    a.e("s_waitcnt lgkmcnt(0)")
    a.e("v_readfirstlane_b32 s36, v5")
    a.e("s_nop 3")
    a.e("s_cmp_eq_u32 s36, 0")
    a.e("s_cbranch_scc1 %s_store" % name)
    a.e("s_barrier")
    a.e("s_mov_b32 s88, 1")
    a.e("v_mov_b32 v8".replace("v8", "v%d" % VT) + ", 0xff800000")
    a.e("v_mov_b32 v%d, 0xff800000" % (VT + 1))
    a.e("s_mov_b32 s37, 0")
    a.label("%s_mx" % name)
    a.e("buffer_load_dwordx4 v[%d:%d], v2, s[8:11], s37 offen" % (VK, VK + 3))
    a.e("buffer_load_dwordx4 v[%d:%d], v2, s[8:11], s37 offen offset:1024" % (VK + 4, VK + 7))
    a.e("s_waitcnt vmcnt(0)")
    for c in range(2):
        M32(a, VS[c], VK, VQ[c], "0")
        M32(a, VS[c], VK + 4, VQ[c] + 4, VS[c])
    a.e("s_nop 15")
    for c in range(2):
        for k in range(0, 16, 2): a.e("v_max3_f32 v%d, v%d, v%d, v%d" % (VT + c, VT + c, VS[c] + k, VS[c] + k + 1))
    a.e("s_add_u32 s37, s37, 4096")
    a.e("s_cmp_lt_u32 s37, %d" % (64 * 4096))
    a.e("s_cbranch_scc1 %s_mx" % name)
    for c in range(2): set_negm(a, c, VT + c)
    a.e("s_branch %s_pass" % name)
    a.label("%s_store" % name)
    G = GATE
    for c in range(2):
        for k in range(8): a.e("v_cvt_pk_bf16_f32 v%d, v%d, v%d" % (VT + 8 * c + k, VO[c] + 2 * k, VO[c] + 2 * k + 1))
    for c in range(2):
        for m in range(2):
            a.e("buffer_store_dwordx4 v[%d:%d], v2, s[12:15], s86 offen offset:%d sc1" % (VT + 8 * c + 4 * m, VT + 8 * c + 4 * m + 3, c * 2048 + m * 1024))
    a.e("v_mov_b32 v4, 0"); a.e("v_mov_b32 v5, 0")
    a.e("s_nop 0")
    for k in range(8):
        a.e("v_dot2c_f32_bf16 v4, v%d, v%d" % (G + 8 + k, G + k))
        a.e("v_dot2c_f32_bf16 v5, v%d, v%d" % (G + 16 + k, G + k))
    a.e("s_nop 2")
    for sh in (1, 2, 4, 8):
        for r in (4, 5): a.e("v_add_f32_dpp v%d, v%d, v%d row_shr:%d row_mask:0xf bank_mask:0xf bound_ctrl:0" % (r, r, r, sh))
        a.e("s_nop 0")
    for r in (4, 5): a.e("v_add_f32_dpp v%d, v%d, v%d row_bcast:15 row_mask:0xa bank_mask:0xf" % (r, r, r))
    a.e("s_nop 0")
    for r in (4, 5): a.e("v_add_f32_dpp v%d, v%d, v%d row_bcast:31 row_mask:0xc bank_mask:0xf" % (r, r, r))
    a.e("s_nop 0")
    for r in (4, 5): a.e("v_mul_f32 v%d, 0x%x, v%d" % (r, f2u(-LOG2E), r))
    for r in (4, 5): a.e("v_exp_f32 v%d, v%d" % (r, r))
    a.e("s_nop 0")
    for r in (4, 5): a.e("v_add_f32 v%d, 1.0, v%d" % (r, r))
    for r in (4, 5): a.e("v_rcp_f32 v%d, v%d" % (r, r))
    a.e("s_add_u32 s92, s80, 0x%x" % WS_G); a.e("s_addc_u32 s93, s81, 0"); srd(a, 24, 92, 93, 256 * 128)
    a.e("s_lshl_b32 s87, s2, 7"); a.e("s_lshl_b32 s89, s82, 3"); a.e("s_add_u32 s87, s87, s89")
    a.e("v_mov_b32 v6, s87")
    a.e("v_cmp_eq_u32 vcc, 63, v1")
    a.e("s_nop 1")
    a.e("s_and_saveexec_b64 s[90:91], vcc")
    a.e("buffer_store_dwordx2 v[4:5], v6, s[24:27], 0 offen sc1")
    a.e("s_mov_b64 exec, s[90:91]")
    a.stamp(3)
    a.e("s_waitcnt vmcnt(0)")
    a.e("s_barrier")
    a.e("s_cmp_lg_u32 s82, 0")
    a.e("s_cbranch_scc1 %s_nosig" % name)
    a.e("s_add_u32 s92, s80, 0x%x" % WS_F); a.e("s_addc_u32 s93, s81, 0"); srd(a, 24, 92, 93, 4096)
    a.e("s_lshr_b32 s87, s2, 4"); a.e("s_lshl_b32 s87, s87, 8")
    a.e("s_and_b32 s89, s2, 15"); a.e("s_lshl_b32 s89, s89, 2"); a.e("s_add_u32 s87, s87, s89")
    a.e("v_mov_b32 v6, s87"); a.e("v_mov_b32 v4, 1")
    a.e("v_cmp_eq_u32 vcc, 0, v1")
    a.e("s_nop 1")
    a.e("s_and_saveexec_b64 s[90:91], vcc")
    a.e("buffer_store_dword v4, v6, s[24:27], 0 offen sc1")
    a.e("s_mov_b64 exec, s[90:91]")
    a.label("%s_nosig" % name)
    a.stamp(4)
    a.stamp_flush(80, 81, WS_PROF + (1 << 20), 82, 4)
    a.e("s_endpgm")

NHR = 12
NWU = 8
BH = 32
BA = 80
BAC = 104
AAC = 136
BT = 168
POLL_U = 53
OUT_FLAGS = ''
def gen_b(a, name, prio):
    a.e("s_sub_u32 s83, s2, 256")
    a.e("s_and_b32 s84, s83, 7"); a.e("s_lshr_b32 s91, s83, 3")
    a.e("s_lshr_b32 s85, s84, 1"); a.e("s_and_b32 s86, s84, 1")
    a.e("s_lshl_b32 s85, s85, 2"); a.e("s_lshr_b32 s87, s91, 3"); a.e("s_add_u32 s85, s85, s87")
    a.e("s_lshl_b32 s86, s86, 3"); a.e("s_and_b32 s87, s91, 7"); a.e("s_add_u32 s86, s86, s87")
    a.e("v_lshrrev_b32 v3, 3, v1")
    a.e("v_bfe_u32 v4, v1, 4, 1")
    a.e("v_lshlrev_b32 v4, 2, v4")
    a.e("v_and_b32 v5, 7, v1")
    a.e("v_xor_b32 v4, v4, v5")
    a.e("v_lshlrev_b32 v4, 4, v4")
    a.e("v_lshl_add_u32 v10, v3, 11, v4")
    a.e("s_lshl_b32 s90, s85, 2"); a.e("s_add_u32 s90, s90, s82")
    a.e("s_mul_i32 s31, s90, %d" % (224 * 1024))
    a.e("s_lshl_b32 s38, s90, 16")
    a.e("s_lshl_b32 s33, s82, 15")
    a.e("s_add_u32 s32, s33, %d" % (8 * 2048 - 1024))
    a.e("s_lshl_b32 s35, s82, 11")
    a.e("s_lshl_b32 s89, s86, 7")
    a.e("s_waitcnt lgkmcnt(0)")
    a.e("s_add_u32 s92, s74, s89"); a.e("s_addc_u32 s93, s75, 0"); srd(a, 16, 92, 93, 3584 * 2048)
    a.e("s_add_u32 s92, s80, 0x%x" % WS_H); a.e("s_addc_u32 s93, s81, 0"); srd(a, 8, 92, 93, WS_H_BYTES)
    NG = 288; NU = 72; GB = 224; UB = 56
    uid = {}; hid = {}
    def wdma(u):
        sb = 16 if u < UB else 44
        a.set_m0(35, (u % NWU) * 8192)
        a.vm("buffer_load_dwordx4 v10, s[%d:%d], s33 offen lds" % (sb, sb + 3))
        uid[u] = a.vm("buffer_load_dwordx4 v10, s[%d:%d], s32 offen offset:1024 lds" % (sb, sb + 3))
        add64(a, sb, 64 * 2048)
    def hload(g):
        r = BH + 4 * (g % NHR)
        if g < GB:
            hid[g] = a.vm("buffer_load_dwordx4 v[%d:%d], v2, s[8:11], s31 offen offset:%d" % (r, r + 3, (g % 4) * 1024))
            if g % 4 == 3: a.e("s_add_u32 s31, s31, 4096")
        else:
            hid[g] = a.vm("buffer_load_dwordx4 v[%d:%d], v2, s[4:7], s38 offen offset:%d sc1" % (r, r + 3, (g % 4) * 1024))
            if g % 4 == 3: a.e("s_add_u32 s38, s38, 4096")
    wdma(0)
    for g in range(3): hload(g)
    wdma(1)
    hload(3)
    nh = 4; nu = 2
    if prio[1]: a.e("s_setprio %d" % prio[1])
    a.e("s_add_u32 s92, s76, s89"); a.e("s_addc_u32 s93, s77, 0"); srd(a, 44, 92, 93, 1024 * 2048)
    a.e("s_add_u32 s92, s80, 0x%x" % WS_O); a.e("s_addc_u32 s93, s81, 0"); srd(a, 4, 92, 93, 4 << 20)
    a.e("s_add_u32 s92, s80, 0x%x" % WS_G); a.e("s_addc_u32 s93, s81, 0"); srd(a, 20, 92, 93, 256 * 128)
    srd(a, 24, 78, 79, 2048 * 2048)
    a.e("s_add_u32 s92, s80, 0x%x" % WS_F); a.e("s_addc_u32 s93, s81, 0"); srd(a, 40, 92, 93, 4096)
    a.e("v_lshrrev_b32 v3, 5, v1")
    a.e("v_bfe_u32 v4, v1, 2, 2")
    a.e("v_bfe_u32 v5, v1, 4, 1")
    a.e("v_and_b32 v6, 3, v1")
    a.e("v_lshrrev_b32 v7, 1, v4")
    a.e("v_lshlrev_b32 v7, 6, v7")
    a.e("v_lshl_add_u32 v7, v5, 5, v7")
    a.e("v_lshl_add_u32 v7, v6, 3, v7")
    a.e("v_lshl_add_u32 v8, v3, 3, v4")
    a.e("v_lshl_add_u32 v12, v8, 7, v7")
    a.e("v_xor_b32 v13, 64, v12")
    a.e("v_lshl_add_u32 v8, v3, 2, v4")
    a.e("v_lshl_add_u32 v14, v8, 7, v7")
    a.e("v_xor_b32 v15, 64, v14")
    a.e("v_and_b32 v4, 31, v1")
    a.e("s_lshl_b32 s91, s90, 5")
    a.e("v_add_u32 v4, s91, v4")
    a.e("v_lshrrev_b32 v5, 3, v4")
    a.e("v_and_b32 v6, 7, v4")
    a.e("v_lshlrev_b32 v6, 2, v6")
    a.e("v_lshl_add_u32 v16, v5, 7, v6")
    a.e("v_lshlrev_b32 v17, 11, v4")
    a.e("v_lshl_add_u32 v17, v3, 4, v17")
    a.e("s_mov_b32 s36, s89")
    a.e("s_lshl_b32 s37, s85, 8")
    a.wait(vm=uid[0]); a.e("s_barrier")
    a.stamp(1)
    fr = {}
    def reads(g):
        u, kk = g // 4, g % 4
        so = (u % NWU) * 8192 + kk * 2048
        f = g % 3
        va, d = (12, 512) if g < GB else (14, 1024)
        for ng in range(2):
            a.ds("ds_read_b64_tr_b16 v[%d:%d], v%d offset:%d" % (BA + 8 * f + 4 * ng, BA + 8 * f + 4 * ng + 1, va + ng, so))
            fr[g] = a.ds("ds_read_b64_tr_b16 v[%d:%d], v%d offset:%d" % (BA + 8 * f + 4 * ng + 2, BA + 8 * f + 4 * ng + 3, va + ng, so + d))
    reads(0); reads(1)
    polled = False
    for g in range(NG):
        u, kk = g // 4, g % 4
        f = g % 3
        if kk == 2 and u + 1 < NU:
            assert u + 1 in uid
            if u == POLL_U:
                a.stamp(5)
                a.e("s_cmp_lg_u32 s82, 0")
                a.e("s_cbranch_scc1 %s_polled" % name)
                a.e("v_and_b32 v4, 15, v1")
                a.e("v_lshlrev_b32 v4, 2, v4")
                a.e("s_mov_b32 s96, 0x40000")
                a.label("%s_poll" % name)
                a.e("buffer_load_dword v5, v4, s[40:43], s37 offen sc1")
                a.e("s_waitcnt vmcnt(0)")
                a.e("v_cmp_eq_u32 vcc, 1, v5")
                a.e("s_nop 3")
                a.e("s_cmp_eq_u64 vcc, exec")
                a.e("s_cbranch_scc1 %s_polled" % name)
                a.e("s_sleep 6")
                a.e("s_sub_u32 s96, s96, 1")
                a.e("s_cmp_lg_u32 s96, 0")
                a.e("s_cbranch_scc1 %s_poll" % name)
                a.label("%s_polled" % name)
                polled = True
            a.wait(vm=uid[u + 1]); a.e("s_barrier")
            if u == POLL_U:
                gid = a.vm("buffer_load_dword v22, v16, s[20:23], 0 offen sc1")
                a.stamp(2)
        if g + 2 < NG: reads(g + 2)
        assert g in hid
        a.wait(vm=hid[g], lg=fr[g])
        hb = BH + 4 * (g % NHR)
        acc = BAC if g < GB else AAC
        for ng in range(2):
            M32(a, acc + 16 * ng, BA + 8 * f + 4 * ng, hb, "0" if g in (0, GB) else acc + 16 * ng)
        cnt = 0
        while nh < min(g + 1 + NHR, NG) and cnt < 2 and (nh < GB or polled):
            hload(nh); nh += 1; cnt += 1
        if nu < NU and (nu < NWU or (u, kk) >= (nu - NWU + 1, 2)):
            wdma(nu); nu += 1
    a.stamp(3)
    a.wait(vm=gid)
    a.e("v_sub_f32 v23, 1.0, v22")
    for k in range(32): a.e("v_mul_f32 v%d, v%d, v23" % (BAC + k, BAC + k))
    for k in range(32): a.e("v_fmac_f32 v%d, v%d, v22" % (BAC + k, AAC + k))
    for k in range(16): a.e("v_cvt_pk_bf16_f32 v%d, v%d, v%d" % (BH + k, BAC + 2 * k, BAC + 2 * k + 1))
    a.e("s_nop 1")
    for q in range(4):
        b = BH + 4 * q
        a.e("v_permlane32_swap_b32 v%d, v%d" % (b, b + 2))
        a.e("v_permlane32_swap_b32 v%d, v%d" % (b + 1, b + 3))
    for q in range(4):
        b = BH + 4 * q
        a.vm("buffer_store_dwordx4 v[%d:%d], v17, s[24:27], s36 offen offset:%d%s" % (b, b + 3, 32 * q, OUT_FLAGS))
    if a.prof: a.e("s_waitcnt vmcnt(0)")
    a.stamp(4)
    a.stamp_flush(80, 81, WS_PROF + (1 << 20), 82, 4)
    a.e("s_endpgm")

def gen_k2(name, prof=False, roles="ab", prio=(0, 0)):
    a = Asm(); a.prof = prof
    a.PROF_V = 254
    a.raw(kernel_header(name))
    a.e("s_cmp_ge_u32 s2, 512")
    a.e("s_cbranch_scc1 %s_exit" % name)
    if prof: a.e("v_mov_b32 v254, 0")
    a.stamp(0)
    a.e("s_load_dwordx2 s[80:81], s[0:1], 96")
    a.e("s_load_dwordx2 s[68:69], s[0:1], 0")
    a.e("s_load_dwordx2 s[70:71], s[0:1], 72")
    a.e("s_load_dwordx2 s[74:75], s[0:1], 64")
    a.e("s_load_dwordx2 s[76:77], s[0:1], 32")
    a.e("s_load_dwordx4 s[%d:%d], s[0:1], 80" % (48, 51))
    a.e("v_and_b32 v1, 63, v0")
    a.e("v_lshrrev_b32 v3, 6, v0")
    a.e("v_lshlrev_b32 v2, 4, v1")
    a.e("v_readfirstlane_b32 s82, v3")
    a.e("s_waitcnt lgkmcnt(0)")
    a.e("s_mov_b32 s78, s48"); a.e("s_mov_b32 s79, s49"); a.e("s_mov_b32 s72, s50"); a.e("s_mov_b32 s73, s51")
    a.e("s_cmp_ge_u32 s2, 256")
    a.e("s_cbranch_scc1 %s_roleb" % name)
    if "a" in roles: gen_attn(a, name, prio)
    else: a.e("s_endpgm")
    a.label("%s_roleb" % name)
    a.reset_counts()
    if "b" in roles: gen_b(a, name, prio)
    else: a.e("s_endpgm")
    a.label("%s_exit" % name)
    a.e("s_endpgm")
    return a.text()
```

```python
from asmlib import *
from k1 import WS_O, WS_G, WS_B, WS_PROF, f2u

SLOT = 24576
NS = 6
VA = 32
VB = 48
ACA = 64
VBB = 80
VT = 96

def gen_k3(name, prof=False):
    a = Asm(); a.prof = prof; a.PROF_V = 126
    a.raw(kernel_header(name))
    a.e("s_cmp_ge_u32 s2, 256")
    a.e("s_cbranch_scc1 %s_exit" % name)
    if prof: a.e("v_mov_b32 v126, 0")
    a.stamp(0)
    a.e("s_load_dwordx2 s[68:69], s[0:1], 32")
    a.e("s_load_dwordx2 s[72:73], s[0:1], 80")
    a.e("s_load_dwordx2 s[80:81], s[0:1], 96")
    a.e("v_and_b32 v1, 63, v0")
    a.e("v_lshrrev_b32 v3, 6, v0")
    a.e("v_lshlrev_b32 v2, 4, v1")
    a.e("v_readfirstlane_b32 s82, v3")
    a.e("s_and_b32 s83, s2, 7"); a.e("s_lshr_b32 s84, s2, 3")
    a.e("s_lshr_b32 s85, s83, 1")
    a.e("s_and_b32 s86, s83, 1")
    a.e("s_lshl_b32 s85, s85, 2"); a.e("s_lshr_b32 s87, s84, 3"); a.e("s_add_u32 s85, s85, s87")
    a.e("s_lshl_b32 s86, s86, 3"); a.e("s_and_b32 s87, s84, 7"); a.e("s_add_u32 s86, s86, s87")
    a.e("s_lshr_b32 s87, s82, 1")
    a.e("s_and_b32 s88, s82, 1")
    a.e("v_lshrrev_b32 v3, 3, v1")
    a.e("v_bfe_u32 v4, v1, 4, 1")
    a.e("v_lshlrev_b32 v4, 2, v4")
    a.e("v_and_b32 v5, 7, v1")
    a.e("v_xor_b32 v4, v4, v5")
    a.e("v_lshlrev_b32 v4, 4, v4")
    a.e("v_lshl_add_u32 v10, v3, 11, v4")
    a.e("s_lshl_b32 s90, s85, 2"); a.e("s_add_u32 s90, s90, s87")
    a.e("s_lshl_b32 s91, s88, 11")
    a.e("s_lshl_b32 s30, s90, 16"); a.e("s_add_u32 s30, s30, s91")
    a.e("s_lshl_b32 s32, s82, 14")
    a.e("s_lshl_b32 s34, s87, 12"); a.e("s_add_u32 s34, s34, s91")
    a.e("s_lshl_b32 s35, s82, 10"); a.e("s_add_u32 s35, s35, 16384")
    a.e("s_waitcnt lgkmcnt(0)")
    a.stamp(5)
    a.e("s_add_u32 s92, s80, 0x%x" % WS_O); a.e("s_addc_u32 s93, s81, 0"); srd(a, 4, 92, 93, 4 << 20)
    a.e("s_lshl_b32 s89, s86, 7")
    a.e("s_add_u32 s92, s68, s89"); a.e("s_addc_u32 s93, s69, 0"); srd(a, 12, 92, 93, 1024 * 2048)
    NST = 16
    sid = {}
    def dma_part(s, p):
        slot = s % NS
        if p < 2:
            a.set_m0(34, slot * SLOT)
            a.vm("buffer_load_dwordx4 v2, s[4:7], s30 offen offset:%d lds" % (p * 1024))
            if p == 1: a.e("s_add_u32 s30, s30, 4096")
        else:
            a.set_m0(35, slot * SLOT)
            sid[s] = a.vm("buffer_load_dwordx4 v10, s[12:15], s32 offen lds")
            a.e("s_add_u32 s32, s32, %d" % (64 * 2048))
    pend = [(s, p) for s in range(NST) for p in range(3)]
    for k in range(6): dma_part(*pend.pop(0))
    a.stamp(6)
    a.e("s_add_u32 s92, s80, 0x%x" % WS_B); a.e("s_addc_u32 s93, s81, 0"); srd(a, 8, 92, 93, 4 << 20)
    a.e("s_add_u32 s92, s80, 0x%x" % WS_G); a.e("s_addc_u32 s93, s81, 0"); srd(a, 20, 92, 93, 8192)
    srd(a, 24, 72, 73, 2048 * 2048)
    a.e("s_lshl_b32 s37, s85, 4"); a.e("s_add_u32 s37, s37, s86"); a.e("s_lshl_b32 s37, s37, 14")
    a.e("s_lshl_b32 s89, s87, 12"); a.e("s_add_u32 s37, s37, s89"); a.e("s_add_u32 s37, s37, s91")
    a.vm("buffer_load_dwordx4 v[%d:%d], v2, s[8:11], s37 offen" % (VBB, VBB + 3))
    a.vm("buffer_load_dwordx4 v[%d:%d], v2, s[8:11], s37 offen offset:1024" % (VBB + 4, VBB + 7))
    a.e("v_and_b32 v3, 31, v1")
    a.e("s_lshl_b32 s89, s90, 5")
    a.e("v_add_u32 v3, s89, v3")
    a.e("v_lshlrev_b32 v4, 2, v3")
    gid = a.vm("buffer_load_dword v22, v4, s[20:23], 0 offen")
    a.e("v_lshlrev_b32 v21, 11, v3")
    a.e("v_lshrrev_b32 v4, 5, v1")
    a.e("v_lshl_add_u32 v21, v4, 4, v21")
    a.e("s_lshl_b32 s89, s86, 7"); a.e("s_lshl_b32 s91, s88, 6"); a.e("s_add_u32 s36, s89, s91")
    a.e("v_lshrrev_b32 v3, 5, v1")
    a.e("v_bfe_u32 v4, v1, 2, 2")
    a.e("v_bfe_u32 v5, v1, 4, 1")
    a.e("v_and_b32 v6, 3, v1")
    a.e("v_lshrrev_b32 v7, 1, v4")
    a.e("v_xor_b32 v7, s88, v7")
    a.e("v_lshlrev_b32 v7, 6, v7")
    a.e("v_lshl_add_u32 v7, v5, 5, v7")
    a.e("v_lshl_add_u32 v7, v6, 3, v7")
    a.e("v_add_u32 v7, 16384, v7")
    a.e("v_lshl_add_u32 v9, v3, 2, v4")
    a.e("v_lshl_add_u32 v9, v9, 7, v7")
    a.e("s_lshl_b32 s89, s87, 12")
    a.e("v_add_u32 v11, s89, v2")
    for st in range(3):
        a.e("v_add_u32 v%d, %d, v9" % (15 + st, st * 2 * SLOT))
        a.e("v_add_u32 v%d, %d, v11" % (18 + st, st * 2 * SLOT))
    a.stamp(7)
    a.wait(vm=sid[0]); a.e("s_barrier")
    a.stamp(1)
    fr = {}
    def reads(s, kk):
        slot = s % NS; st = slot // 2; so = (slot % 2) * SLOT
        gi = s * 4 + kk; f = gi % 4
        va = 15 + st
        o0, o1 = so + kk * 2048, so + kk * 2048 + 1024
        a.ds("ds_read_b128 v[%d:%d], v%d offset:%d" % (VB + 4 * f, VB + 4 * f + 3, 18 + st, so + kk * 1024))
        a.ds("ds_read_b64_tr_b16 v[%d:%d], v%d offset:%d" % (VA + 4 * f, VA + 4 * f + 1, va, o0))
        fr[gi] = a.ds("ds_read_b64_tr_b16 v[%d:%d], v%d offset:%d" % (VA + 4 * f + 2, VA + 4 * f + 3, va, o1))
    reads(0, 0); reads(0, 1)
    for s in range(NST):
        for kk in range(4):
            gi = s * 4 + kk; f = gi % 4
            if kk == 2 and s + 1 < NST:
                while s + 1 not in sid: dma_part(*pend.pop(0))
                a.wait(vm=sid[s + 1]); a.e("s_barrier")
            g2 = gi + 2
            if g2 < NST * 4: reads(g2 // 4, g2 % 4)
            a.wait(lg=fr[gi])
            a.e("v_mfma_f32_32x32x16_bf16 v[%d:%d], v[%d:%d], v[%d:%d], %s" % (ACA, ACA + 15, VA + 4 * f, VA + 4 * f + 3, VB + 4 * f, VB + 4 * f + 3,
                                                                             "0" if gi == 0 else "v[%d:%d]" % (ACA, ACA + 15)))
            cnt = 0
            while pend and cnt < 2 and (pend[0][0] < NS or (s, kk) >= (pend[0][0] - NS + 1, 2)) and pend[0][0] <= s + NS - 1:
                dma_part(*pend.pop(0)); cnt += 1
    a.stamp(2)
    a.wait(vm=gid)
    a.e("v_sub_f32 v23, 1.0, v22")
    for k in range(8):
        a.e("v_lshlrev_b32 v%d, 16, v%d" % (VT + 2 * k, VBB + k))
        a.e("v_and_b32 v%d, 0xffff0000, v%d" % (VT + 2 * k + 1, VBB + k))
    for k in range(16): a.e("v_mul_f32 v%d, v%d, v23" % (VT + k, VT + k))
    for k in range(16): a.e("v_fmac_f32 v%d, v%d, v22" % (VT + k, ACA + k))
    for k in range(8): a.e("v_cvt_pk_bf16_f32 v%d, v%d, v%d" % (VBB + k, VT + 2 * k, VT + 2 * k + 1))
    a.e("s_nop 1")
    for pr in range(2):
        b = VBB + 4 * pr
        a.e("v_permlane32_swap_b32 v%d, v%d" % (b, b + 2))
        a.e("v_permlane32_swap_b32 v%d, v%d" % (b + 1, b + 3))
    for pr in range(2):
        b = VBB + 4 * pr
        a.vm("buffer_store_dwordx4 v[%d:%d], v21, s[24:27], s36 offen offset:%d" % (b, b + 3, 32 * pr))
    a.stamp(3)
    if prof: a.e("s_waitcnt vmcnt(0)")
    a.stamp(4)
    a.stamp_flush(80, 81, WS_PROF + (2 << 20), 82, 8) if prof else None
    a.label("%s_exit" % name)
    a.e("s_endpgm")
    return a.text()
```

```python
import sys
sys.path.insert(0, "work")
from build import build
import k1, k2, k3
prof = "prof" in sys.argv
roles = "ab"
prio = (0, 0)
for x in sys.argv:
    if x.startswith("roles="): roles = x[6:]
    if x == "cpf": k1.CODE_PF = "gm_k2_kernel_exit"
    if x.startswith("st1="): k1.STORE_FLAGS = " " + x[4:].replace("+", " ")
    if x.startswith("prio="): prio = tuple(int(c) for c in x[5:])
ks = [dict(name="gm_k1_kernel", text=k1.gen_k1("gm_k1_kernel", prof=prof), grid=256, block=256, lds=159744, nfv=304, accum=256),
      dict(name="gm_k2_kernel", text=k2.gen_k2("gm_k2_kernel", prof=prof, roles=roles, prio=prio), grid=512, block=256, lds=81920, nfv=256, accum=256)]
open(sys.argv[1], "w").write(build(ks))
```

```python
class Asm:
    def __init__(self):
        self.L = []
        self.vm_n = 0; self.vm_done = 0
        self.lg_n = 0; self.lg_done = 0
    def e(self, s):
        self.L.append("    " + s)
    def c(self, s):
        self.L.append("    ; " + s)
    def label(self, s):
        self.L.append(s + ":")
    def raw(self, s):
        self.L.append(s)
    def vm(self, s):
        self.e(s); i = self.vm_n; self.vm_n += 1; return i
    def ds(self, s):
        self.e(s); i = self.lg_n; self.lg_n += 1; return i
    def wait(self, vm=None, lg=None):
        parts = []
        if vm is not None and vm >= self.vm_done:
            n = min(self.vm_n - 1 - vm, 63)
            parts.append("vmcnt(%d)" % n); self.vm_done = self.vm_n - n
        if lg is not None and lg >= self.lg_done:
            n = min(self.lg_n - 1 - lg, 15)
            parts.append("lgkmcnt(%d)" % n); self.lg_done = self.lg_n - n
        if parts:
            self.e("s_waitcnt " + " ".join(parts))
    def wait_all(self, vm=True, lg=True):
        parts = []
        if vm: parts.append("vmcnt(0)"); self.vm_done = self.vm_n
        if lg: parts.append("lgkmcnt(0)"); self.lg_done = self.lg_n
        self.e("s_waitcnt " + " ".join(parts))
    cur_m0 = None
    def set_m0(self, sreg, imm):
        if self.cur_m0 != (sreg, imm):
            self.e("s_add_u32 m0, s%d, %d" % (sreg, imm))
            self.e("s_nop 0")
            self.cur_m0 = (sreg, imm)
    def reset_counts(self):
        self.cur_m0 = None
        self.vm_n = self.vm_done = self.lg_n = self.lg_done = 0
    prof = False
    PROF_V = 254
    nostamp = False
    def stamp(self, idx, real=False, force=False):
        if not self.prof or (self.nostamp and not force): return
        self.e("s_memtime s[98:99]")
        self.e("s_memrealtime s[100:101]")
        self.e("s_waitcnt lgkmcnt(0)"); self.lg_done = self.lg_n
        self.e("v_writelane_b32 v%d, s98, %d" % (self.PROF_V, idx))
        self.e("v_writelane_b32 v%d, s100, %d" % (self.PROF_V, idx + 8))
    def stamp_flush(self, ws_lo, ws_hi, off, wave_sreg, nwaves):
        if not self.prof: return
        self.e("s_add_u32 s92, s%d, 0x%x" % (ws_lo, off)); self.e("s_addc_u32 s93, s%d, 0" % ws_hi)
        self.e("s_mov_b32 s94, 0x100000"); self.e("s_mov_b32 s95, 0x00020000")
        self.e("s_mul_i32 s96, s2, %d" % nwaves); self.e("s_add_u32 s96, s96, s%d" % wave_sreg); self.e("s_lshl_b32 s96, s96, 6")
        T = self.PROF_V - 1
        self.e("v_and_b32 v%d, 63, v0" % T); self.e("v_lshlrev_b32 v%d, 2, v%d" % (T, T))
        self.e("v_cmp_gt_u32 vcc, 64, v%d" % T); self.e("s_nop 1")
        self.e("s_and_saveexec_b64 s[96:97], vcc".replace("s[96:97]", "s[90:91]"))
        self.e("buffer_store_dword v%d, v%d, s[92:95], s96 offen" % (self.PROF_V, T))
        self.e("s_mov_b64 exec, s[90:91]")
    def code_prefetch(self, end_label, idx_sreg, nparts, vtmp, tag):
        t = vtmp
        self.e("s_getpc_b64 s[90:91]")
        self.label("%s_pc" % tag)
        self.e("s_mov_b32 s92, ((%s - %s_pc + 127) / 128 + %d) / %d" % (end_label, tag, nparts - 1, nparts))
        self.e("s_mul_i32 s93, s92, s%d" % idx_sreg)
        self.e("v_add_u32 v%d, s93, v1" % t)
        self.e("v_lshlrev_b32 v%d, 7, v%d" % (t, t))
        self.e("s_mov_b32 s94, %s - %s_pc - 4" % (end_label, tag))
        self.e("v_min_u32 v%d, s94, v%d" % (t, t))
        self.e("v_and_b32 v%d, 0xfffffffc, v%d" % (t, t))
        self.e("v_mov_b32 v%d, s91" % (t + 3))
        self.e("v_add_co_u32 v%d, vcc, s90, v%d" % (t + 2, t))
        self.e("s_nop 1")
        self.e("v_addc_co_u32 v%d, vcc, 0, v%d, vcc" % (t + 3, t + 3))
        self.e("v_cmp_gt_u32 vcc, s92, v1")
        self.e("s_nop 1")
        self.e("s_and_saveexec_b64 s[94:95], vcc")
        self.e("s_cbranch_execz %s_nopf" % tag)
        self.e("global_load_dword v%d, v[%d:%d], off" % (t, t + 2, t + 3))
        self.label("%s_nopf" % tag)
        self.e("s_mov_b64 exec, s[94:95]")
    def text(self):
        return "\n".join(self.L) + "\n"

def vr(b, n=1):
    return "v%d" % b if n == 1 else "v[%d:%d]" % (b, b + n - 1)
def ar(b, n=1):
    return "a%d" % b if n == 1 else "a[%d:%d]" % (b, b + n - 1)
def sr(b, n=1):
    return "s%d" % b if n == 1 else "s[%d:%d]" % (b, b + n - 1)

def srd(a, d, lo, hi, nbytes):
    a.e("s_mov_b32 s%d, s%d" % (d, lo))
    a.e("s_mov_b32 s%d, s%d" % (d + 1, hi))
    a.e("s_mov_b32 s%d, 0x%x" % (d + 2, nbytes))
    a.e("s_mov_b32 s%d, 0x00020000" % (d + 3))

def add64(a, lo, imm_or_s):
    a.e("s_add_u32 s%d, s%d, %s" % (lo, lo, imm_or_s))
    a.e("s_addc_u32 s%d, s%d, 0" % (lo + 1, lo + 1))

def kernel_header(name):
    return (".globl %s\n.p2align 8\n.type %s,@function\n%s:\n" % (name, name, name))

def kernel_desc(name, nfv, accum, nsg=102):
    return (".amdhsa_kernel %s\n  .amdhsa_next_free_vgpr %d\n  .amdhsa_next_free_sgpr %d\n  .amdhsa_accum_offset %d\n"
            "  .amdhsa_group_segment_fixed_size 0\n  .amdhsa_kernarg_size 104\n  .amdhsa_user_sgpr_count 2\n"
            "  .amdhsa_user_sgpr_kernarg_segment_ptr 1\n  .amdhsa_system_sgpr_workgroup_id_x 1\n"
            ".end_amdhsa_kernel\n") % (name, nfv, nsg, accum)
```

```python
from asmlib import *

WS_Q = 0
WS_H = 4 << 20
WS_H_BYTES = 64 * 224 * 1024
WS_KV = 20 << 20
WS_O = 21 << 20
WS_G = 25 << 20
WS_B = 26 << 20
WS_F = 27 << 20
WS_PROF = 48 << 20
QSCALE = 0.25503486322159136
LOG2E = 1.4426950408889634

import struct
def f2u(x): return struct.unpack("<I", struct.pack("<f", x))[0]

STORE_FLAGS = ''
NPRO = 22
MAXOPS = 9
WBASE = 98304
WSLOT = 10240
NWS = 6
ACC = 64
def acc(j, tb): return ACC + 16 * j + 4 * tb
ACCKV = 208
BIAS = 28
T0 = 216

def gen_variant(a, isQ, pfx):
    NG = 10 if isQ else 9
    def x_dma(s, q):
        slot = s % 3
        a.set_m0(38, slot * 8192 + (q // 4) * 4096)
        i = a.vm("buffer_load_dwordx4 v10, s[4:7], s%d offen offset:%d lds" % (28 + q, (q % 4) * 1024))
        if q == 7:
            add64(a, 4, 128)
        return i
    def w_dma(h, part):
        slot = h % NWS
        if part == 0:
            a.set_m0(39, slot * WSLOT)
            return a.vm("buffer_load_dwordx4 v11, s[8:11], s36 offen lds")
        if part == 1:
            a.set_m0(39, slot * WSLOT)
            i = a.vm("buffer_load_dwordx4 v11, s[8:11], s37 offen offset:1024 lds")
            a.e("s_add_u32 s8, s8, s41"); a.e("s_addc_u32 s9, s9, 0")
            return i
        if part == 2:
            a.set_m0(40, slot * WSLOT)
            i = a.vm("buffer_load_dword v12, s[12:15], 0 offen lds")
            add64(a, 12, 32 * 7168)
            return i
        if part == 3:
            a.set_m0(40, slot * WSLOT + 1024)
            i = a.vm("buffer_load_dword v13, s[16:19], 0 offen lds")
            add64(a, 16, 32 * 64)
            return i
    nW = 4 if isQ else 3
    wid = {}
    xid = {}
    ops = []
    for h in range(32):
        for p in range(nW):
            ops.append(dict(dl=h - 1, early=(h - 5, 5) if h >= NWS else (-9, 0), kind="w", i=h, p=p))
    for st in range(16):
        for q in range(8):
            ops.append(dict(dl=2 * st - 1, early=(2 * (st - 3) + 1, 1) if st >= 3 else (-9, 0), kind="x", i=st, p=q))
    ops.sort(key=lambda o: (o["dl"], 0 if o["kind"] == "w" else 1, o["i"], o["p"]))
    def issue(o):
        if o["kind"] == "w": wid[o["i"]] = w_dma(o["i"], o["p"])
        else: xid[o["i"]] = x_dma(o["i"], o["p"])
    def next_op(now):
        seen = set()
        for k, o in enumerate(ops):
            key = o["kind"]
            if key in seen: continue
            if o["early"] <= now:
                return ops.pop(k)
            seen.add(key)
        return None
    bias_ids = []
    jl = [8] if isQ else list(range(9))
    for j in jl:
        if j < 8:
            i = a.vm("buffer_load_dwordx2 v[%d:%d], v2, s[24:27], s43 offen offset:%d" % (BIAS + 4 * j, BIAS + 4 * j + 1, 32 * j))
        else:
            i = a.vm("buffer_load_dwordx2 v[%d:%d], v2, s[24:27], s42 offen" % (BIAS + 4 * j, BIAS + 4 * j + 1))
        bias_ids.append(i)
    first = [o for o in ops if o["dl"] <= -1]
    first.sort(key=lambda o: (0 if (o["kind"] == "w") else 1, o["p"]))
    for o in first:
        ops.remove(o); issue(o)
    for k in range(NPRO - len(first)):
        issue(next_op((-1, 0)))
    late_setup(a, isQ)
    a.wait(vm=bias_ids[-1])
    for j in jl:
        b = BIAS + 4 * j
        a.e("v_and_b32 v%d, 0xffff0000, v%d" % (b + 3, b + 1))
        a.e("v_lshlrev_b32 v%d, 16, v%d" % (b + 2, b + 1))
        a.e("v_and_b32 v%d, 0xffff0000, v%d" % (b + 1, b))
        a.e("v_lshlrev_b32 v%d, 16, v%d" % (b, b))
    a.wait(vm=max(wid[0], xid[0]))
    a.e("s_barrier")
    a.stamp(1)
    wfrag = {}
    def w_read(h, G):
        gi = h * NG + G
        f = gi % 4
        slot = h % NWS
        if G < 8:
            va, off = 16 + G, slot * WSLOT
            o2 = off + 1024
        elif G == 8:
            va, off = 24, slot * WSLOT
            o2 = off + 256
        else:
            va, off = 24, slot * WSLOT + 1024
            o2 = off + 256
        return [("ds_read_b64_tr_b16 a[%d:%d], v%d offset:%d" % (4 * f, 4 * f + 1, va, off), gi, 0),
                ("ds_read_b64_tr_b16 a[%d:%d], v%d offset:%d" % (4 * f + 2, 4 * f + 3, va, o2), gi, 1)]
    xfrag = {}
    def x_read(h, tb):
        s, kk = h // 2, h % 2
        base = 16 + 16 * (h % 2) + 4 * tb
        i = a.ds("ds_read_b128 a[%d:%d], v%d offset:%d" % (base, base + 3, 14 + kk, (s % 3) * 8192 + tb * 2048))
        xfrag[(h, tb)] = i
    def do_wread(item):
        txt, gi, half = item
        i = a.ds(txt)
        if half == 1: wfrag[gi] = i
    for tb in range(4): x_read(0, tb)
    for G in range(2):
        for it in w_read(0, G): do_wread(it)
    for h in range(32):
        s, kk = h // 2, h % 2
        budget = MAXOPS
        for G in range(NG):
            gi = h * NG + G
            f = gi % 4
            G2 = G + 2; h2 = h
            if G2 >= NG: G2 -= NG; h2 = h + 1
            reads = w_read(h2, G2) if h2 <= 31 else []
            need = wfrag[gi]
            if G == 0: need = max(need, xfrag[(h, 3)])
            a.wait(lg=need)
            ntb = 2 if G == 9 else 4
            for tb in range(ntb):
                d = acc(G, tb) if G < 9 else ACCKV + 4 * tb
                xb = 16 + 16 * (h % 2) + 4 * tb
                if h == 0:
                    if G == 9 or (isQ and G < 8): csrc = "0"
                    else: csrc = "v[%d:%d]" % (BIAS + 4 * G, BIAS + 4 * G + 3)
                else:
                    csrc = "v[%d:%d]" % (d, d + 3)
                a.e("v_mfma_f32_16x16x32_bf16 v[%d:%d], a[%d:%d], a[%d:%d], %s" % (d, d + 3, 4 * f, 4 * f + 3, xb, xb + 3, csrc))
                if tb == 0 and reads: do_wread(reads[0])
                if tb == 1 and reads: do_wread(reads[1])
                if tb == min(2, ntb - 1) and budget > 0:
                    o = next_op((h, G))
                    if o is not None:
                        issue(o); budget -= 1
                if tb == ntb - 1 and G >= 5 and G <= 8 and h + 1 <= 31:
                    x_read(h + 1, G - 5)
            if G == 4 and h + 1 <= 31:
                while any(o["dl"] <= h for o in ops):
                    o = next_op((h, G)); assert o is not None and o["dl"] <= h + 1, (h, o); issue(o)
                need = wid[h + 1]
                if kk == 1: need = max(need, xid[s + 1])
                a.wait(vm=need)
                a.e("s_barrier")
    assert not ops
    a.stamp(2)
    a.e("s_load_dwordx2 s[92:93], s[0:1], 64")
    a.e("s_lshl_b32 s91, s2, 2"); a.e("s_add_u32 s91, s91, s82"); a.e("s_mul_i32 s91, s91, 7168")
    a.e("v_lshlrev_b32 v3, 7, v1")
    a.e("s_waitcnt lgkmcnt(0)")
    a.e("s_mov_b32 s68, s92"); a.e("s_mov_b32 s69, s93"); a.e("s_mov_b32 s70, 0x%x" % (3584 * 2048)); a.e("s_mov_b32 s71, 0x00020000")
    a.e("v_cmp_gt_u32 vcc, 56, v1")
    a.e("s_and_saveexec_b64 s[92:93], vcc")
    a.vm("buffer_load_dword v4, v3, s[68:71], s91 offen")
    a.e("s_mov_b64 exec, s[92:93]")
    a.e("s_load_dwordx2 s[92:93], s[0:1], 32")
    a.e("s_lshl_b32 s91, s2, 2"); a.e("s_add_u32 s91, s91, s82"); a.e("s_lshl_b32 s91, s91, 11")
    a.e("s_waitcnt lgkmcnt(0)")
    a.e("s_mov_b32 s72, s92"); a.e("s_mov_b32 s73, s93"); a.e("s_mov_b32 s74, 0x%x" % (1024 * 2048)); a.e("s_mov_b32 s75, 0x00020000")
    a.e("v_cmp_gt_u32 vcc, 16, v1")
    a.e("s_and_saveexec_b64 s[92:93], vcc")
    a.vm("buffer_load_dword v5, v3, s[72:75], s91 offen")
    a.e("s_mov_b64 exec, s[92:93]")
    a.e("s_nop 7")
    a.e("s_nop 1")
    def mish_pair(src, t0, t1, t2):
        pass
    def pack_store(j, pair, dst_srd, soff_reg, imm, kind):
        A = acc(j, 2 * pair); B = acc(j, 2 * pair + 1)
        t = T0 + (16 if (j * 2 + pair) % 2 else 0)
        q = t + 12
        if kind == "H":
            for k in range(4):
                a.e("v_pk_mul_f32 v[%d:%d], v[%d:%d], s[44:45]" % (t + 2 * k, t + 2 * k + 1, A + 2 * k, A + 2 * k + 1))
            for k in range(8):
                a.e("v_exp_f32 v%d, v%d" % (t + k, t + k))
            for k in range(4):
                u = (t + 8 + 2 * k)
                a.e("v_pk_add_f32 v[%d:%d], v[%d:%d], 2.0 op_sel_hi:[1,0]" % (u, u + 1, t + 2 * k, t + 2 * k + 1))
            for k in range(4):
                u = (t + 8 + 2 * k)
                a.e("v_pk_fma_f32 v[%d:%d], v[%d:%d], v[%d:%d], 2.0 op_sel_hi:[1,1,0]" % (t + 2 * k, t + 2 * k + 1, t + 2 * k, t + 2 * k + 1, u, u + 1))
            for k in range(8):
                a.e("v_rcp_f32 v%d, v%d" % (t + k, t + k))
            for k in range(4):
                a.e("v_pk_fma_f32 v[%d:%d], v[%d:%d], s[46:47], 1.0 op_sel_hi:[1,1,0]" % (t + 2 * k, t + 2 * k + 1, t + 2 * k, t + 2 * k + 1))
            for k in range(4):
                a.e("v_pk_mul_f32 v[%d:%d], v[%d:%d], v[%d:%d]" % (t + 2 * k, t + 2 * k + 1, t + 2 * k, t + 2 * k + 1, A + 2 * k, A + 2 * k + 1))
        else:
            for k in range(4):
                a.e("v_pk_mul_f32 v[%d:%d], v[%d:%d], s[48:49]" % (t + 2 * k, t + 2 * k + 1, A + 2 * k, A + 2 * k + 1))
        a.e("v_cvt_pk_bf16_f32 v%d, v%d, v%d" % (q, t, t + 1))
        a.e("v_cvt_pk_bf16_f32 v%d, v%d, v%d" % (q + 1, t + 2, t + 3))
        a.e("v_cvt_pk_bf16_f32 v%d, v%d, v%d" % (q + 2, t + 4, t + 5))
        a.e("v_cvt_pk_bf16_f32 v%d, v%d, v%d" % (q + 3, t + 6, t + 7))
        a.e("s_nop 1")
        a.e("v_permlane16_swap_b32 v%d, v%d" % (q, q + 2))
        a.e("v_permlane16_swap_b32 v%d, v%d" % (q + 1, q + 3))
        a.vm("buffer_store_dwordx4 v[%d:%d], v25, s[%d:%d], s%d offen offset:%d%s" % (q, q + 3, dst_srd, dst_srd + 3, soff_reg, imm, STORE_FLAGS))
    for j in range(8):
        for pair in range(2):
            pack_store(j, pair, 20, (50 if j < 4 else 54) + pair, (j % 4) * 1024, "Q" if isQ else "H")
    for pair in range(2):
        pack_store(8, pair, 56, 52 + pair, 0, "H")
    if isQ:
        a.e("s_cmp_ge_u32 s60, 2")
        a.e("s_cbranch_scc1 %s_V" % pfx)
        for tb in range(2):
            d = ACCKV + 4 * tb
            a.e("v_cvt_pk_bf16_f32 v%d, v%d, v%d" % (T0 + 2 * tb, d, d + 1))
            a.e("v_cvt_pk_bf16_f32 v%d, v%d, v%d" % (T0 + 2 * tb + 1, d + 2, d + 3))
            a.vm("buffer_store_dwordx2 v[%d:%d], v26, s[64:67], s61 offen offset:%d" % (T0 + 2 * tb, T0 + 2 * tb + 1, tb * 256))
        a.e("s_branch %s_done" % pfx)
        a.label("%s_V" % pfx)
        for tb in range(2):
            d = ACCKV + 4 * tb
            a.e("v_cvt_pk_bf16_f32 v%d, v%d, v%d" % (T0 + 2 * tb, d, d + 1))
            a.e("v_cvt_pk_bf16_f32 v%d, v%d, v%d" % (T0 + 2 * tb + 1, d + 2, d + 3))
            for r in range(4):
                op = "buffer_store_short" if r % 2 == 0 else "buffer_store_short_d16_hi"
                a.vm("%s v%d, v27, s[64:67], s61 offen offset:%d" % (op, T0 + 2 * tb + r // 2, tb * 1024 + r * 16))
        a.label("%s_done" % pfx)
    a.stamp(3)
    a.e("s_waitcnt vmcnt(0)") if a.prof else None
    a.stamp(4)
    a.stamp_flush(80, 81, WS_PROF, 82, 4)
    a.e("s_endpgm")

def late_setup(a, isQ):
    a.e("s_mov_b32 s44, 0x%x" % f2u(LOG2E)); a.e("s_mov_b32 s45, s44")
    a.e("s_mov_b32 s46, 0x%x" % f2u(-2.0)); a.e("s_mov_b32 s47, s46")
    a.e("s_mov_b32 s48, 0x%x" % f2u(QSCALE)); a.e("s_mov_b32 s49, s48")
    a.e("s_lshl_b32 s94, s89, 3")
    a.e("s_lshl_b32 s95, s82, 1")
    a.e("s_add_u32 s94, s94, s95")
    a.e("s_add_u32 s95, s94, s90")
    a.e("s_xor_b32 s96, s90, 1")
    a.e("s_add_u32 s96, s94, s96")
    a.e("s_add_u32 s92, s80, 0x%x" % WS_H); a.e("s_addc_u32 s93, s81, 0")
    srd(a, 56, 92, 93, WS_H_BYTES)
    for pair, sT in ((0, 95), (1, 96)):
        a.e("s_mul_i32 s91, s%d, 224" % sT)
        a.e("s_add_u32 s91, s91, s88")
        a.e("s_add_u32 s91, s91, 192")
        a.e("s_lshl_b32 s%d, s91, 10" % (52 + pair))
    a.e("v_lshlrev_b32 v25, 4, v1")
    if isQ:
        a.e("s_cmp_lg_u32 s2, 0")
        a.e("s_cbranch_scc1 %s_noclr" % a.kname)
        a.e("s_add_u32 s92, s80, 0x%x" % WS_F); a.e("s_addc_u32 s93, s81, 0")
        srd(a, 64, 92, 93, 4096)
        a.e("s_lshl_b32 s91, s82, 10")
        a.e("v_mov_b32 v216, 0"); a.e("v_mov_b32 v217, 0"); a.e("v_mov_b32 v218, 0"); a.e("v_mov_b32 v219, 0")
        a.e("buffer_store_dwordx4 v[216:219], v25, s[64:67], s91 offen")
        a.label("%s_noclr" % a.kname)
    if isQ:
        a.e("v_lshrrev_b32 v3, 1, v6")
        a.e("v_lshl_add_u32 v3, v3, 5, v5")
        a.e("v_lshlrev_b32 v3, 4, v3")
        a.e("v_and_b32 v4, 1, v6")
        a.e("v_lshl_add_u32 v26, v4, 3, v3")
        a.e("v_bfe_u32 v3, v5, 2, 1")
        a.e("v_lshlrev_b32 v3, 5, v3")
        a.e("v_lshl_add_u32 v3, v6, 2, v3")
        a.e("v_lshlrev_b32 v3, 4, v3")
        a.e("v_and_b32 v4, 3, v5")
        a.e("v_lshrrev_b32 v9, 3, v5")
        a.e("v_lshl_add_u32 v4, v9, 2, v4")
        a.e("v_lshl_add_u32 v27, v4, 1, v3")
        a.e("s_add_u32 s92, s80, 0x%x" % WS_KV); a.e("s_addc_u32 s93, s81, 0")
        srd(a, 64, 92, 93, 64 * 4096)
        a.e("s_lshl_b32 s61, s95, 12")
        a.e("s_lshl_b32 s91, s60, 10")
        a.e("s_sub_u32 s92, s60, 2")
        a.e("s_lshl_b32 s92, s92, 8")
        a.e("s_add_u32 s92, s92, 2048")
        a.e("s_cmp_lt_u32 s60, 2")
        a.e("s_cselect_b32 s91, s91, s92")
        a.e("s_add_u32 s61, s61, s91")
        a.e("s_add_u32 s92, s80, 0x%x" % WS_Q); a.e("s_addc_u32 s93, s81, 0")
        srd(a, 20, 92, 93, 4 << 20)
        for pair, sT in ((0, 95), (1, 96)):
            a.e("s_lshl_b32 s91, s%d, 6" % sT)
            a.e("s_lshl_b32 s92, s88, 3")
            a.e("s_add_u32 s91, s91, s92")
            a.e("s_lshl_b32 s%d, s91, 10" % (50 + pair))
            a.e("s_add_u32 s%d, s%d, 4096" % (54 + pair, 50 + pair))
    else:
        a.e("s_add_u32 s92, s80, 0x%x" % WS_H); a.e("s_addc_u32 s93, s81, 0")
        srd(a, 20, 92, 93, WS_H_BYTES)
        for pair, sT in ((0, 95), (1, 96)):
            a.e("s_mul_i32 s91, s%d, 224" % sT)
            a.e("s_lshl_b32 s92, s97, 3")
            a.e("s_add_u32 s91, s91, s92")
            a.e("s_lshl_b32 s%d, s91, 10" % (50 + pair))
            a.e("s_add_u32 s%d, s%d, 4096" % (54 + pair, 50 + pair))
    a.e("v_and_b32 v3, 6, v5")
    a.e("v_xor_b32 v3, v3, v6")
    a.e("v_lshlrev_b32 v4, 4, v3")
    a.e("v_lshl_add_u32 v4, v5, 7, v4")
    a.e("v_add_u32 v14, s38, v4")
    a.e("v_xor_b32 v15, 64, v14")
    a.e("v_and_b32 v3, 1, v6")
    a.e("v_lshl_or_b32 v3, v3, 2, v7")
    a.e("v_lshl_add_u32 v4, v6, 3, v7")
    a.e("v_lshlrev_b32 v4, 8, v4")
    a.e("v_lshl_add_u32 v4, v8, 3, v4")
    a.e("v_add_u32 v4, %d, v4" % WBASE)
    for j in range(8):
        a.e("v_xor_b32 v9, %d, v3" % j)
        a.e("v_lshl_add_u32 v%d, v9, 5, v4" % (16 + j))
    a.e("v_lshrrev_b32 v9, 1, v6")
    a.e("v_lshl_or_b32 v9, v9, 4, v3")
    a.e("v_lshlrev_b32 v9, 5, v9")
    a.e("v_lshl_add_u32 v9, v8, 3, v9")
    a.e("v_add_u32 v24, %d, v9" % (WBASE + 8192))

CODE_PF = False
def gen_k1(name, prof=False):
    a = Asm()
    a.prof = prof
    a.kname = name
    a.raw(kernel_header(name))
    a.e("s_cmp_ge_u32 s2, 256")
    a.e("s_cbranch_scc1 %s_exit" % name)
    if prof: a.e("v_mov_b32 v254, 0")
    a.stamp(0)
    a.e("s_load_dwordx4 s[68:71], s[0:1], 0")
    a.e("s_load_dwordx4 s[76:79], s[0:1], 48")
    a.e("s_load_dwordx4 s[72:75], s[0:1], 16")
    a.e("s_load_dwordx2 s[80:81], s[0:1], 96")
    a.e("v_and_b32 v1, 63, v0")
    a.e("v_lshrrev_b32 v3, 6, v0")
    a.e("s_and_b32 s83, s2, 7")
    a.e("v_readfirstlane_b32 s82, v3")
    a.e("s_lshr_b32 s84, s2, 3")
    if CODE_PF:
        a.e("s_lshl_b32 s96, s84, 2"); a.e("s_add_u32 s96, s96, s82")
        a.code_prefetch(CODE_PF, 96, 128, 220, name + "_cpf")
    a.e("s_and_b32 s85, s83, 1")
    a.e("s_lshr_b32 s86, s83, 1")
    a.e("s_and_b32 s87, s84, 7")
    a.e("s_lshl_b32 s88, s86, 3")
    a.e("s_add_u32 s88, s88, s87")
    a.e("s_lshr_b32 s87, s84, 3")
    a.e("s_lshl_b32 s89, s85, 2")
    a.e("s_add_u32 s89, s89, s87")
    a.e("s_lshr_b32 s90, s88, 2")
    a.e("s_cmp_lt_u32 s88, 8")
    a.e("s_cselect_b32 s90, s90, 0")
    a.e("s_and_b32 s60, s88, 3")
    a.e("v_lshrrev_b32 v3, 3, v1")
    a.e("v_and_b32 v4, 6, v3")
    a.e("v_and_b32 v5, 7, v1")
    a.e("v_xor_b32 v4, v4, v5")
    a.e("v_lshlrev_b32 v4, 4, v4")
    a.e("v_lshl_add_u32 v10, v3, 11, v4")
    a.e("v_and_b32 v5, 15, v1")
    a.e("v_lshrrev_b32 v6, 4, v1")
    a.e("v_bfe_u32 v7, v1, 2, 2")
    a.e("v_and_b32 v8, 3, v1")
    a.e("v_lshlrev_b32 v2, 3, v6")
    a.e("v_lshrrev_b32 v3, 3, v1")
    a.e("s_lshl_b32 s91, s82, 3")
    a.e("v_add_u32 v3, s91, v3")
    a.e("v_and_b32 v4, 0x13, v3")
    a.e("v_bfe_u32 v9, v3, 2, 1")
    a.e("v_lshl_or_b32 v4, v9, 3, v4")
    a.e("v_bfe_u32 v9, v3, 3, 1")
    a.e("v_lshl_or_b32 v4, v9, 2, v4")
    a.e("v_and_b32 v9, 7, v1")
    a.e("v_lshlrev_b32 v9, 2, v9")
    a.e("v_lshl_add_u32 v13, v4, 6, v9")
    a.e("s_movk_i32 s91, 7168")
    a.e("v_mul_lo_u32 v4, v4, s91")
    a.e("v_add_u32 v12, v4, v9")
    a.e("s_lshl_b32 s91, s89, 8")
    a.e("s_lshl_b32 s92, s82, 6")
    a.e("s_add_u32 s91, s91, s92")
    a.e("s_lshl_b32 s91, s91, 11")
    a.e("s_lshl_b32 s92, s90, 16")
    for q in range(8):
        tb = q // 2
        a.e("s_add_u32 s93, s92, %d" % (tb * 32768))
        a.e("s_and_b32 s93, s93, 0x1ffff")
        a.e("s_add_u32 s93, s93, s91")
        a.e("s_add_u32 s%d, s93, %d" % (28 + q, 8 * (q & 1) * 2048 - (q & 3) * 1024) if (8 * (q & 1) * 2048 - (q & 3) * 1024) >= 0
            else "s_sub_u32 s%d, s93, %d" % (28 + q, (q & 3) * 1024 - 8 * (q & 1) * 2048))
    a.e("s_mul_i32 s38, s82, 24576")
    a.e("s_lshl_b32 s39, s82, 11")
    a.e("s_add_u32 s39, s39, %d" % WBASE)
    a.e("s_lshl_b32 s40, s82, 8")
    a.e("s_add_u32 s40, s40, %d" % (WBASE + 8192))
    a.e("s_lshl_b32 s42, s88, 5")
    a.e("s_add_u32 s42, s42, 6144")
    def wvaddr(RS):
        a.e("s_and_b32 s91, s82, 1")
        a.e("s_lshl_b32 s91, s91, 2")
        a.e("v_or_b32 v3, s91, v6")
        a.e("v_bfe_u32 v4, v1, 1, 3")
        a.e("v_xor_b32 v3, v3, v4")
        a.e("v_lshlrev_b32 v3, 5, v3")
        a.e("v_and_b32 v4, 1, v1")
        a.e("v_lshl_add_u32 v3, v4, 4, v3")
        a.e("s_movk_i32 s91, %d" % RS)
        a.e("v_mul_lo_u32 v4, v6, s91")
        a.e("v_add_u32 v11, v3, v4")
    def common_srds():
        srd(a, 4, 68, 69, 2048 * 2048)
        a.e("s_add_u32 s92, s76, s42"); a.e("s_addc_u32 s93, s77, 0")
        srd(a, 12, 92, 93, 1024 * 7168)
        srd(a, 24, 78, 79, 3584 * 2)
    a.e("s_cmp_lt_u32 s88, 8")
    a.e("s_cbranch_scc0 %s_H" % name)
    wvaddr(2048)
    a.e("s_mov_b32 s41, %d" % (32 * 2048))
    a.e("s_lshl_b32 s36, s82, 14")
    a.e("s_add_u32 s37, s36, %d" % (4 * 2048 - 1024))
    a.e("s_lshl_b32 s94, s88, 8")
    a.e("s_and_b32 s95, s60, 1")
    a.e("s_lshl_b32 s95, s95, 5")
    a.e("s_mov_b32 s43, 0")
    a.e("s_waitcnt lgkmcnt(0)")
    a.e("s_add_u32 s92, s70, s94"); a.e("s_addc_u32 s93, s71, 0")
    srd(a, 8, 92, 93, 1024 * 2048)
    a.e("s_cmp_lt_u32 s60, 2")
    a.e("s_cselect_b32 s92, s72, s74")
    a.e("s_cselect_b32 s93, s73, s75")
    a.e("s_add_u32 s92, s92, s95"); a.e("s_addc_u32 s93, s93, 0")
    srd(a, 16, 92, 93, 1024 * 64)
    common_srds()
    gen_variant(a, True, name + "_q")
    a.label("%s_H" % name)
    a.reset_counts()
    wvaddr(7168)
    a.e("s_sub_u32 s97, s88, 8")
    a.e("s_lshl_b32 s43, s97, 8")
    a.e("s_mov_b32 s41, %d" % (32 * 7168))
    a.e("s_mul_i32 s36, s82, %d" % (8 * 7168))
    a.e("s_add_u32 s37, s36, %d" % (4 * 7168 - 1024))
    a.e("s_waitcnt lgkmcnt(0)")
    a.e("s_add_u32 s92, s76, s43"); a.e("s_addc_u32 s93, s77, 0")
    srd(a, 8, 92, 93, 1024 * 7168)
    common_srds()
    gen_variant(a, False, name + "_h")
    a.label("%s_exit" % name)
    a.e("s_endpgm")
    return a.text()

if __name__ == "__main__":
    print(gen_k1("k1_kernel"))
```

```python
VQ = [8, 16]
VK = 24
VV = 32
VS = [40, 56]
VP = [72, 80]
VO = [88, 104]
VL = [120, 124]
VSEL = 128
VNM = [132, 148]
VT = 164
def M32(e, d, x, y, c):
    cs = "v[%d:%d]" % (c, c + 15) if isinstance(c, int) else c
    e("v_mfma_f32_32x32x16_bf16 v[%d:%d], v[%d:%d], v[%d:%d], %s" % (d, d + 15, x, x + 3, y, y + 3, cs))
def M16(e, d, x, y, c):
    e("v_mfma_f32_16x16x32_bf16 v[%d:%d], v[%d:%d], v[%d:%d], v[%d:%d]" % (d, d + 3, x, x + 3, y, y + 3, c, c + 3))

LSUM = "mfma"
VLA = [204, 212]
VONE = 220
def phase(e, c, i, koff, vaddr="v2", variant=0, extra=None):
    o = 1 - c
    Sc, So = VS[c], VS[o]
    extra = list(extra or [])
    def E(k):
        e("v_exp_f32 v%d, v%d" % (Sc + k, Sc + k))
        if extra and k in (1, 4, 7, 10, 13):
            for x in extra.pop(0): e(x)
    def C(k): e("v_cvt_pk_bf16_f32 v%d, v%d, v%d" % (VP[c] + k, Sc + 2 * k, Sc + 2 * k + 1))
    def R(d, off): e("ds_read_b128 v[%d:%d], %s offset:%d" % (d, d + 3, vaddr, off))
    W = lambda n: e("s_waitcnt lgkmcnt(%d)" % n)
    if variant == 0 and LSUM != "mfma":
        def A2(t, half, k):
            if LSUM == "pk":
                r = VS[t] + 8 * half + 2 * k
                e("v_pk_add_f32 v[%d:%d], v[%d:%d], v[%d:%d]" % (VLA[t] + 2 * k, VLA[t] + 2 * k + 1, VLA[t] + 2 * k, VLA[t] + 2 * k + 1, r, r + 1))
            elif LSUM == "dot":
                e("v_dot2c_f32_bf16 v%d, v%d, v%d" % (VLA[t] + 4 * half + k, VP[t] + 4 * half + k, VONE))
            elif LSUM == "add":
                r = VS[t] + 8 * half + 2 * k
                e("v_add_f32 v%d, v%d, v%d" % (VLA[t] + 2 * k, VLA[t] + 2 * k, r))
                e("v_add_f32 v%d, v%d, v%d" % (VLA[t] + 2 * k + 1, VLA[t] + 2 * k + 1, r + 1))
        if c == 1: W(0)
        M32(e, So, VK, VQ[o], VNM[o])
        E(0); E(1); E(2)
        M32(e, VO[o], VV + 4, VP[o] + 4, VO[o])
        if c == 0: R(VV + 4, koff(i) + 3072)
        E(3); E(4); E(5)
        M32(e, So, VK + 4, VQ[o] + 4, So)
        if c == 0: R(VK, koff(i + 1)); R(VK + 4, koff(i + 1) + 1024)
        E(6); E(7); E(8)
        C(0); C(1); E(9); C(2); C(3)
        A2(c, 0, 0); E(10); A2(c, 0, 1); E(11)
        if c == 0: W(3)
        M32(e, VO[c], VV, VP[c], VO[c])
        if c == 1: R(VV, koff(i + 1) + 2048)
        E(12); A2(c, 0, 2); E(13); A2(c, 0, 3); E(14)
        E(15)
        C(4); A2(c, 1, 0); C(5); A2(c, 1, 1); C(6); A2(c, 1, 2); C(7); A2(c, 1, 3)
        return
    if variant == 0:
        if c == 0:
            M32(e, So, VK, VQ[o], VNM[o])
            E(0); E(1); E(2)
            M32(e, VO[o], VV + 4, VP[o] + 4, VO[o])
            R(VV + 4, koff(i) + 3072)
            E(3); E(4); E(5)
            M32(e, So, VK + 4, VQ[o] + 4, So)
            R(VK, koff(i + 1)); R(VK + 4, koff(i + 1) + 1024)
            E(6); E(7); E(8)
            M16(e, VL[o], VSEL, VP[o] + 4, VL[o])
            C(0); C(1); E(9); C(2); C(3)
            E(10); E(11)
            W(3)
            M32(e, VO[c], VV, VP[c], VO[c])
            E(12); E(13); E(14)
            M16(e, VL[c], VSEL, VP[c], VL[c])
            E(15)
            C(4); C(5); C(6); C(7)
        else:
            W(0)
            M32(e, So, VK, VQ[o], VNM[o])
            E(0); E(1); E(2)
            M32(e, VO[o], VV + 4, VP[o] + 4, VO[o])
            E(3); E(4); E(5)
            M32(e, So, VK + 4, VQ[o] + 4, So)
            E(6); E(7); E(8)
            M16(e, VL[o], VSEL, VP[o] + 4, VL[o])
            C(0); C(1); E(9); C(2); C(3)
            E(10); E(11)
            M32(e, VO[c], VV, VP[c], VO[c])
            R(VV, koff(i + 1) + 2048)
            E(12); E(13); E(14)
            M16(e, VL[c], VSEL, VP[c], VL[c])
            E(15)
            C(4); C(5); C(6); C(7)
    elif variant == 1:
        M32(e, So, VK, VQ[o], VNM[o])
        E(0); E(1); E(2)
        M32(e, VO[o], VV + 4, VP[o] + 4, VO[o])
        E(3)
        if c == 0: R(VV + 4, koff(i) + 3072)
        E(4); E(5)
        M32(e, So, VK + 4, VQ[o] + 4, So)
        E(6)
        if c == 0: R(VK, koff(i + 1))
        E(7)
        if c == 0: R(VK + 4, koff(i + 1) + 1024)
        E(8)
        M16(e, VL[o], VSEL, VP[o] + 4, VL[o])
        C(0); C(1); E(9); C(2); C(3)
        E(10); E(11)
        if c == 0: W(3)
        E(12)
        M32(e, VO[c], VV, VP[c], VO[c])
        E(13)
        if c == 1: R(VV, koff(i + 1) + 2048)
        E(14); E(15)
        M16(e, VL[c], VSEL, VP[c], VL[c])
        C(4); C(5); C(6)
        if c == 0: W(0)
        C(7)
    elif variant == 2:
        M32(e, So, VK, VQ[o], VNM[o])
        E(0); E(1); E(2)
        M32(e, VO[o], VV + 4, VP[o] + 4, VO[o])
        E(3)
        if c == 0: R(VV + 4, koff(i) + 3072)
        E(4); C(0); C(1)
        M32(e, So, VK + 4, VQ[o] + 4, So)
        E(5)
        if c == 0: R(VK, koff(i + 1))
        E(6)
        if c == 0: R(VK + 4, koff(i + 1) + 1024)
        E(7)
        M16(e, VL[o], VSEL, VP[o] + 4, VL[o])
        E(8); C(2); E(9); C(3)
        E(10)
        if c == 0: W(3)
        E(11)
        M32(e, VO[c], VV, VP[c], VO[c])
        E(12)
        if c == 1: R(VV, koff(i + 1) + 2048)
        E(13); C(4); C(5)
        M16(e, VL[c], VSEL, VP[c], VL[c])
        E(14); E(15)
        if c == 0: W(0)
        C(6); C(7)
    elif variant == 3:
        M32(e, So, VK, VQ[o], VNM[o])
        E(0); E(1); E(2)
        M32(e, VO[o], VV + 4, VP[o] + 4, VO[o])
        E(3); C(0)
        if c == 0: R(VV + 4, koff(i) + 3072)
        E(4); E(5)
        M32(e, So, VK + 4, VQ[o] + 4, So)
        E(6); C(1)
        if c == 0: R(VK, koff(i + 1))
        E(7); C(2)
        if c == 0: R(VK + 4, koff(i + 1) + 1024)
        M16(e, VL[o], VSEL, VP[o] + 4, VL[o])
        E(8); C(3); E(9); E(10)
        if c == 0: W(3)
        M32(e, VO[c], VV, VP[c], VO[c])
        E(11); C(4); E(12)
        if c == 1: R(VV, koff(i + 1) + 2048)
        E(13)
        M16(e, VL[c], VSEL, VP[c], VL[c])
        E(14); C(5); E(15); C(6)
        if c == 0: W(0)
        C(7)
```

```python
from asmlib import *

WS_Q = 0
WS_H = 4 << 20
WS_H_BYTES = 64 * 224 * 1024
WS_KV = 20 << 20
WS_O = 21 << 20
WS_G = 25 << 20
WS_B = 26 << 20
WS_F = 27 << 20
WS_PROF = 48 << 20
QSCALE = 0.25503486322159136
LOG2E = 1.4426950408889634

import struct
def f2u(x): return struct.unpack("<I", struct.pack("<f", x))[0]

STORE_FLAGS = ''
BURST = False
W2PF = True
NPRO = 22
MAXOPS = 9
WBASE = 98304
WSLOT = 10240
NWS = 6
ACC = 64
def acc(j, tb): return ACC + 16 * j + 4 * tb
ACCKV = 208
BIAS = 28
T0 = 216

def gen_variant(a, isQ, pfx):
    NG = 10 if isQ else 9
    def x_dma(s, q):
        slot = s % 3
        a.set_m0(38, slot * 8192 + (q // 4) * 4096)
        i = a.vm("buffer_load_dwordx4 v10, s[4:7], s%d offen offset:%d lds" % (28 + q, (q % 4) * 1024))
        if q == 7:
            add64(a, 4, 128)
        return i
    def w_dma(h, part):
        slot = h % NWS
        if part == 0:
            a.set_m0(39, slot * WSLOT)
            return a.vm("buffer_load_dwordx4 v11, s[8:11], s36 offen lds")
        if part == 1:
            a.set_m0(39, slot * WSLOT)
            i = a.vm("buffer_load_dwordx4 v11, s[8:11], s37 offen offset:1024 lds")
            a.e("s_add_u32 s8, s8, s41"); a.e("s_addc_u32 s9, s9, 0")
            return i
        if part == 2:
            a.set_m0(40, slot * WSLOT)
            i = a.vm("buffer_load_dword v12, s[12:15], 0 offen lds")
            add64(a, 12, 32 * 7168)
            return i
        if part == 3:
            a.set_m0(40, slot * WSLOT + 1024)
            i = a.vm("buffer_load_dword v13, s[16:19], 0 offen lds")
            add64(a, 16, 32 * 64)
            return i
    nW = 4 if isQ else 3
    wid = {}
    xid = {}
    ops = []
    for h in range(32):
        for p in range(nW):
            ops.append(dict(dl=h - 1, early=(h - 5, 5) if h >= NWS else (-9, 0), kind="w", i=h, p=p))
    for st in range(16):
        for q in range(8):
            ops.append(dict(dl=2 * st - 1, early=(2 * (st - 3) + 1, 1) if st >= 3 else (-9, 0), kind="x", i=st, p=q))
    ops.sort(key=lambda o: (o["dl"], 0 if o["kind"] == "w" else 1, o["i"], o["p"]))
    def issue(o):
        if o["kind"] == "w": wid[o["i"]] = w_dma(o["i"], o["p"])
        else: xid[o["i"]] = x_dma(o["i"], o["p"])
    def next_op(now):
        seen = set()
        for k, o in enumerate(ops):
            key = o["kind"]
            if key in seen: continue
            if o["early"] <= now:
                return ops.pop(k)
            seen.add(key)
        return None
    bias_ids = []
    jl = [8] if isQ else list(range(9))
    for j in jl:
        if j < 8:
            i = a.vm("buffer_load_dwordx2 v[%d:%d], v2, s[24:27], s43 offen offset:%d" % (BIAS + 4 * j, BIAS + 4 * j + 1, 32 * j))
        else:
            i = a.vm("buffer_load_dwordx2 v[%d:%d], v2, s[24:27], s42 offen" % (BIAS + 4 * j, BIAS + 4 * j + 1))
        bias_ids.append(i)
    first = [o for o in ops if o["dl"] <= -1]
    first.sort(key=lambda o: (0 if (o["kind"] == "w") else 1, o["p"]))
    for o in first:
        ops.remove(o); issue(o)
    for k in range(NPRO - len(first)):
        issue(next_op((-1, 0)))
    if BURST:
        a.e("s_lshl_b32 s91, s2, 2"); a.e("s_add_u32 s91, s91, s82")
        a.e("v_lshlrev_b32 v216, 7, v1")
        a.e("s_mov_b32 s92, s76"); a.e("s_mov_b32 s93, s77"); a.e("s_mov_b32 s94, 0x%x" % (1024 * 7168)); a.e("s_mov_b32 s95, 0x00020000")
        a.e("s_mul_i32 s96, s91, 7168")
        a.e("v_cmp_gt_u32 vcc, 56, v1")
        a.e("s_and_saveexec_b64 s[98:99], vcc")
        a.vm("buffer_load_dword v217, v216, s[92:95], s96 offen")
        a.e("s_mov_b64 exec, s[98:99]")
        a.e("s_mov_b32 s92, s70"); a.e("s_mov_b32 s93, s71"); a.e("s_mov_b32 s94, 0x%x" % (1024 * 2048))
        a.e("s_lshl_b32 s96, s91, 11")
        a.e("v_cmp_gt_u32 vcc, 16, v1")
        a.e("s_and_saveexec_b64 s[98:99], vcc")
        a.vm("buffer_load_dword v218, v216, s[92:95], s96 offen")
        a.e("s_mov_b64 exec, s[98:99]")
        a.e("s_mov_b32 s92, s68"); a.e("s_mov_b32 s93, s69"); a.e("s_mov_b32 s94, 0x%x" % (2048 * 2048))
        a.e("s_lshl_b32 s96, s91, 12")
        a.e("v_cmp_gt_u32 vcc, 32, v1")
        a.e("s_and_saveexec_b64 s[98:99], vcc")
        a.vm("buffer_load_dword v219, v216, s[92:95], s96 offen")
        a.e("s_mov_b64 exec, s[98:99]")
    late_setup(a, isQ)
    a.wait(vm=bias_ids[-1])
    for j in jl:
        b = BIAS + 4 * j
        a.e("v_and_b32 v%d, 0xffff0000, v%d" % (b + 3, b + 1))
        a.e("v_lshlrev_b32 v%d, 16, v%d" % (b + 2, b + 1))
        a.e("v_and_b32 v%d, 0xffff0000, v%d" % (b + 1, b))
        a.e("v_lshlrev_b32 v%d, 16, v%d" % (b, b))
    a.wait(vm=max(wid[0], xid[0]))
    a.e("s_barrier")
    a.stamp(1)
    wfrag = {}
    def w_read(h, G):
        gi = h * NG + G
        f = gi % 4
        slot = h % NWS
        if G < 8:
            va, off = 16 + G, slot * WSLOT
            o2 = off + 1024
        elif G == 8:
            va, off = 24, slot * WSLOT
            o2 = off + 256
        else:
            va, off = 24, slot * WSLOT + 1024
            o2 = off + 256
        return [("ds_read_b64_tr_b16 a[%d:%d], v%d offset:%d" % (4 * f, 4 * f + 1, va, off), gi, 0),
                ("ds_read_b64_tr_b16 a[%d:%d], v%d offset:%d" % (4 * f + 2, 4 * f + 3, va, o2), gi, 1)]
    xfrag = {}
    def x_read(h, tb):
        s, kk = h // 2, h % 2
        base = 16 + 16 * (h % 2) + 4 * tb
        i = a.ds("ds_read_b128 a[%d:%d], v%d offset:%d" % (base, base + 3, 14 + kk, (s % 3) * 8192 + tb * 2048))
        xfrag[(h, tb)] = i
    def do_wread(item):
        txt, gi, half = item
        i = a.ds(txt)
        if half == 1: wfrag[gi] = i
    for tb in range(4): x_read(0, tb)
    for G in range(2):
        for it in w_read(0, G): do_wread(it)
    for h in range(32):
        s, kk = h // 2, h % 2
        budget = MAXOPS
        for G in range(NG):
            gi = h * NG + G
            f = gi % 4
            G2 = G + 2; h2 = h
            if G2 >= NG: G2 -= NG; h2 = h + 1
            reads = w_read(h2, G2) if h2 <= 31 else []
            need = wfrag[gi]
            if G == 0: need = max(need, xfrag[(h, 3)])
            a.wait(lg=need)
            ntb = 2 if G == 9 else 4
            for tb in range(ntb):
                d = acc(G, tb) if G < 9 else ACCKV + 4 * tb
                xb = 16 + 16 * (h % 2) + 4 * tb
                if h == 0:
                    if G == 9 or (isQ and G < 8): csrc = "0"
                    else: csrc = "v[%d:%d]" % (BIAS + 4 * G, BIAS + 4 * G + 3)
                else:
                    csrc = "v[%d:%d]" % (d, d + 3)
                a.e("v_mfma_f32_16x16x32_bf16 v[%d:%d], a[%d:%d], a[%d:%d], %s" % (d, d + 3, 4 * f, 4 * f + 3, xb, xb + 3, csrc))
                if tb == 0 and reads: do_wread(reads[0])
                if tb == 1 and reads: do_wread(reads[1])
                if tb == min(2, ntb - 1) and budget > 0:
                    o = next_op((h, G))
                    if o is not None:
                        issue(o); budget -= 1
                if tb == ntb - 1 and G >= 5 and G <= 8 and h + 1 <= 31:
                    x_read(h + 1, G - 5)
            if G == 4 and h + 1 <= 31:
                while any(o["dl"] <= h for o in ops):
                    o = next_op((h, G)); assert o is not None and o["dl"] <= h + 1, (h, o); issue(o)
                need = wid[h + 1]
                if kk == 1: need = max(need, xid[s + 1])
                a.wait(vm=need)
                a.e("s_barrier")
    assert not ops
    a.stamp(2)
    if W2PF:
        a.e("s_load_dwordx2 s[92:93], s[0:1], 64")
        a.e("s_lshl_b32 s91, s2, 2"); a.e("s_add_u32 s91, s91, s82"); a.e("s_mul_i32 s91, s91, 7168")
        a.e("v_lshlrev_b32 v3, 7, v1")
        a.e("s_waitcnt lgkmcnt(0)")
        a.e("s_mov_b32 s68, s92"); a.e("s_mov_b32 s69, s93"); a.e("s_mov_b32 s70, 0x%x" % (3584 * 2048)); a.e("s_mov_b32 s71, 0x00020000")
        a.e("v_cmp_gt_u32 vcc, 56, v1")
        a.e("s_and_saveexec_b64 s[92:93], vcc")
        a.vm("buffer_load_dword v4, v3, s[68:71], s91 offen")
        a.e("s_mov_b64 exec, s[92:93]")
        a.e("s_load_dwordx2 s[92:93], s[0:1], 32")
        a.e("s_lshl_b32 s91, s2, 2"); a.e("s_add_u32 s91, s91, s82"); a.e("s_lshl_b32 s91, s91, 11")
        a.e("s_waitcnt lgkmcnt(0)")
        a.e("s_mov_b32 s72, s92"); a.e("s_mov_b32 s73, s93"); a.e("s_mov_b32 s74, 0x%x" % (1024 * 2048)); a.e("s_mov_b32 s75, 0x00020000")
        a.e("v_cmp_gt_u32 vcc, 16, v1")
        a.e("s_and_saveexec_b64 s[92:93], vcc")
        a.vm("buffer_load_dword v5, v3, s[72:75], s91 offen")
        a.e("s_mov_b64 exec, s[92:93]")
    a.e("s_nop 7")
    a.e("s_nop 1")
    def mish_pair(src, t0, t1, t2):
        pass
    def pack_store(j, pair, dst_srd, soff_reg, imm, kind):
        A = acc(j, 2 * pair); B = acc(j, 2 * pair + 1)
        t = T0 + (16 if (j * 2 + pair) % 2 else 0)
        q = t + 12
        if kind == "H":
            for k in range(4):
                a.e("v_pk_mul_f32 v[%d:%d], v[%d:%d], s[44:45]" % (t + 2 * k, t + 2 * k + 1, A + 2 * k, A + 2 * k + 1))
            for k in range(8):
                a.e("v_exp_f32 v%d, v%d" % (t + k, t + k))
            for k in range(4):
                u = (t + 8 + 2 * k)
                a.e("v_pk_add_f32 v[%d:%d], v[%d:%d], 2.0 op_sel_hi:[1,0]" % (u, u + 1, t + 2 * k, t + 2 * k + 1))
            for k in range(4):
                u = (t + 8 + 2 * k)
                a.e("v_pk_fma_f32 v[%d:%d], v[%d:%d], v[%d:%d], 2.0 op_sel_hi:[1,1,0]" % (t + 2 * k, t + 2 * k + 1, t + 2 * k, t + 2 * k + 1, u, u + 1))
            for k in range(8):
                a.e("v_rcp_f32 v%d, v%d" % (t + k, t + k))
            for k in range(4):
                a.e("v_pk_fma_f32 v[%d:%d], v[%d:%d], s[46:47], 1.0 op_sel_hi:[1,1,0]" % (t + 2 * k, t + 2 * k + 1, t + 2 * k, t + 2 * k + 1))
            for k in range(4):
                a.e("v_pk_mul_f32 v[%d:%d], v[%d:%d], v[%d:%d]" % (t + 2 * k, t + 2 * k + 1, t + 2 * k, t + 2 * k + 1, A + 2 * k, A + 2 * k + 1))
        else:
            for k in range(4):
                a.e("v_pk_mul_f32 v[%d:%d], v[%d:%d], s[48:49]" % (t + 2 * k, t + 2 * k + 1, A + 2 * k, A + 2 * k + 1))
        a.e("v_cvt_pk_bf16_f32 v%d, v%d, v%d" % (q, t, t + 1))
        a.e("v_cvt_pk_bf16_f32 v%d, v%d, v%d" % (q + 1, t + 2, t + 3))
        a.e("v_cvt_pk_bf16_f32 v%d, v%d, v%d" % (q + 2, t + 4, t + 5))
        a.e("v_cvt_pk_bf16_f32 v%d, v%d, v%d" % (q + 3, t + 6, t + 7))
        a.e("s_nop 1")
        a.e("v_permlane16_swap_b32 v%d, v%d" % (q, q + 2))
        a.e("v_permlane16_swap_b32 v%d, v%d" % (q + 1, q + 3))
        a.vm("buffer_store_dwordx4 v[%d:%d], v25, s[%d:%d], s%d offen offset:%d%s" % (q, q + 3, dst_srd, dst_srd + 3, soff_reg, imm, STORE_FLAGS))
    for j in range(8):
        for pair in range(2):
            pack_store(j, pair, 20, (50 if j < 4 else 54) + pair, (j % 4) * 1024, "Q" if isQ else "H")
    for pair in range(2):
        pack_store(8, pair, 56, 52 + pair, 0, "H")
    if isQ:
        a.e("s_cmp_ge_u32 s60, 2")
        a.e("s_cbranch_scc1 %s_V" % pfx)
        for tb in range(2):
            d = ACCKV + 4 * tb
            a.e("v_cvt_pk_bf16_f32 v%d, v%d, v%d" % (T0 + 2 * tb, d, d + 1))
            a.e("v_cvt_pk_bf16_f32 v%d, v%d, v%d" % (T0 + 2 * tb + 1, d + 2, d + 3))
            a.vm("buffer_store_dwordx2 v[%d:%d], v26, s[64:67], s61 offen offset:%d" % (T0 + 2 * tb, T0 + 2 * tb + 1, tb * 256))
        a.e("s_branch %s_done" % pfx)
        a.label("%s_V" % pfx)
        for tb in range(2):
            d = ACCKV + 4 * tb
            a.e("v_cvt_pk_bf16_f32 v%d, v%d, v%d" % (T0 + 2 * tb, d, d + 1))
            a.e("v_cvt_pk_bf16_f32 v%d, v%d, v%d" % (T0 + 2 * tb + 1, d + 2, d + 3))
            for r in range(4):
                op = "buffer_store_short" if r % 2 == 0 else "buffer_store_short_d16_hi"
                a.vm("%s v%d, v27, s[64:67], s61 offen offset:%d" % (op, T0 + 2 * tb + r // 2, tb * 1024 + r * 16))
        a.label("%s_done" % pfx)
    a.stamp(3)
    a.e("s_waitcnt vmcnt(0)") if a.prof else None
    a.stamp(4)
    a.stamp_flush(80, 81, WS_PROF, 82, 4)
    a.e("s_endpgm")

def late_setup(a, isQ):
    a.e("s_mov_b32 s44, 0x%x" % f2u(LOG2E)); a.e("s_mov_b32 s45, s44")
    a.e("s_mov_b32 s46, 0x%x" % f2u(-2.0)); a.e("s_mov_b32 s47, s46")
    a.e("s_mov_b32 s48, 0x%x" % f2u(QSCALE)); a.e("s_mov_b32 s49, s48")
    a.e("s_lshl_b32 s94, s89, 3")
    a.e("s_lshl_b32 s95, s82, 1")
    a.e("s_add_u32 s94, s94, s95")
    a.e("s_add_u32 s95, s94, s90")
    a.e("s_xor_b32 s96, s90, 1")
    a.e("s_add_u32 s96, s94, s96")
    a.e("s_add_u32 s92, s80, 0x%x" % WS_H); a.e("s_addc_u32 s93, s81, 0")
    srd(a, 56, 92, 93, WS_H_BYTES)
    for pair, sT in ((0, 95), (1, 96)):
        a.e("s_mul_i32 s91, s%d, 224" % sT)
        a.e("s_add_u32 s91, s91, s88")
        a.e("s_add_u32 s91, s91, 192")
        a.e("s_lshl_b32 s%d, s91, 10" % (52 + pair))
    a.e("v_lshlrev_b32 v25, 4, v1")
    if isQ:
        a.e("s_cmp_lg_u32 s2, 0")
        a.e("s_cbranch_scc1 %s_noclr" % a.kname)
        a.e("s_add_u32 s92, s80, 0x%x" % WS_F); a.e("s_addc_u32 s93, s81, 0")
        srd(a, 64, 92, 93, 4096)
        a.e("s_lshl_b32 s91, s82, 10")
        a.e("v_mov_b32 v216, 0"); a.e("v_mov_b32 v217, 0"); a.e("v_mov_b32 v218, 0"); a.e("v_mov_b32 v219, 0")
        a.e("buffer_store_dwordx4 v[216:219], v25, s[64:67], s91 offen")
        a.label("%s_noclr" % a.kname)
    if isQ:
        a.e("v_lshrrev_b32 v3, 1, v6")
        a.e("v_lshl_add_u32 v3, v3, 5, v5")
        a.e("v_lshlrev_b32 v3, 4, v3")
        a.e("v_and_b32 v4, 1, v6")
        a.e("v_lshl_add_u32 v26, v4, 3, v3")
        a.e("v_bfe_u32 v3, v5, 2, 1")
        a.e("v_lshlrev_b32 v3, 5, v3")
        a.e("v_lshl_add_u32 v3, v6, 2, v3")
        a.e("v_lshlrev_b32 v3, 4, v3")
        a.e("v_and_b32 v4, 3, v5")
        a.e("v_lshrrev_b32 v9, 3, v5")
        a.e("v_lshl_add_u32 v4, v9, 2, v4")
        a.e("v_lshl_add_u32 v27, v4, 1, v3")
        a.e("s_add_u32 s92, s80, 0x%x" % WS_KV); a.e("s_addc_u32 s93, s81, 0")
        srd(a, 64, 92, 93, 64 * 4096)
        a.e("s_lshl_b32 s61, s95, 12")
        a.e("s_lshl_b32 s91, s60, 10")
        a.e("s_sub_u32 s92, s60, 2")
        a.e("s_lshl_b32 s92, s92, 8")
        a.e("s_add_u32 s92, s92, 2048")
        a.e("s_cmp_lt_u32 s60, 2")
        a.e("s_cselect_b32 s91, s91, s92")
        a.e("s_add_u32 s61, s61, s91")
        a.e("s_add_u32 s92, s80, 0x%x" % WS_Q); a.e("s_addc_u32 s93, s81, 0")
        srd(a, 20, 92, 93, 4 << 20)
        for pair, sT in ((0, 95), (1, 96)):
            a.e("s_lshl_b32 s91, s%d, 6" % sT)
            a.e("s_lshl_b32 s92, s88, 3")
            a.e("s_add_u32 s91, s91, s92")
            a.e("s_lshl_b32 s%d, s91, 10" % (50 + pair))
            a.e("s_add_u32 s%d, s%d, 4096" % (54 + pair, 50 + pair))
    else:
        a.e("s_add_u32 s92, s80, 0x%x" % WS_H); a.e("s_addc_u32 s93, s81, 0")
        srd(a, 20, 92, 93, WS_H_BYTES)
        for pair, sT in ((0, 95), (1, 96)):
            a.e("s_mul_i32 s91, s%d, 224" % sT)
            a.e("s_lshl_b32 s92, s97, 3")
            a.e("s_add_u32 s91, s91, s92")
            a.e("s_lshl_b32 s%d, s91, 10" % (50 + pair))
            a.e("s_add_u32 s%d, s%d, 4096" % (54 + pair, 50 + pair))
    a.e("v_and_b32 v3, 6, v5")
    a.e("v_xor_b32 v3, v3, v6")
    a.e("v_lshlrev_b32 v4, 4, v3")
    a.e("v_lshl_add_u32 v4, v5, 7, v4")
    a.e("v_add_u32 v14, s38, v4")
    a.e("v_xor_b32 v15, 64, v14")
    a.e("v_and_b32 v3, 1, v6")
    a.e("v_lshl_or_b32 v3, v3, 2, v7")
    a.e("v_lshl_add_u32 v4, v6, 3, v7")
    a.e("v_lshlrev_b32 v4, 8, v4")
    a.e("v_lshl_add_u32 v4, v8, 3, v4")
    a.e("v_add_u32 v4, %d, v4" % WBASE)
    for j in range(8):
        a.e("v_xor_b32 v9, %d, v3" % j)
        a.e("v_lshl_add_u32 v%d, v9, 5, v4" % (16 + j))
    a.e("v_lshrrev_b32 v9, 1, v6")
    a.e("v_lshl_or_b32 v9, v9, 4, v3")
    a.e("v_lshlrev_b32 v9, 5, v9")
    a.e("v_lshl_add_u32 v9, v8, 3, v9")
    a.e("v_add_u32 v24, %d, v9" % (WBASE + 8192))

CODE_PF = False
def gen_k1(name, prof=False):
    a = Asm()
    a.prof = prof
    a.kname = name
    a.raw(kernel_header(name))
    a.e("s_cmp_ge_u32 s2, 256")
    a.e("s_cbranch_scc1 %s_exit" % name)
    if prof: a.e("v_mov_b32 v254, 0")
    a.stamp(0)
    a.e("s_load_dwordx4 s[68:71], s[0:1], 0")
    a.e("s_load_dwordx4 s[76:79], s[0:1], 48")
    a.e("s_load_dwordx4 s[72:75], s[0:1], 16")
    a.e("s_load_dwordx2 s[80:81], s[0:1], 96")
    a.e("v_and_b32 v1, 63, v0")
    a.e("v_lshrrev_b32 v3, 6, v0")
    a.e("s_and_b32 s83, s2, 7")
    a.e("v_readfirstlane_b32 s82, v3")
    a.e("s_lshr_b32 s84, s2, 3")
    if CODE_PF:
        a.e("s_lshl_b32 s96, s84, 2"); a.e("s_add_u32 s96, s96, s82")
        a.code_prefetch(CODE_PF, 96, 128, 220, name + "_cpf")
    a.e("s_and_b32 s85, s83, 1")
    a.e("s_lshr_b32 s86, s83, 1")
    a.e("s_and_b32 s87, s84, 7")
    a.e("s_lshl_b32 s88, s86, 3")
    a.e("s_add_u32 s88, s88, s87")
    a.e("s_lshr_b32 s87, s84, 3")
    a.e("s_lshl_b32 s89, s85, 2")
    a.e("s_add_u32 s89, s89, s87")
    a.e("s_lshr_b32 s90, s88, 2")
    a.e("s_cmp_lt_u32 s88, 8")
    a.e("s_cselect_b32 s90, s90, 0")
    a.e("s_and_b32 s60, s88, 3")
    a.e("v_lshrrev_b32 v3, 3, v1")
    a.e("v_and_b32 v4, 6, v3")
    a.e("v_and_b32 v5, 7, v1")
    a.e("v_xor_b32 v4, v4, v5")
    a.e("v_lshlrev_b32 v4, 4, v4")
    a.e("v_lshl_add_u32 v10, v3, 11, v4")
    a.e("v_and_b32 v5, 15, v1")
    a.e("v_lshrrev_b32 v6, 4, v1")
    a.e("v_bfe_u32 v7, v1, 2, 2")
    a.e("v_and_b32 v8, 3, v1")
    a.e("v_lshlrev_b32 v2, 3, v6")
    a.e("v_lshrrev_b32 v3, 3, v1")
    a.e("s_lshl_b32 s91, s82, 3")
    a.e("v_add_u32 v3, s91, v3")
    a.e("v_and_b32 v4, 0x13, v3")
    a.e("v_bfe_u32 v9, v3, 2, 1")
    a.e("v_lshl_or_b32 v4, v9, 3, v4")
    a.e("v_bfe_u32 v9, v3, 3, 1")
    a.e("v_lshl_or_b32 v4, v9, 2, v4")
    a.e("v_and_b32 v9, 7, v1")
    a.e("v_lshlrev_b32 v9, 2, v9")
    a.e("v_lshl_add_u32 v13, v4, 6, v9")
    a.e("s_movk_i32 s91, 7168")
    a.e("v_mul_lo_u32 v4, v4, s91")
    a.e("v_add_u32 v12, v4, v9")
    a.e("s_lshl_b32 s91, s89, 8")
    a.e("s_lshl_b32 s92, s82, 6")
    a.e("s_add_u32 s91, s91, s92")
    a.e("s_lshl_b32 s91, s91, 11")
    a.e("s_lshl_b32 s92, s90, 16")
    for q in range(8):
        tb = q // 2
        a.e("s_add_u32 s93, s92, %d" % (tb * 32768))
        a.e("s_and_b32 s93, s93, 0x1ffff")
        a.e("s_add_u32 s93, s93, s91")
        a.e("s_add_u32 s%d, s93, %d" % (28 + q, 8 * (q & 1) * 2048 - (q & 3) * 1024) if (8 * (q & 1) * 2048 - (q & 3) * 1024) >= 0
            else "s_sub_u32 s%d, s93, %d" % (28 + q, (q & 3) * 1024 - 8 * (q & 1) * 2048))
    a.e("s_mul_i32 s38, s82, 24576")
    a.e("s_lshl_b32 s39, s82, 11")
    a.e("s_add_u32 s39, s39, %d" % WBASE)
    a.e("s_lshl_b32 s40, s82, 8")
    a.e("s_add_u32 s40, s40, %d" % (WBASE + 8192))
    a.e("s_lshl_b32 s42, s88, 5")
    a.e("s_add_u32 s42, s42, 6144")
    def wvaddr(RS):
        a.e("s_and_b32 s91, s82, 1")
        a.e("s_lshl_b32 s91, s91, 2")
        a.e("v_or_b32 v3, s91, v6")
        a.e("v_bfe_u32 v4, v1, 1, 3")
        a.e("v_xor_b32 v3, v3, v4")
        a.e("v_lshlrev_b32 v3, 5, v3")
        a.e("v_and_b32 v4, 1, v1")
        a.e("v_lshl_add_u32 v3, v4, 4, v3")
        a.e("s_movk_i32 s91, %d" % RS)
        a.e("v_mul_lo_u32 v4, v6, s91")
        a.e("v_add_u32 v11, v3, v4")
    def common_srds():
        srd(a, 4, 68, 69, 2048 * 2048)
        a.e("s_add_u32 s92, s76, s42"); a.e("s_addc_u32 s93, s77, 0")
        srd(a, 12, 92, 93, 1024 * 7168)
        srd(a, 24, 78, 79, 3584 * 2)
    a.e("s_cmp_lt_u32 s88, 8")
    a.e("s_cbranch_scc0 %s_H" % name)
    wvaddr(2048)
    a.e("s_mov_b32 s41, %d" % (32 * 2048))
    a.e("s_lshl_b32 s36, s82, 14")
    a.e("s_add_u32 s37, s36, %d" % (4 * 2048 - 1024))
    a.e("s_lshl_b32 s94, s88, 8")
    a.e("s_and_b32 s95, s60, 1")
    a.e("s_lshl_b32 s95, s95, 5")
    a.e("s_mov_b32 s43, 0")
    a.e("s_waitcnt lgkmcnt(0)")
    a.e("s_add_u32 s92, s70, s94"); a.e("s_addc_u32 s93, s71, 0")
    srd(a, 8, 92, 93, 1024 * 2048)
    a.e("s_cmp_lt_u32 s60, 2")
    a.e("s_cselect_b32 s92, s72, s74")
    a.e("s_cselect_b32 s93, s73, s75")
    a.e("s_add_u32 s92, s92, s95"); a.e("s_addc_u32 s93, s93, 0")
    srd(a, 16, 92, 93, 1024 * 64)
    common_srds()
    gen_variant(a, True, name + "_q")
    a.label("%s_H" % name)
    a.reset_counts()
    wvaddr(7168)
    a.e("s_sub_u32 s97, s88, 8")
    a.e("s_lshl_b32 s43, s97, 8")
    a.e("s_mov_b32 s41, %d" % (32 * 7168))
    a.e("s_mul_i32 s36, s82, %d" % (8 * 7168))
    a.e("s_add_u32 s37, s36, %d" % (4 * 7168 - 1024))
    a.e("s_waitcnt lgkmcnt(0)")
    a.e("s_add_u32 s92, s76, s43"); a.e("s_addc_u32 s93, s77, 0")
    srd(a, 8, 92, 93, 1024 * 7168)
    common_srds()
    gen_variant(a, False, name + "_h")
    a.label("%s_exit" % name)
    a.e("s_endpgm")
    return a.text()

if __name__ == "__main__":
    print(gen_k1("k1_kernel"))
```

```python
import sys
sys.path.insert(0, "work")
from build import build
import k1, k2, k3
prof = "prof" in sys.argv
roles = "ab"
prio = (0, 0)
for x in sys.argv:
    if x.startswith("roles="): roles = x[6:]
    if x == "burst": k1.BURST = True
    if x == "now2": k1.W2PF = False
    if x.startswith("npro="): k1.NPRO = int(x[5:])
    if x.startswith("pollu="): k2.POLL_U = int(x[6:])
    if x.startswith("outst="): k2.OUT_FLAGS = " " + x[6:].replace("+", " ")
    if x == "cpf": k1.CODE_PF = "gm_k2_kernel_exit"
    if x.startswith("st1="): k1.STORE_FLAGS = " " + x[4:].replace("+", " ")
    if x.startswith("prio="): prio = tuple(int(c) for c in x[5:])
ks = [dict(name="gm_k1_kernel", text=k1.gen_k1("gm_k1_kernel", prof=prof), grid=256, block=256, lds=159744, nfv=304, accum=256),
      dict(name="gm_k2_kernel", text=k2.gen_k2("gm_k2_kernel", prof=prof, roles=roles, prio=prio), grid=512, block=256, lds=81920, nfv=256, accum=256)]
open(sys.argv[1], "w").write(build(ks))
```

```python
from asmlib import *

WS_Q = 0
WS_H = 4 << 20
WS_H_BYTES = 64 * 224 * 1024
WS_KV = 20 << 20
WS_O = 21 << 20
WS_G = 25 << 20
WS_B = 26 << 20
WS_F = 27 << 20
WS_PROF = 48 << 20
QSCALE = 0.25503486322159136
LOG2E = 1.4426950408889634

import struct
def f2u(x): return struct.unpack("<I", struct.pack("<f", x))[0]

STORE_FLAGS = ''
BURST = False
ROT = False
EXP = set()
W2PF = True
NPRO = 22
MAXOPS = 9
WBASE = 98304
WSLOT = 10240
NWS = 6
ACC = 64
def acc(j, tb): return ACC + 16 * j + 4 * tb
ACCKV = 208
BIAS = 28
T0 = 216

def gen_variant(a, isQ, pfx):
    NG = 10 if isQ else 9
    def x_dma(s, q):
        slot = s % 3
        a.set_m0(38, slot * 8192 + (q // 4) * 4096)
        i = a.vm("buffer_load_dwordx4 v10, s[4:7], s%d offen offset:%d lds" % (28 + q, (q % 4) * 1024))
        if q == 7:
            add64(a, 4, 128)
        return i
    def w_dma(h, part):
        slot = h % NWS
        if part == 0:
            a.set_m0(39, slot * WSLOT)
            return a.vm("buffer_load_dwordx4 v11, s[8:11], s36 offen lds")
        if part == 1:
            a.set_m0(39, slot * WSLOT)
            i = a.vm("buffer_load_dwordx4 v11, s[8:11], s37 offen offset:1024 lds")
            a.e("s_add_u32 s8, s8, s41"); a.e("s_addc_u32 s9, s9, 0")
            return i
        if ROT:
            blk = part - 2
            lab = "%s_x%d_%d" % (pfx, h, part)
            a.e("s_cmp_lg_u32 s82, %d" % ((h + 2 * blk) & 3))
            a.e("s_cbranch_scc1 %s" % lab)
            a.e("s_mov_b32 m0, %d" % (WBASE + slot * WSLOT + 8192 + 1024 * blk))
            a.e("s_nop 0")
            if blk == 0: a.e("buffer_load_dwordx4 v12, s[12:15], 0 offen lds")
            else: a.e("buffer_load_dwordx4 v13, s[16:19], 0 offen lds")
            a.label(lab)
            a.cur_m0 = None
            if blk == 0: add64(a, 12, 32 * 7168)
            else: add64(a, 16, 32 * 64)
            return a.vm_n - 1
        if part == 2:
            a.set_m0(40, slot * WSLOT)
            i = a.vm("buffer_load_dword v12, s[12:15], 0 offen lds")
            add64(a, 12, 32 * 7168)
            return i
        if part == 3:
            a.set_m0(40, slot * WSLOT + 1024)
            i = a.vm("buffer_load_dword v13, s[16:19], 0 offen lds")
            add64(a, 16, 32 * 64)
            return i
    nW = 4 if isQ else 3
    wid = {}
    xid = {}
    ops = []
    for h in range(32):
        for k, p in enumerate(([2, 3, 0, 1] if isQ else [2, 0, 1]) if ROT else range(nW)):
            ops.append(dict(dl=h - 1, early=(h - 5, 5) if h >= NWS else (-9, 0), kind="w", i=h, p=p, k=k))
    for st in range(16):
        for q in range(8):
            ops.append(dict(dl=2 * st - 1, early=(2 * (st - 3) + 1, 1) if st >= 3 else (-9, 0), kind="x", i=st, p=q, k=q))
    ops.sort(key=lambda o: (o["dl"], 0 if o["kind"] == "w" else 1, o["i"], o["k"]))
    def issue(o):
        if "nodma" in EXP and o["dl"] > 2:
            (wid if o["kind"] == "w" else xid)[o["i"]] = a.vm_n - 1
            return
        if "nox" in EXP and o["dl"] > 2 and o["kind"] == "x":
            xid[o["i"]] = a.vm_n - 1
            return
        if "now" in EXP and o["dl"] > 2 and o["kind"] == "w":
            wid[o["i"]] = a.vm_n - 1
            return
        if "noextra" in EXP and o["dl"] > 2 and o["kind"] == "w" and o["p"] >= 2:
            wid[o["i"]] = a.vm_n - 1
            return
        if o["kind"] == "w":
            i = w_dma(o["i"], o["p"])
            if not (ROT and o["p"] >= 2): wid[o["i"]] = i
        else: xid[o["i"]] = x_dma(o["i"], o["p"])
    def next_op(now):
        seen = set()
        for k, o in enumerate(ops):
            key = o["kind"]
            if key in seen: continue
            if o["early"] <= now:
                return ops.pop(k)
            seen.add(key)
        return None
    bias_ids = []
    jl = [8] if isQ else list(range(9))
    for j in jl:
        if j < 8:
            i = a.vm("buffer_load_dwordx2 v[%d:%d], v2, s[24:27], s43 offen offset:%d" % (BIAS + 4 * j, BIAS + 4 * j + 1, 32 * j))
        else:
            i = a.vm("buffer_load_dwordx2 v[%d:%d], v2, s[24:27], s42 offen" % (BIAS + 4 * j, BIAS + 4 * j + 1))
        bias_ids.append(i)
    first = [o for o in ops if o["dl"] <= -1]
    first.sort(key=lambda o: (0 if (o["kind"] == "w") else 1, o["k"]))
    for o in first:
        ops.remove(o); issue(o)
    for k in range(NPRO - len(first)):
        issue(next_op((-1, 0)))
    if BURST:
        a.e("s_lshl_b32 s91, s2, 2"); a.e("s_add_u32 s91, s91, s82")
        a.e("v_lshlrev_b32 v216, 7, v1")
        a.e("s_mov_b32 s92, s76"); a.e("s_mov_b32 s93, s77"); a.e("s_mov_b32 s94, 0x%x" % (1024 * 7168)); a.e("s_mov_b32 s95, 0x00020000")
        a.e("s_mul_i32 s96, s91, 7168")
        a.e("v_cmp_gt_u32 vcc, 56, v1")
        a.e("s_and_saveexec_b64 s[98:99], vcc")
        a.vm("buffer_load_dword v217, v216, s[92:95], s96 offen")
        a.e("s_mov_b64 exec, s[98:99]")
        a.e("s_mov_b32 s92, s70"); a.e("s_mov_b32 s93, s71"); a.e("s_mov_b32 s94, 0x%x" % (1024 * 2048))
        a.e("s_lshl_b32 s96, s91, 11")
        a.e("v_cmp_gt_u32 vcc, 16, v1")
        a.e("s_and_saveexec_b64 s[98:99], vcc")
        a.vm("buffer_load_dword v218, v216, s[92:95], s96 offen")
        a.e("s_mov_b64 exec, s[98:99]")
        a.e("s_mov_b32 s92, s68"); a.e("s_mov_b32 s93, s69"); a.e("s_mov_b32 s94, 0x%x" % (2048 * 2048))
        a.e("s_lshl_b32 s96, s91, 12")
        a.e("v_cmp_gt_u32 vcc, 32, v1")
        a.e("s_and_saveexec_b64 s[98:99], vcc")
        a.vm("buffer_load_dword v219, v216, s[92:95], s96 offen")
        a.e("s_mov_b64 exec, s[98:99]")
    late_setup(a, isQ)
    a.wait(vm=bias_ids[-1])
    for j in jl:
        b = BIAS + 4 * j
        a.e("v_and_b32 v%d, 0xffff0000, v%d" % (b + 3, b + 1))
        a.e("v_lshlrev_b32 v%d, 16, v%d" % (b + 2, b + 1))
        a.e("v_and_b32 v%d, 0xffff0000, v%d" % (b + 1, b))
        a.e("v_lshlrev_b32 v%d, 16, v%d" % (b, b))
    a.wait(vm=max(wid[0], xid[0]))
    a.e("s_barrier")
    a.stamp(1)
    wfrag = {}
    def w_read(h, G):
        gi = h * NG + G
        f = gi % 4
        slot = h % NWS
        if G < 8:
            va, off = 16 + G, slot * WSLOT
            o2 = off + 1024
        elif G == 8:
            va, off = 24, slot * WSLOT
            o2 = off + 256
        else:
            va, off = 24, slot * WSLOT + 1024
            o2 = off + 256
        return [("ds_read_b64_tr_b16 a[%d:%d], v%d offset:%d" % (4 * f, 4 * f + 1, va, off), gi, 0),
                ("ds_read_b64_tr_b16 a[%d:%d], v%d offset:%d" % (4 * f + 2, 4 * f + 3, va, o2), gi, 1)]
    xfrag = {}
    def x_read(h, tb):
        s, kk = h // 2, h % 2
        base = 16 + 16 * (h % 2) + 4 * tb
        i = a.ds("ds_read_b128 a[%d:%d], v%d offset:%d" % (base, base + 3, 14 + kk, (s % 3) * 8192 + tb * 2048))
        xfrag[(h, tb)] = i
    def do_wread(item):
        txt, gi, half = item
        i = a.ds(txt)
        if half == 1: wfrag[gi] = i
    for tb in range(4): x_read(0, tb)
    for G in range(2):
        for it in w_read(0, G): do_wread(it)
    for h in range(32):
        s, kk = h // 2, h % 2
        budget = MAXOPS
        for G in range(NG):
            gi = h * NG + G
            f = gi % 4
            G2 = G + 2; h2 = h
            if G2 >= NG: G2 -= NG; h2 = h + 1
            reads = w_read(h2, G2) if h2 <= 31 else []
            need = wfrag[gi]
            if G == 0: need = max(need, xfrag[(h, 3)])
            a.wait(lg=need)
            ntb = 2 if G == 9 else 4
            for tb in range(ntb):
                d = acc(G, tb) if G < 9 else ACCKV + 4 * tb
                xb = 16 + 16 * (h % 2) + 4 * tb
                if h == 0:
                    if G == 9 or (isQ and G < 8): csrc = "0"
                    else: csrc = "v[%d:%d]" % (BIAS + 4 * G, BIAS + 4 * G + 3)
                else:
                    csrc = "v[%d:%d]" % (d, d + 3)
                a.e("v_mfma_f32_16x16x32_bf16 v[%d:%d], a[%d:%d], a[%d:%d], %s" % (d, d + 3, 4 * f, 4 * f + 3, xb, xb + 3, csrc))
                if tb == 0 and reads: do_wread(reads[0])
                if tb == 1 and reads: do_wread(reads[1])
                if tb == min(2, ntb - 1) and budget > 0:
                    o = next_op((h, G))
                    if o is not None:
                        issue(o); budget -= 1
                if tb == ntb - 1 and G >= 5 and G <= 8 and h + 1 <= 31:
                    x_read(h + 1, G - 5)
            if G == 4 and h + 1 <= 31:
                while any(o["dl"] <= h for o in ops):
                    o = next_op((h, G)); assert o is not None and o["dl"] <= h + 1, (h, o); issue(o)
                need = wid[h + 1]
                if kk == 1: need = max(need, xid[s + 1])
                if "nowait" not in EXP: a.wait(vm=need)
                if "nobar" not in EXP: a.e("s_barrier")
    assert not ops
    a.stamp(2)
    if W2PF:
        a.e("s_load_dwordx2 s[92:93], s[0:1], 64")
        a.e("s_lshl_b32 s91, s2, 2"); a.e("s_add_u32 s91, s91, s82"); a.e("s_mul_i32 s91, s91, 7168")
        a.e("v_lshlrev_b32 v3, 7, v1")
        a.e("s_waitcnt lgkmcnt(0)")
        a.e("s_mov_b32 s68, s92"); a.e("s_mov_b32 s69, s93"); a.e("s_mov_b32 s70, 0x%x" % (3584 * 2048)); a.e("s_mov_b32 s71, 0x00020000")
        a.e("v_cmp_gt_u32 vcc, 56, v1")
        a.e("s_and_saveexec_b64 s[92:93], vcc")
        a.vm("buffer_load_dword v4, v3, s[68:71], s91 offen")
        a.e("s_mov_b64 exec, s[92:93]")
        a.e("s_load_dwordx2 s[92:93], s[0:1], 32")
        a.e("s_lshl_b32 s91, s2, 2"); a.e("s_add_u32 s91, s91, s82"); a.e("s_lshl_b32 s91, s91, 11")
        a.e("s_waitcnt lgkmcnt(0)")
        a.e("s_mov_b32 s72, s92"); a.e("s_mov_b32 s73, s93"); a.e("s_mov_b32 s74, 0x%x" % (1024 * 2048)); a.e("s_mov_b32 s75, 0x00020000")
        a.e("v_cmp_gt_u32 vcc, 16, v1")
        a.e("s_and_saveexec_b64 s[92:93], vcc")
        a.vm("buffer_load_dword v5, v3, s[72:75], s91 offen")
        a.e("s_mov_b64 exec, s[92:93]")
    a.e("s_nop 7")
    a.e("s_nop 1")
    def mish_pair(src, t0, t1, t2):
        pass
    def pack_store(j, pair, dst_srd, soff_reg, imm, kind):
        A = acc(j, 2 * pair); B = acc(j, 2 * pair + 1)
        t = T0 + (16 if (j * 2 + pair) % 2 else 0)
        q = t + 12
        if kind == "H":
            for k in range(4):
                a.e("v_pk_mul_f32 v[%d:%d], v[%d:%d], s[44:45]" % (t + 2 * k, t + 2 * k + 1, A + 2 * k, A + 2 * k + 1))
            for k in range(8):
                a.e("v_exp_f32 v%d, v%d" % (t + k, t + k))
            for k in range(4):
                u = (t + 8 + 2 * k)
                a.e("v_pk_add_f32 v[%d:%d], v[%d:%d], 2.0 op_sel_hi:[1,0]" % (u, u + 1, t + 2 * k, t + 2 * k + 1))
            for k in range(4):
                u = (t + 8 + 2 * k)
                a.e("v_pk_fma_f32 v[%d:%d], v[%d:%d], v[%d:%d], 2.0 op_sel_hi:[1,1,0]" % (t + 2 * k, t + 2 * k + 1, t + 2 * k, t + 2 * k + 1, u, u + 1))
            for k in range(8):
                a.e("v_rcp_f32 v%d, v%d" % (t + k, t + k))
            for k in range(4):
                a.e("v_pk_fma_f32 v[%d:%d], v[%d:%d], s[46:47], 1.0 op_sel_hi:[1,1,0]" % (t + 2 * k, t + 2 * k + 1, t + 2 * k, t + 2 * k + 1))
            for k in range(4):
                a.e("v_pk_mul_f32 v[%d:%d], v[%d:%d], v[%d:%d]" % (t + 2 * k, t + 2 * k + 1, t + 2 * k, t + 2 * k + 1, A + 2 * k, A + 2 * k + 1))
        else:
            for k in range(4):
                a.e("v_pk_mul_f32 v[%d:%d], v[%d:%d], s[48:49]" % (t + 2 * k, t + 2 * k + 1, A + 2 * k, A + 2 * k + 1))
        a.e("v_cvt_pk_bf16_f32 v%d, v%d, v%d" % (q, t, t + 1))
        a.e("v_cvt_pk_bf16_f32 v%d, v%d, v%d" % (q + 1, t + 2, t + 3))
        a.e("v_cvt_pk_bf16_f32 v%d, v%d, v%d" % (q + 2, t + 4, t + 5))
        a.e("v_cvt_pk_bf16_f32 v%d, v%d, v%d" % (q + 3, t + 6, t + 7))
        a.e("s_nop 1")
        a.e("v_permlane16_swap_b32 v%d, v%d" % (q, q + 2))
        a.e("v_permlane16_swap_b32 v%d, v%d" % (q + 1, q + 3))
        a.vm("buffer_store_dwordx4 v[%d:%d], v25, s[%d:%d], s%d offen offset:%d%s" % (q, q + 3, dst_srd, dst_srd + 3, soff_reg, imm, STORE_FLAGS))
    for j in range(8):
        for pair in range(2):
            pack_store(j, pair, 20, (50 if j < 4 else 54) + pair, (j % 4) * 1024, "Q" if isQ else "H")
    for pair in range(2):
        pack_store(8, pair, 56, 52 + pair, 0, "H")
    if isQ:
        a.e("s_cmp_ge_u32 s60, 2")
        a.e("s_cbranch_scc1 %s_V" % pfx)
        for tb in range(2):
            d = ACCKV + 4 * tb
            a.e("v_cvt_pk_bf16_f32 v%d, v%d, v%d" % (T0 + 2 * tb, d, d + 1))
            a.e("v_cvt_pk_bf16_f32 v%d, v%d, v%d" % (T0 + 2 * tb + 1, d + 2, d + 3))
            a.vm("buffer_store_dwordx2 v[%d:%d], v26, s[64:67], s61 offen offset:%d" % (T0 + 2 * tb, T0 + 2 * tb + 1, tb * 256))
        a.e("s_branch %s_done" % pfx)
        a.label("%s_V" % pfx)
        for tb in range(2):
            d = ACCKV + 4 * tb
            a.e("v_cvt_pk_bf16_f32 v%d, v%d, v%d" % (T0 + 2 * tb, d, d + 1))
            a.e("v_cvt_pk_bf16_f32 v%d, v%d, v%d" % (T0 + 2 * tb + 1, d + 2, d + 3))
            for r in range(4):
                op = "buffer_store_short" if r % 2 == 0 else "buffer_store_short_d16_hi"
                a.vm("%s v%d, v27, s[64:67], s61 offen offset:%d" % (op, T0 + 2 * tb + r // 2, tb * 1024 + r * 16))
        a.label("%s_done" % pfx)
    a.stamp(3)
    a.e("s_waitcnt vmcnt(0)") if a.prof else None
    a.stamp(4)
    a.stamp_flush(80, 81, WS_PROF, 82, 4)
    a.e("s_endpgm")

def late_setup(a, isQ):
    a.e("s_mov_b32 s44, 0x%x" % f2u(LOG2E)); a.e("s_mov_b32 s45, s44")
    a.e("s_mov_b32 s46, 0x%x" % f2u(-2.0)); a.e("s_mov_b32 s47, s46")
    a.e("s_mov_b32 s48, 0x%x" % f2u(QSCALE)); a.e("s_mov_b32 s49, s48")
    a.e("s_lshl_b32 s94, s89, 3")
    a.e("s_lshl_b32 s95, s82, 1")
    a.e("s_add_u32 s94, s94, s95")
    a.e("s_add_u32 s95, s94, s90")
    a.e("s_xor_b32 s96, s90, 1")
    a.e("s_add_u32 s96, s94, s96")
    a.e("s_add_u32 s92, s80, 0x%x" % WS_H); a.e("s_addc_u32 s93, s81, 0")
    srd(a, 56, 92, 93, WS_H_BYTES)
    for pair, sT in ((0, 95), (1, 96)):
        a.e("s_mul_i32 s91, s%d, 224" % sT)
        a.e("s_add_u32 s91, s91, s88")
        a.e("s_add_u32 s91, s91, 192")
        a.e("s_lshl_b32 s%d, s91, 10" % (52 + pair))
    a.e("v_lshlrev_b32 v25, 4, v1")
    if isQ:
        a.e("s_cmp_lg_u32 s2, 0")
        a.e("s_cbranch_scc1 %s_noclr" % a.kname)
        a.e("s_add_u32 s92, s80, 0x%x" % WS_F); a.e("s_addc_u32 s93, s81, 0")
        srd(a, 64, 92, 93, 4096)
        a.e("s_lshl_b32 s91, s82, 10")
        a.e("v_mov_b32 v216, 0"); a.e("v_mov_b32 v217, 0"); a.e("v_mov_b32 v218, 0"); a.e("v_mov_b32 v219, 0")
        a.e("buffer_store_dwordx4 v[216:219], v25, s[64:67], s91 offen")
        a.label("%s_noclr" % a.kname)
    if isQ:
        a.e("v_lshrrev_b32 v3, 1, v6")
        a.e("v_lshl_add_u32 v3, v3, 5, v5")
        a.e("v_lshlrev_b32 v3, 4, v3")
        a.e("v_and_b32 v4, 1, v6")
        a.e("v_lshl_add_u32 v26, v4, 3, v3")
        a.e("v_bfe_u32 v3, v5, 2, 1")
        a.e("v_lshlrev_b32 v3, 5, v3")
        a.e("v_lshl_add_u32 v3, v6, 2, v3")
        a.e("v_lshlrev_b32 v3, 4, v3")
        a.e("v_and_b32 v4, 3, v5")
        a.e("v_lshrrev_b32 v9, 3, v5")
        a.e("v_lshl_add_u32 v4, v9, 2, v4")
        a.e("v_lshl_add_u32 v27, v4, 1, v3")
        a.e("s_add_u32 s92, s80, 0x%x" % WS_KV); a.e("s_addc_u32 s93, s81, 0")
        srd(a, 64, 92, 93, 64 * 4096)
        a.e("s_lshl_b32 s61, s95, 12")
        a.e("s_lshl_b32 s91, s60, 10")
        a.e("s_sub_u32 s92, s60, 2")
        a.e("s_lshl_b32 s92, s92, 8")
        a.e("s_add_u32 s92, s92, 2048")
        a.e("s_cmp_lt_u32 s60, 2")
        a.e("s_cselect_b32 s91, s91, s92")
        a.e("s_add_u32 s61, s61, s91")
        a.e("s_add_u32 s92, s80, 0x%x" % WS_Q); a.e("s_addc_u32 s93, s81, 0")
        srd(a, 20, 92, 93, 4 << 20)
        for pair, sT in ((0, 95), (1, 96)):
            a.e("s_lshl_b32 s91, s%d, 6" % sT)
            a.e("s_lshl_b32 s92, s88, 3")
            a.e("s_add_u32 s91, s91, s92")
            a.e("s_lshl_b32 s%d, s91, 10" % (50 + pair))
            a.e("s_add_u32 s%d, s%d, 4096" % (54 + pair, 50 + pair))
    else:
        a.e("s_add_u32 s92, s80, 0x%x" % WS_H); a.e("s_addc_u32 s93, s81, 0")
        srd(a, 20, 92, 93, WS_H_BYTES)
        for pair, sT in ((0, 95), (1, 96)):
            a.e("s_mul_i32 s91, s%d, 224" % sT)
            a.e("s_lshl_b32 s92, s97, 3")
            a.e("s_add_u32 s91, s91, s92")
            a.e("s_lshl_b32 s%d, s91, 10" % (50 + pair))
            a.e("s_add_u32 s%d, s%d, 4096" % (54 + pair, 50 + pair))
    a.e("v_and_b32 v3, 6, v5")
    a.e("v_xor_b32 v3, v3, v6")
    a.e("v_lshlrev_b32 v4, 4, v3")
    a.e("v_lshl_add_u32 v4, v5, 7, v4")
    a.e("v_add_u32 v14, s38, v4")
    a.e("v_xor_b32 v15, 64, v14")
    a.e("v_and_b32 v3, 1, v6")
    a.e("v_lshl_or_b32 v3, v3, 2, v7")
    a.e("v_lshl_add_u32 v4, v6, 3, v7")
    a.e("v_lshlrev_b32 v4, 8, v4")
    a.e("v_lshl_add_u32 v4, v8, 3, v4")
    a.e("v_add_u32 v4, %d, v4" % WBASE)
    for j in range(8):
        a.e("v_xor_b32 v9, %d, v3" % j)
        a.e("v_lshl_add_u32 v%d, v9, 5, v4" % (16 + j))
    a.e("v_lshrrev_b32 v9, 1, v6")
    a.e("v_lshl_or_b32 v9, v9, 4, v3")
    a.e("v_lshlrev_b32 v9, 5, v9")
    a.e("v_lshl_add_u32 v9, v8, 3, v9")
    a.e("v_add_u32 v24, %d, v9" % (WBASE + 8192))

CODE_PF = False
def gen_k1(name, prof=False):
    a = Asm()
    a.prof = prof
    a.kname = name
    a.raw(kernel_header(name))
    a.e("s_cmp_ge_u32 s2, 256")
    a.e("s_cbranch_scc1 %s_exit" % name)
    if prof: a.e("v_mov_b32 v254, 0")
    a.stamp(0)
    a.e("s_load_dwordx4 s[68:71], s[0:1], 0")
    a.e("s_load_dwordx4 s[76:79], s[0:1], 48")
    a.e("s_load_dwordx4 s[72:75], s[0:1], 16")
    a.e("s_load_dwordx2 s[80:81], s[0:1], 96")
    a.e("v_and_b32 v1, 63, v0")
    a.e("v_lshrrev_b32 v3, 6, v0")
    a.e("s_and_b32 s83, s2, 7")
    a.e("v_readfirstlane_b32 s82, v3")
    a.e("s_lshr_b32 s84, s2, 3")
    if CODE_PF:
        a.e("s_lshl_b32 s96, s84, 2"); a.e("s_add_u32 s96, s96, s82")
        a.code_prefetch(CODE_PF, 96, 128, 220, name + "_cpf")
    a.e("s_and_b32 s85, s83, 1")
    a.e("s_lshr_b32 s86, s83, 1")
    a.e("s_and_b32 s87, s84, 7")
    a.e("s_lshl_b32 s88, s86, 3")
    a.e("s_add_u32 s88, s88, s87")
    a.e("s_lshr_b32 s87, s84, 3")
    a.e("s_lshl_b32 s89, s85, 2")
    a.e("s_add_u32 s89, s89, s87")
    a.e("s_lshr_b32 s90, s88, 2")
    a.e("s_cmp_lt_u32 s88, 8")
    a.e("s_cselect_b32 s90, s90, 0")
    a.e("s_and_b32 s60, s88, 3")
    a.e("v_lshrrev_b32 v3, 3, v1")
    a.e("v_and_b32 v4, 6, v3")
    a.e("v_and_b32 v5, 7, v1")
    a.e("v_xor_b32 v4, v4, v5")
    a.e("v_lshlrev_b32 v4, 4, v4")
    a.e("v_lshl_add_u32 v10, v3, 11, v4")
    a.e("v_and_b32 v5, 15, v1")
    a.e("v_lshrrev_b32 v6, 4, v1")
    a.e("v_bfe_u32 v7, v1, 2, 2")
    a.e("v_and_b32 v8, 3, v1")
    a.e("v_lshlrev_b32 v2, 3, v6")
    a.e("v_lshrrev_b32 v3, 3, v1")
    a.e("s_lshl_b32 s91, s82, 3")
    a.e("v_add_u32 v3, s91, v3")
    a.e("v_and_b32 v4, 0x13, v3")
    a.e("v_bfe_u32 v9, v3, 2, 1")
    a.e("v_lshl_or_b32 v4, v9, 3, v4")
    a.e("v_bfe_u32 v9, v3, 3, 1")
    a.e("v_lshl_or_b32 v4, v9, 2, v4")
    a.e("v_and_b32 v9, 7, v1")
    a.e("v_lshlrev_b32 v9, 2, v9")
    a.e("v_lshl_add_u32 v13, v4, 6, v9")
    a.e("s_movk_i32 s91, 7168")
    a.e("v_mul_lo_u32 v4, v4, s91")
    a.e("v_add_u32 v12, v4, v9")
    if ROT:
        a.e("v_lshrrev_b32 v3, 1, v1")
        a.e("v_and_b32 v4, 0x13, v3")
        a.e("v_bfe_u32 v9, v3, 2, 1")
        a.e("v_lshl_or_b32 v4, v9, 3, v4")
        a.e("v_bfe_u32 v9, v3, 3, 1")
        a.e("v_lshl_or_b32 v4, v9, 2, v4")
        a.e("v_and_b32 v9, 1, v1")
        a.e("v_lshlrev_b32 v9, 4, v9")
        a.e("v_lshl_add_u32 v13, v4, 6, v9")
        a.e("v_mul_lo_u32 v4, v4, s91")
        a.e("v_add_u32 v12, v4, v9")
    a.e("s_lshl_b32 s91, s89, 8")
    a.e("s_lshl_b32 s92, s82, 6")
    a.e("s_add_u32 s91, s91, s92")
    a.e("s_lshl_b32 s91, s91, 11")
    a.e("s_lshl_b32 s92, s90, 16")
    for q in range(8):
        tb = q // 2
        a.e("s_add_u32 s93, s92, %d" % (tb * 32768))
        a.e("s_and_b32 s93, s93, 0x1ffff")
        a.e("s_add_u32 s93, s93, s91")
        a.e("s_add_u32 s%d, s93, %d" % (28 + q, 8 * (q & 1) * 2048 - (q & 3) * 1024) if (8 * (q & 1) * 2048 - (q & 3) * 1024) >= 0
            else "s_sub_u32 s%d, s93, %d" % (28 + q, (q & 3) * 1024 - 8 * (q & 1) * 2048))
    a.e("s_mul_i32 s38, s82, 24576")
    a.e("s_lshl_b32 s39, s82, 11")
    a.e("s_add_u32 s39, s39, %d" % WBASE)
    a.e("s_lshl_b32 s40, s82, 8")
    a.e("s_add_u32 s40, s40, %d" % (WBASE + 8192))
    a.e("s_lshl_b32 s42, s88, 5")
    a.e("s_add_u32 s42, s42, 6144")
    def wvaddr(RS):
        a.e("s_and_b32 s91, s82, 1")
        a.e("s_lshl_b32 s91, s91, 2")
        a.e("v_or_b32 v3, s91, v6")
        a.e("v_bfe_u32 v4, v1, 1, 3")
        a.e("v_xor_b32 v3, v3, v4")
        a.e("v_lshlrev_b32 v3, 5, v3")
        a.e("v_and_b32 v4, 1, v1")
        a.e("v_lshl_add_u32 v3, v4, 4, v3")
        a.e("s_movk_i32 s91, %d" % RS)
        a.e("v_mul_lo_u32 v4, v6, s91")
        a.e("v_add_u32 v11, v3, v4")
    def common_srds():
        srd(a, 4, 68, 69, 2048 * 2048)
        a.e("s_add_u32 s92, s76, s42"); a.e("s_addc_u32 s93, s77, 0")
        srd(a, 12, 92, 93, 1024 * 7168)
        srd(a, 24, 78, 79, 3584 * 2)
    a.e("s_cmp_lt_u32 s88, 8")
    a.e("s_cbranch_scc0 %s_H" % name)
    wvaddr(2048)
    a.e("s_mov_b32 s41, %d" % (32 * 2048))
    a.e("s_lshl_b32 s36, s82, 14")
    a.e("s_add_u32 s37, s36, %d" % (4 * 2048 - 1024))
    a.e("s_lshl_b32 s94, s88, 8")
    a.e("s_and_b32 s95, s60, 1")
    a.e("s_lshl_b32 s95, s95, 5")
    a.e("s_mov_b32 s43, 0")
    a.e("s_waitcnt lgkmcnt(0)")
    a.e("s_add_u32 s92, s70, s94"); a.e("s_addc_u32 s93, s71, 0")
    srd(a, 8, 92, 93, 1024 * 2048)
    a.e("s_cmp_lt_u32 s60, 2")
    a.e("s_cselect_b32 s92, s72, s74")
    a.e("s_cselect_b32 s93, s73, s75")
    a.e("s_add_u32 s92, s92, s95"); a.e("s_addc_u32 s93, s93, 0")
    srd(a, 16, 92, 93, 1024 * 64)
    common_srds()
    gen_variant(a, True, name + "_q")
    a.label("%s_H" % name)
    a.reset_counts()
    wvaddr(7168)
    a.e("s_sub_u32 s97, s88, 8")
    a.e("s_lshl_b32 s43, s97, 8")
    a.e("s_mov_b32 s41, %d" % (32 * 7168))
    a.e("s_mul_i32 s36, s82, %d" % (8 * 7168))
    a.e("s_add_u32 s37, s36, %d" % (4 * 7168 - 1024))
    a.e("s_waitcnt lgkmcnt(0)")
    a.e("s_add_u32 s92, s76, s43"); a.e("s_addc_u32 s93, s77, 0")
    srd(a, 8, 92, 93, 1024 * 7168)
    common_srds()
    gen_variant(a, False, name + "_h")
    a.label("%s_exit" % name)
    a.e("s_endpgm")
    return a.text()

if __name__ == "__main__":
    print(gen_k1("k1_kernel"))
```

```python
from asmlib import *
from k1 import WS_F, WS_Q, WS_KV, WS_O, WS_G, WS_H, WS_H_BYTES, WS_B, WS_PROF, f2u, LOG2E
import attn64 as A
from attn64 import VQ, VK, VV, VS, VP, VO, VL, VSEL, VNM, VT
FLAG = 65536
GATE = 180
def M32(a, d, x, y, c): A.M32(a.e, d, x, y, c)
def M16(a, d, x, y, c): A.M16(a.e, d, x, y, c)

def koff(t): return ((t // 4) % 4) * 16384 + (t % 4) * 4096

def kv_dma(a, slot):
    a.e("s_add_u32 m0, s30, %d" % (slot * 16384))
    a.e("s_add_u32 s31, s31, 16384")
    for q in range(4):
        a.e("buffer_load_dwordx4 v2, s[8:11], s31 offen offset:%d lds" % (q * 1024))

def rowmax(a, c):
    S = VS[c]
    a.e("v_max3_f32 v4, v%d, v%d, v%d" % (S, S + 1, S + 2))
    for k in range(3, 15, 2): a.e("v_max3_f32 v4, v4, v%d, v%d" % (S + k, S + k + 1))
    a.e("v_max_f32 v4, v4, v%d" % (S + 15))

def set_negm(a, c, src):
    a.e("v_mov_b32 v5, v%d" % src)
    a.e("v_mov_b32 v6, v%d" % src)
    a.e("s_nop 1")
    a.e("v_permlane32_swap_b32 v5, v6")
    a.e("s_nop 1")
    a.e("v_max_f32 v5, v5, v6")
    a.e("v_sub_f32 v5, 0, v5")
    for k in range(16): a.e("v_mov_b32 v%d, v5" % (VNM[c] + k))

def gen_gate(a):
    G = GATE
    a.e("v_mov_b32 v4, 0"); a.e("v_mov_b32 v5, 0")
    a.e("s_nop 0")
    for k in range(8):
        a.e("v_dot2c_f32_bf16 v4, v%d, v%d" % (G + 8 + k, G + k))
        a.e("v_dot2c_f32_bf16 v5, v%d, v%d" % (G + 16 + k, G + k))
    a.e("s_nop 2")
    for sh in (1, 2, 4, 8):
        for r in (4, 5): a.e("v_add_f32_dpp v%d, v%d, v%d row_shr:%d row_mask:0xf bank_mask:0xf bound_ctrl:0" % (r, r, r, sh))
        a.e("s_nop 0")
    for r in (4, 5): a.e("v_add_f32_dpp v%d, v%d, v%d row_bcast:15 row_mask:0xa bank_mask:0xf" % (r, r, r))
    a.e("s_nop 0")
    for r in (4, 5): a.e("v_add_f32_dpp v%d, v%d, v%d row_bcast:31 row_mask:0xc bank_mask:0xf" % (r, r, r))
    a.e("s_nop 0")
    for r in (4, 5): a.e("v_mul_f32 v%d, 0x%x, v%d" % (r, f2u(-LOG2E), r))
    for r in (4, 5): a.e("v_exp_f32 v%d, v%d" % (r, r))
    a.e("s_nop 0")
    for r in (4, 5): a.e("v_add_f32 v%d, 1.0, v%d" % (r, r))
    for r in (4, 5): a.e("v_rcp_f32 v%d, v%d" % (r, r))
    a.e("s_add_u32 s92, s80, 0x%x" % WS_G); a.e("s_addc_u32 s93, s81, 0"); srd(a, 24, 92, 93, 256 * 128)
    a.e("s_lshl_b32 s87, s2, 7"); a.e("s_lshl_b32 s89, s82, 3"); a.e("s_add_u32 s87, s87, s89")
    a.e("v_mov_b32 v6, s87")
    a.e("v_cmp_eq_u32 vcc, 63, v1")
    a.e("s_nop 1")
    a.e("s_and_saveexec_b64 s[90:91], vcc")
    a.e("buffer_store_dwordx2 v[4:5], v6, s[24:27], 0 offen sc1")
    a.e("s_mov_b64 exec, s[90:91]")

def gen_attn(a, name, prio):
    a.e("s_lshr_b32 s83, s2, 2")
    a.e("s_and_b32 s84, s2, 3")
    a.e("s_lshl_b32 s85, s84, 3")
    a.e("s_lshl_b32 s86, s82, 1")
    a.e("s_add_u32 s85, s85, s86")
    a.e("s_lshl_b32 s86, s83, 5"); a.e("s_add_u32 s86, s86, s85"); a.e("s_lshl_b32 s86, s86, 11")
    a.e("s_lshl_b32 s30, s82, 12")
    a.e("s_mov_b32 s88, 0")
    a.e("s_waitcnt lgkmcnt(0)")
    a.e("s_add_u32 s92, s80, 0x%x" % WS_KV); a.e("s_addc_u32 s93, s81, 0"); srd(a, 8, 92, 93, 64 * 4096)
    a.e("s_add_u32 s92, s80, 0x%x" % WS_Q); a.e("s_addc_u32 s93, s81, 0"); srd(a, 4, 92, 93, 4 << 20)
    for c in range(2):
        for s in range(2):
            a.e("buffer_load_dwordx4 v[%d:%d], v2, s[4:7], s86 offen offset:%d" % (VQ[c] + 4 * s, VQ[c] + 4 * s + 3, c * 2048 + s * 1024))
    a.label("%s_pass" % name)
    a.e("s_sub_u32 s31, s30, 16384")
    kv_dma(a, 0)
    if prio[0]: a.e("s_setprio %d" % prio[0])
    a.e("v_mov_b32 v4, 0x%x" % FLAG); a.e("v_mov_b32 v5, 0")
    a.e("ds_write_b32 v4, v5")
    a.e("s_add_u32 s92, s80, 0x%x" % WS_O); a.e("s_addc_u32 s93, s81, 0"); srd(a, 12, 92, 93, 4 << 20)
    a.e("v_bfe_u32 v4, v1, 2, 1"); a.e("v_bfe_u32 v5, v1, 4, 1")
    a.e("v_cmp_eq_u32 vcc, v4, v5")
    a.e("v_mov_b32 v6, 0x3f803f80")
    a.e("v_mov_b32 v7, 0")
    for k in range(4): a.e("v_cndmask_b32 v%d, v7, v6, vcc" % (VSEL + k))
    for c in range(2):
        for k in range(16): a.e("v_mov_b32 v%d, 0" % (VO[c] + k))
        for k in range(4): a.e("v_mov_b32 v%d, 0" % (VL[c] + k))
    for k in range(4): a.e("v_mov_b32 v%d, 0" % (VP[1] + 4 + k))
    for k in range(4): a.e("v_mov_b32 v%d, 0" % (VV + 4 + k))
    a.e("s_waitcnt vmcnt(0) lgkmcnt(0)")
    a.e("s_barrier")
    a.stamp(1)
    a.e("ds_read_b128 v[%d:%d], v2 offset:0" % (VK, VK + 3))
    a.e("ds_read_b128 v[%d:%d], v2 offset:1024" % (VK + 4, VK + 7))
    kv_dma(a, 1); kv_dma(a, 2)
    a.e("s_cmp_lg_u32 s88, 0")
    a.e("s_cbranch_scc1 %s_nogate" % name)
    srd(a, 20, 68, 69, 2048 * 2048)
    srd(a, 24, 70, 71, 2048)
    a.e("s_lshl_b32 s87, s2, 3"); a.e("s_lshl_b32 s89, s82, 1"); a.e("s_add_u32 s87, s87, s89")
    a.e("s_lshl_b32 s89, s87, 11")
    a.e("v_lshlrev_b32 v3, 5, v1")
    G = GATE
    a.e("buffer_load_dwordx4 v[%d:%d], v3, s[24:27], 0 offen" % (G, G + 3))
    a.e("buffer_load_dwordx4 v[%d:%d], v3, s[24:27], 0 offen offset:16" % (G + 4, G + 7))
    a.e("buffer_load_dwordx4 v[%d:%d], v3, s[20:23], s89 offen" % (G + 8, G + 11))
    a.e("buffer_load_dwordx4 v[%d:%d], v3, s[20:23], s89 offen offset:16" % (G + 12, G + 15))
    a.e("buffer_load_dwordx4 v[%d:%d], v3, s[20:23], s89 offen offset:2048" % (G + 16, G + 19))
    a.e("buffer_load_dwordx4 v[%d:%d], v3, s[20:23], s89 offen offset:2064" % (G + 20, G + 23))
    a.label("%s_nogate" % name)
    a.e("s_cmp_lg_u32 s88, 0")
    a.e("s_cbranch_scc1 %s_havemax" % name)
    a.e("s_waitcnt lgkmcnt(0)")
    for c in range(2):
        M32(a, VS[c], VK, VQ[c], "0")
        M32(a, VS[c], VK + 4, VQ[c] + 4, VS[c])
    a.e("s_nop 15")
    for c in range(2):
        rowmax(a, c); set_negm(a, c, 4)
    a.label("%s_havemax" % name)
    a.e("s_waitcnt lgkmcnt(0)")
    a.e("s_nop 0")
    M32(a, VS[0], VK, VQ[0], VNM[0])
    M32(a, VS[0], VK + 4, VQ[0] + 4, VS[0])
    a.e("ds_read_b128 v[%d:%d], v2 offset:%d" % (VV, VV + 3, 2048))
    a.e("s_nop 15")
    a.e("s_mov_b32 s33, 4")
    a.label("%s_loop" % name)
    for i in range(16):
        ex = None
        if i % 4 == 3:
            a.e("s_waitcnt vmcnt(4)")
            a.e("s_barrier")
            slot = (i // 4 + 3) % 4
            ex = [["s_add_u32 m0, s30, %d" % (slot * 16384), "s_add_u32 s31, s31, 16384", "buffer_load_dwordx4 v2, s[8:11], s31 offen lds"]]
            ex += [["buffer_load_dwordx4 v2, s[8:11], s31 offen offset:%d lds" % (q * 1024)] for q in range(1, 4)]
        A.phase(a.e, 0, i, koff, extra=ex)
        A.phase(a.e, 1, i, koff)
    a.e("s_cmp_lg_u32 s33, 4")
    a.e("s_cbranch_scc1 %s_nog2" % name)
    a.e("s_cmp_lg_u32 s88, 0")
    a.e("s_cbranch_scc1 %s_nog2" % name)
    gen_gate(a)
    a.label("%s_nog2" % name)
    a.e("s_sub_u32 s33, s33, 1")
    a.e("s_cmp_lg_u32 s33, 0")
    a.e("s_cbranch_scc1 %s_loop" % name)
    a.e("s_waitcnt vmcnt(0) lgkmcnt(0)")
    M32(a, VO[1], VV + 4, VP[1] + 4, VO[1])
    M16(a, VL[1], VSEL, VP[1] + 4, VL[1])
    a.stamp(2)
    a.e("s_nop 15")
    a.e("v_mov_b32 v5, 0x%x" % f2u(2.0 ** 30))
    a.e("v_mov_b32 v7, 0")
    a.e("s_mov_b64 s[34:35], 0")
    for c in range(2):
        a.e("v_rcp_f32 v4, v%d" % VL[c])
        a.e("v_cmp_nle_f32 vcc, v%d, v5" % VL[c])
        a.e("s_or_b64 s[34:35], s[34:35], vcc")
        for k in range(16): a.e("v_mul_f32 v%d, v%d, v4" % (VO[c] + k, VO[c] + k))
        for k in range(16): a.e("v_fma_f32 v7, v%d, 0, v7" % (VO[c] + k))
    a.e("v_cmp_u_f32 vcc, v7, v7")
    a.e("s_or_b64 s[34:35], s[34:35], vcc")
    for c in range(2):
        for k in range(8): a.e("v_cvt_pk_bf16_f32 v%d, v%d, v%d" % (VT + 8 * c + k, VO[c] + 2 * k, VO[c] + 2 * k + 1))
    for c in range(2):
        for m in range(2):
            a.e("buffer_store_dwordx4 v[%d:%d], v2, s[12:15], s86 offen offset:%d sc1" % (VT + 8 * c + 4 * m, VT + 8 * c + 4 * m + 3, c * 2048 + m * 1024))
    a.e("s_cmp_lg_u32 s88, 0")
    a.e("s_cbranch_scc1 %s_ok" % name)
    a.e("s_cmp_eq_u64 s[34:35], 0")
    a.e("s_cbranch_scc1 %s_ok" % name)
    a.e("v_mov_b32 v4, 0x%x" % FLAG); a.e("v_mov_b32 v5, 1")
    a.e("ds_write_b32 v4, v5")
    a.label("%s_ok" % name)
    a.stamp(3)
    a.e("s_waitcnt vmcnt(0) lgkmcnt(0)")
    a.e("s_barrier")
    a.e("v_mov_b32 v4, 0x%x" % FLAG)
    a.e("ds_read_b32 v5, v4")
    a.e("s_waitcnt lgkmcnt(0)")
    a.e("v_readfirstlane_b32 s36, v5")
    a.e("s_nop 3")
    a.e("s_cmp_eq_u32 s36, 0")
    a.e("s_cbranch_scc1 %s_store" % name)
    a.e("s_cmp_lg_u32 s88, 0")
    a.e("s_cbranch_scc1 %s_store" % name)
    a.e("s_barrier")
    a.e("s_mov_b32 s88, 1")
    a.e("v_mov_b32 v8".replace("v8", "v%d" % VT) + ", 0xff800000")
    a.e("v_mov_b32 v%d, 0xff800000" % (VT + 1))
    a.e("s_mov_b32 s37, 0")
    a.label("%s_mx" % name)
    a.e("buffer_load_dwordx4 v[%d:%d], v2, s[8:11], s37 offen" % (VK, VK + 3))
    a.e("buffer_load_dwordx4 v[%d:%d], v2, s[8:11], s37 offen offset:1024" % (VK + 4, VK + 7))
    a.e("s_waitcnt vmcnt(0)")
    for c in range(2):
        M32(a, VS[c], VK, VQ[c], "0")
        M32(a, VS[c], VK + 4, VQ[c] + 4, VS[c])
    a.e("s_nop 15")
    for c in range(2):
        for k in range(0, 16, 2): a.e("v_max3_f32 v%d, v%d, v%d, v%d" % (VT + c, VT + c, VS[c] + k, VS[c] + k + 1))
    a.e("s_add_u32 s37, s37, 4096")
    a.e("s_cmp_lt_u32 s37, %d" % (64 * 4096))
    a.e("s_cbranch_scc1 %s_mx" % name)
    for c in range(2): set_negm(a, c, VT + c)
    a.e("s_branch %s_pass" % name)
    a.label("%s_store" % name)
    a.e("s_cmp_lg_u32 s82, 0")
    a.e("s_cbranch_scc1 %s_nosig" % name)
    a.e("s_add_u32 s92, s80, 0x%x" % WS_F); a.e("s_addc_u32 s93, s81, 0"); srd(a, 24, 92, 93, 4096)
    a.e("s_lshr_b32 s87, s2, 4"); a.e("s_lshl_b32 s87, s87, 8")
    a.e("s_and_b32 s89, s2, 15"); a.e("s_lshl_b32 s89, s89, 2"); a.e("s_add_u32 s87, s87, s89")
    a.e("v_mov_b32 v6, s87"); a.e("v_mov_b32 v4, 1")
    a.e("v_cmp_eq_u32 vcc, 0, v1")
    a.e("s_nop 1")
    a.e("s_and_saveexec_b64 s[90:91], vcc")
    a.e("buffer_store_dword v4, v6, s[24:27], 0 offen sc1")
    a.e("s_mov_b64 exec, s[90:91]")
    a.label("%s_nosig" % name)
    a.stamp(4)
    a.stamp_flush(80, 81, WS_PROF + (1 << 20), 82, 4)
    a.e("s_endpgm")

NHR = 20
NWU = 8
BH = 32
BA = 144
BAC = 168
AAC = 200
POLL_U = 55
OUT_FLAGS = ''
OBURST = 4
OLOAD_FLAGS = ' sc1'
ACQ = False
def gen_b(a, name, prio):
    a.e("s_sub_u32 s83, s2, 256")
    a.e("s_and_b32 s84, s83, 7"); a.e("s_lshr_b32 s91, s83, 3")
    a.e("s_lshr_b32 s85, s84, 1"); a.e("s_and_b32 s86, s84, 1")
    a.e("s_lshl_b32 s85, s85, 2"); a.e("s_lshr_b32 s87, s91, 3"); a.e("s_add_u32 s85, s85, s87")
    a.e("s_lshl_b32 s86, s86, 3"); a.e("s_and_b32 s87, s91, 7"); a.e("s_add_u32 s86, s86, s87")
    a.e("v_lshrrev_b32 v3, 3, v1")
    a.e("v_bfe_u32 v4, v1, 4, 1")
    a.e("v_lshlrev_b32 v4, 2, v4")
    a.e("v_and_b32 v5, 7, v1")
    a.e("v_xor_b32 v4, v4, v5")
    a.e("v_lshlrev_b32 v4, 4, v4")
    a.e("v_lshl_add_u32 v10, v3, 11, v4")
    a.e("s_lshl_b32 s90, s85, 2"); a.e("s_add_u32 s90, s90, s82")
    a.e("s_mul_i32 s31, s90, %d" % (224 * 1024))
    a.e("s_lshl_b32 s38, s90, 16")
    a.e("s_lshl_b32 s33, s82, 15")
    a.e("s_add_u32 s32, s33, %d" % (8 * 2048 - 1024))
    a.e("s_lshl_b32 s35, s82, 11")
    a.e("s_lshl_b32 s89, s86, 7")
    a.e("s_waitcnt lgkmcnt(0)")
    a.e("s_add_u32 s92, s74, s89"); a.e("s_addc_u32 s93, s75, 0"); srd(a, 16, 92, 93, 3584 * 2048)
    a.e("s_add_u32 s92, s80, 0x%x" % WS_H); a.e("s_addc_u32 s93, s81, 0"); srd(a, 8, 92, 93, WS_H_BYTES)
    NG = 288; NU = 72; GB = 224; UB = 56
    uid = {}; hid = {}
    def wdma(u):
        sb = 16 if u < UB else 44
        a.set_m0(35, (u % NWU) * 8192)
        a.vm("buffer_load_dwordx4 v10, s[%d:%d], s33 offen lds" % (sb, sb + 3))
        uid[u] = a.vm("buffer_load_dwordx4 v10, s[%d:%d], s32 offen offset:1024 lds" % (sb, sb + 3))
        add64(a, sb, 64 * 2048)
    def hload(g):
        r = BH + 4 * (g % NHR)
        if g < GB:
            hid[g] = a.vm("buffer_load_dwordx4 v[%d:%d], v2, s[8:11], s31 offen offset:%d" % (r, r + 3, (g % 4) * 1024))
            if g % 4 == 3: a.e("s_add_u32 s31, s31, 4096")
        else:
            hid[g] = a.vm("buffer_load_dwordx4 v[%d:%d], v2, s[4:7], s38 offen offset:%d%s" % (r, r + 3, (g % 4) * 1024, OLOAD_FLAGS))
            if g % 4 == 3: a.e("s_add_u32 s38, s38, 4096")
    wdma(0)
    for g in range(3): hload(g)
    wdma(1)
    hload(3)
    nh = 4; nu = 2
    if prio[1]: a.e("s_setprio %d" % prio[1])
    a.e("s_add_u32 s92, s76, s89"); a.e("s_addc_u32 s93, s77, 0"); srd(a, 44, 92, 93, 1024 * 2048)
    a.e("s_add_u32 s92, s80, 0x%x" % WS_O); a.e("s_addc_u32 s93, s81, 0"); srd(a, 4, 92, 93, 4 << 20)
    a.e("s_add_u32 s92, s80, 0x%x" % WS_G); a.e("s_addc_u32 s93, s81, 0"); srd(a, 20, 92, 93, 256 * 128)
    srd(a, 24, 78, 79, 2048 * 2048)
    a.e("s_add_u32 s92, s80, 0x%x" % WS_F); a.e("s_addc_u32 s93, s81, 0"); srd(a, 40, 92, 93, 4096)
    a.e("v_lshrrev_b32 v3, 5, v1")
    a.e("v_bfe_u32 v4, v1, 2, 2")
    a.e("v_bfe_u32 v5, v1, 4, 1")
    a.e("v_and_b32 v6, 3, v1")
    a.e("v_lshrrev_b32 v7, 1, v4")
    a.e("v_lshlrev_b32 v7, 6, v7")
    a.e("v_lshl_add_u32 v7, v5, 5, v7")
    a.e("v_lshl_add_u32 v7, v6, 3, v7")
    a.e("v_lshl_add_u32 v8, v3, 3, v4")
    a.e("v_lshl_add_u32 v12, v8, 7, v7")
    a.e("v_xor_b32 v13, 64, v12")
    a.e("v_lshl_add_u32 v8, v3, 2, v4")
    a.e("v_lshl_add_u32 v14, v8, 7, v7")
    a.e("v_xor_b32 v15, 64, v14")
    a.e("v_and_b32 v4, 31, v1")
    a.e("s_lshl_b32 s91, s90, 5")
    a.e("v_add_u32 v4, s91, v4")
    a.e("v_lshrrev_b32 v5, 3, v4")
    a.e("v_and_b32 v6, 7, v4")
    a.e("v_lshlrev_b32 v6, 2, v6")
    a.e("v_lshl_add_u32 v16, v5, 7, v6")
    a.e("v_lshlrev_b32 v17, 11, v4")
    a.e("v_lshl_add_u32 v17, v3, 4, v17")
    a.e("s_mov_b32 s36, s89")
    a.e("s_lshl_b32 s37, s85, 8")
    a.wait(vm=uid[0]); a.e("s_barrier")
    a.stamp(1)
    fr = {}
    def reads(g):
        u, kk = g // 4, g % 4
        so = (u % NWU) * 8192 + kk * 2048
        f = g % 3
        va, d = (12, 512) if g < GB else (14, 1024)
        for ng in range(2):
            a.ds("ds_read_b64_tr_b16 v[%d:%d], v%d offset:%d" % (BA + 8 * f + 4 * ng, BA + 8 * f + 4 * ng + 1, va + ng, so))
            fr[g] = a.ds("ds_read_b64_tr_b16 v[%d:%d], v%d offset:%d" % (BA + 8 * f + 4 * ng + 2, BA + 8 * f + 4 * ng + 3, va + ng, so + d))
    reads(0); reads(1)
    polled = False
    for g in range(NG):
        u, kk = g // 4, g % 4
        f = g % 3
        if kk == 2 and u + 1 < NU:
            assert u + 1 in uid
            if u == POLL_U:
                a.stamp(5)
                a.e("s_cmp_lg_u32 s82, 0")
                a.e("s_cbranch_scc1 %s_polled" % name)
                a.e("v_and_b32 v4, 15, v1")
                a.e("v_lshlrev_b32 v4, 2, v4")
                a.e("s_mov_b32 s96, 0x40000")
                a.label("%s_poll" % name)
                a.e("buffer_load_dword v5, v4, s[40:43], s37 offen sc1")
                a.e("s_waitcnt vmcnt(0)")
                a.e("v_cmp_eq_u32 vcc, 1, v5")
                a.e("s_nop 3")
                a.e("s_cmp_eq_u64 vcc, exec")
                a.e("s_cbranch_scc1 %s_polled" % name)
                a.e("s_sleep 6")
                a.e("s_sub_u32 s96, s96, 1")
                a.e("s_cmp_lg_u32 s96, 0")
                a.e("s_cbranch_scc1 %s_poll" % name)
                a.label("%s_polled" % name)
                polled = True
            a.wait(vm=uid[u + 1]); a.e("s_barrier")
            if u == POLL_U:
                if ACQ:
                    a.e("buffer_inv sc1")
                gid = a.vm("buffer_load_dword v22, v16, s[20:23], 0 offen sc1")
                a.stamp(2)
        if g + 2 < NG: reads(g + 2)
        assert g in hid
        a.wait(vm=hid[g], lg=fr[g])
        if g == GB: a.stamp(6)
        if g == GB + 32: a.stamp(7)
        hb = BH + 4 * (g % NHR)
        acc = BAC if g < GB else AAC
        for ng in range(2):
            M32(a, acc + 16 * ng, BA + 8 * f + 4 * ng, hb, "0" if g in (0, GB) else acc + 16 * ng)
        cnt = 0
        while nh < min(g + 1 + NHR, NG) and cnt < (OBURST if polled else 2) and (nh < GB or polled):
            hload(nh); nh += 1; cnt += 1
        if nu < NU and (nu < NWU or (u, kk) >= (nu - NWU + 1, 2)):
            wdma(nu); nu += 1
    a.stamp(3)
    a.wait(vm=gid)
    a.e("v_sub_f32 v23, 1.0, v22")
    for k in range(32): a.e("v_mul_f32 v%d, v%d, v23" % (BAC + k, BAC + k))
    for k in range(32): a.e("v_fmac_f32 v%d, v%d, v22" % (BAC + k, AAC + k))
    for k in range(16): a.e("v_cvt_pk_bf16_f32 v%d, v%d, v%d" % (BH + k, BAC + 2 * k, BAC + 2 * k + 1))
    a.e("s_nop 1")
    for q in range(4):
        b = BH + 4 * q
        a.e("v_permlane32_swap_b32 v%d, v%d" % (b, b + 2))
        a.e("v_permlane32_swap_b32 v%d, v%d" % (b + 1, b + 3))
    for q in range(4):
        b = BH + 4 * q
        a.vm("buffer_store_dwordx4 v[%d:%d], v17, s[24:27], s36 offen offset:%d%s" % (b, b + 3, 32 * q, OUT_FLAGS))
    if a.prof: a.e("s_waitcnt vmcnt(0)")
    a.stamp(4)
    a.stamp_flush(80, 81, WS_PROF + (1 << 20), 82, 4)
    a.e("s_endpgm")

def gen_k2(name, prof=False, roles="ab", prio=(0, 0)):
    a = Asm(); a.prof = prof
    a.PROF_V = 254
    a.raw(kernel_header(name))
    a.e("s_cmp_ge_u32 s2, 512")
    a.e("s_cbranch_scc1 %s_exit" % name)
    if prof: a.e("v_mov_b32 v254, 0")
    a.stamp(0)
    a.e("s_load_dwordx2 s[80:81], s[0:1], 96")
    a.e("s_load_dwordx2 s[68:69], s[0:1], 0")
    a.e("s_load_dwordx2 s[70:71], s[0:1], 72")
    a.e("s_load_dwordx2 s[74:75], s[0:1], 64")
    a.e("s_load_dwordx2 s[76:77], s[0:1], 32")
    a.e("s_load_dwordx4 s[%d:%d], s[0:1], 80" % (48, 51))
    a.e("v_and_b32 v1, 63, v0")
    a.e("v_lshrrev_b32 v3, 6, v0")
    a.e("v_lshlrev_b32 v2, 4, v1")
    a.e("v_readfirstlane_b32 s82, v3")
    a.e("s_waitcnt lgkmcnt(0)")
    a.e("s_mov_b32 s78, s48"); a.e("s_mov_b32 s79, s49"); a.e("s_mov_b32 s72, s50"); a.e("s_mov_b32 s73, s51")
    a.e("s_cmp_ge_u32 s2, 256")
    a.e("s_cbranch_scc1 %s_roleb" % name)
    if "a" in roles: gen_attn(a, name, prio)
    else: a.e("s_endpgm")
    a.label("%s_roleb" % name)
    a.reset_counts()
    if "b" in roles: gen_b(a, name, prio)
    else: a.e("s_endpgm")
    a.label("%s_exit" % name)
    a.e("s_endpgm")
    return a.text()
```

```python
import sys
sys.path.insert(0, "work")
from build import build
import k1, k2, k3
prof = "prof" in sys.argv
roles = "ab"
prio = (0, 0)
for x in sys.argv:
    if x.startswith("roles="): roles = x[6:]
    if x == "burst": k1.BURST = True
    if x == "rot": k1.ROT = True
    if x.startswith("exp="): k1.EXP = set(x[4:].split("+"))
    if x.startswith("oload="): k2.OLOAD_FLAGS = (" " + x[6:].replace("+", " ")).rstrip()
    if x == "acq": k2.ACQ = True
    if x.startswith("oburst="): k2.OBURST = int(x[7:])
    if x.startswith("nhr="): k2.NHR = int(x[4:])
    if x == "now2": k1.W2PF = False
    if x.startswith("npro="): k1.NPRO = int(x[5:])
    if x.startswith("pollu="): k2.POLL_U = int(x[6:])
    if x.startswith("outst="): k2.OUT_FLAGS = " " + x[6:].replace("+", " ")
    if x == "cpf": k1.CODE_PF = "gm_k2_kernel_exit"
    if x.startswith("st1="): k1.STORE_FLAGS = " " + x[4:].replace("+", " ")
    if x.startswith("prio="): prio = tuple(int(c) for c in x[5:])
ks = [dict(name="gm_k1_kernel", text=k1.gen_k1("gm_k1_kernel", prof=prof), grid=256, block=256, lds=159744, nfv=304, accum=256),
      dict(name="gm_k2_kernel", text=k2.gen_k2("gm_k2_kernel", prof=prof, roles=roles, prio=prio), grid=512, block=256, lds=81920, nfv=256, accum=256)]
open(sys.argv[1], "w").write(build(ks))
```

```python
from asmlib import *
import struct
def f2u(x): return struct.unpack("<I", struct.pack("<f", x))[0]
import attn64 as A
from attn64 import VQ, VK, VV, VS, VP, VO, VL, VSEL, VNM, VT

WS_H = 4 << 20; WS_H_BYTES = 64 * 224 * 1024
WS_KV = 20 << 20; WS_O = 21 << 20; WS_G = 25 << 20; WS_F = 27 << 20; WS_PROF = 48 << 20
F_KV = 0; F_H = 2048; F_O = 6144; F_BYTES = 12288
QSCALE = 0.25503486322159136
LOG2E = 1.4426950408889634
X, WQ, WK, WV, WO, W1, B1P, W2, GW, OUT, DBG, WS = 60, 62, 64, 66, 68, 72, 74, 76, 78, 80, 82, 84
SW, SMT, SNT, SID = 86, 87, 88, 89
FLAG = 65536; GATE = 180
PRIO = dict(a1=2, attn=0, b1=2, b=0, mish=3)
SPIN = 0x40000
PF_W1 = False
PF_B1 = 0
PF_A1 = 0
DIAG = None
ROT_B1 = 0
EXP = set()
PF_W2 = True

def M32(a, d, x, y, c): A.M32(a.e, d, x, y, c)
def M16(a, d, x, y, c): A.M16(a.e, d, x, y, c)
def base(a, d, ptr, add, nbytes):
    if add is None:
        srd(a, d, ptr, ptr + 1, nbytes)
    else:
        a.e("s_add_u32 s92, s%d, %s" % (ptr, add)); a.e("s_addc_u32 s93, s%d, 0" % (ptr + 1))
        srd(a, d, 92, 93, nbytes)

def rot_adv(a, sb, blo, sk, step, total):
    a.e("s_add_u32 s%d, s%d, %d" % (sk, sk, step))
    a.e("s_cmp_eq_u32 s%d, %d" % (sk, total))
    a.e("s_cselect_b32 s%d, 0, s%d" % (sk, sk))
    a.e("s_add_u32 s%d, s%d, s%d" % (sb, blo, sk)); a.e("s_addc_u32 s%d, s%d, 0" % (sb + 1, blo + 1))

def poll(a, tag, srd4, voff, soff, nlanes_mask_exec=None):
    a.e("s_mov_b32 s96, 0x%x" % SPIN)
    a.label(tag)
    a.e("buffer_load_dword v5, %s, s[%d:%d], %s offen sc1" % (voff, srd4, srd4 + 3, soff))
    a.e("s_waitcnt vmcnt(0)")
    a.e("v_cmp_eq_u32 vcc, 1, v5")
    a.e("s_nop 3")
    a.e("s_cmp_eq_u64 vcc, exec")
    a.e("s_cbranch_scc1 %s_ok" % tag)
    a.e("s_sleep 6")
    a.e("s_sub_u32 s96, s96, 1")
    a.e("s_cmp_lg_u32 s96, 0")
    a.e("s_cbranch_scc1 %s" % tag)
    a.label("%s_ok" % tag)

CLR = 253
def early_cleared(a, tag):
    a.e("s_cmp_lg_u32 s%d, 0" % SW); a.e("s_cbranch_scc1 %s" % tag)
    base(a, 52, DBG, None, 256)
    a.e("s_and_b32 s97, s2, 1"); a.e("s_lshl_b32 s97, s97, 7")
    a.e("v_mov_b32 v4, s97")
    a.e("buffer_load_dword v%d, v4, s[52:55], 0 offen sc1" % CLR)
    a.label(tag)

def check_cleared(a, tag):
    a.e("v_readfirstlane_b32 s97, v%d" % CLR)
    a.e("s_nop 3")
    a.e("s_cmp_eq_u32 s97, 1"); a.e("s_cbranch_scc1 %s_ok" % tag)
    base(a, 52, DBG, None, 256)
    a.e("s_and_b32 s97, s2, 1"); a.e("s_lshl_b32 s97, s97, 7")
    a.e("v_mov_b32 v4, s97")
    poll(a, tag, 52, "v4", "0")

def set_flag(a, soff_reg, nrep=1):
    base(a, 52, WS, "0x%x" % WS_F, F_BYTES)
    a.e("v_lshlrev_b32 v6, 8, v1"); a.e("v_add_u32 v6, s%d, v6" % soff_reg)
    a.e("v_mov_b32 v4, 1")
    a.e("v_cmp_gt_u32 vcc, %d, v1" % nrep)
    a.e("s_nop 1")
    a.e("s_and_saveexec_b64 s[90:91], vcc")
    a.e("buffer_store_dword v4, v6, s[52:55], 0 offen sc1")
    a.e("s_mov_b64 exec, s[90:91]")

def wait_flags(a, tag, soff_reg, mask):
    base(a, 52, WS, "0x%x" % WS_F, F_BYTES)
    a.e("v_and_b32 v4, %d, v1" % mask); a.e("v_lshlrev_b32 v4, 2, v4")
    poll(a, tag, 52, "v4", "s%d" % soff_reg)

AX = 32
AA = 64
AQ = 100
A_XD0, A_XD1, A_WD, A_KD = 204, 205, 206, 207
A_XR, A_WR, A_KR = 208, 212, 214
LA_W, LA_KV, LA_X = 0, 32768, 49152

def a1_setup(a):
    a.e("v_lshrrev_b32 v3, 3, v1")
    a.e("v_lshrrev_b32 v4, 4, v1")
    a.e("v_and_b32 v5, 7, v1")
    a.e("v_xor_b32 v4, v4, v5")
    a.e("v_lshlrev_b32 v4, 4, v4")
    a.e("v_lshl_add_u32 v%d, v3, 11, v4" % A_XD0)
    a.e("v_xor_b32 v%d, 64, v%d" % (A_XD1, A_XD0))
    a.e("v_bfe_u32 v4, v1, 4, 1"); a.e("v_lshlrev_b32 v4, 2, v4"); a.e("v_xor_b32 v4, v4, v5"); a.e("v_lshlrev_b32 v4, 4, v4")
    a.e("v_lshl_add_u32 v%d, v3, 11, v4" % A_WD)
    a.e("v_lshrrev_b32 v3, 2, v1"); a.e("v_and_b32 v4, 3, v1"); a.e("v_lshlrev_b32 v4, 4, v4")
    a.e("v_lshl_add_u32 v%d, v3, 6, v4" % A_KD)
    a.e("s_lshl_b32 s91, s%d, 7" % SMT); a.e("s_lshl_b32 s92, s%d, 5" % SW); a.e("s_add_u32 s91, s91, s92"); a.e("s_lshl_b32 s91, s91, 11")
    for q in range(4): a.e("s_add_u32 s%d, s91, %d" % (28 + q, q * (8 * 2048 - 1024)))
    a.e("s_lshl_b32 s33, s%d, 15" % SW); a.e("s_add_u32 s32, s33, %d" % (8 * 2048 - 1024))
    a.e("s_lshl_b32 s34, s%d, 10" % SW)
    a.e("s_lshl_b32 s35, s%d, 11" % SW)
    a.e("s_lshl_b32 s36, s%d, 10" % SW); a.e("s_add_u32 s36, s36, %d" % LA_KV)
    a.e("s_lshl_b32 s37, s%d, 13" % SW); a.e("s_add_u32 s37, s37, %d" % LA_X)

def a1_reads_setup(a):
    a.e("v_and_b32 v3, 31, v1"); a.e("v_lshrrev_b32 v4, 5, v1")
    a.e("v_bfe_u32 v5, v3, 1, 3"); a.e("v_xor_b32 v5, v5, v4"); a.e("v_lshlrev_b32 v5, 4, v5")
    a.e("v_lshl_add_u32 v5, v3, 7, v5"); a.e("v_add_u32 v5, s37, v5")
    for kk in range(4): a.e("v_xor_b32 v%d, %d, v5" % (A_XR + kk, kk * 32))
    a.e("v_bfe_u32 v6, v1, 2, 2"); a.e("v_bfe_u32 v5, v1, 4, 1"); a.e("v_and_b32 v7, 3, v1")
    a.e("v_lshlrev_b32 v3, 5, v5"); a.e("v_lshl_add_u32 v3, v7, 3, v3")
    a.e("v_lshl_add_u32 v4, v4, 3, v6")
    a.e("v_lshrrev_b32 v5, 1, v6"); a.e("v_lshl_add_u32 v5, v5, 6, v3")
    a.e("v_lshl_add_u32 v%d, v4, 7, v5" % A_WR); a.e("v_xor_b32 v%d, 64, v%d" % (A_WR + 1, A_WR))
    a.e("v_lshl_add_u32 v%d, v4, 6, v3" % A_KR); a.e("v_add_u32 v%d, %d, v%d" % (A_KR, LA_KV, A_KR))

def gen_a1(a, name, kind):
    NU = 16
    uid = {}; xid = {}
    def wdma1(u, p):
        if p == 0:
            a.set_m0(35, LA_W + (u % 4) * 8192)
            uid[u] = a.vm("buffer_load_dwordx4 v%d, s[8:11], s33 offen lds" % A_WD)
        elif p == 1:
            a.set_m0(35, LA_W + (u % 4) * 8192)
            uid[u] = a.vm("buffer_load_dwordx4 v%d, s[8:11], s32 offen offset:1024 lds" % A_WD)
            add64(a, 8, 64 * 2048)
        else:
            a.set_m0(36, (u % 4) * 4096)
            uid[u] = a.vm("buffer_load_dwordx4 v%d, s[12:15], s34 offen lds" % A_KD)
            add64(a, 12, 64 * 64)
    NWP = 3 if kind else 2
    def wdma(u):
        for p in range(NWP): wdma1(u, p)
    def xdma1(u, q):
        a.set_m0(37, (u % 2) * 4096)
        xid[u] = a.vm("buffer_load_dwordx4 v%d, s[4:7], s%d offen offset:%d lds" % (A_XD0 + (q & 1), 28 + q, q * 1024))
        if q == 3: add64(a, 4, 128)
    def xdma(u):
        for q in range(4): xdma1(u, q)
    wdma(0); xdma(0); xdma(1); wdma(1)
    a1_reads_setup(a)
    if PF_W1:
        a.e("s_mul_i32 s91, s%d, 448" % SNT); a.e("s_and_b32 s91, s91, 0xffffff80")
        base(a, 16, W1, "s91", 1024 * 7168)
        a.e("s_and_b32 s91, s%d, 3" % SMT); a.e("s_lshl_b32 s91, s91, 4")
        a.e("v_lshrrev_b32 v3, 2, v1"); a.e("v_add_u32 v3, s91, v3"); a.e("s_movk_i32 s91, 7168"); a.e("v_mul_lo_u32 v3, v3, s91")
        a.e("v_and_b32 v4, 3, v1"); a.e("v_lshl_add_u32 v215, v4, 7, v3")
        a.e("s_mov_b32 s38, %d" % (2 * 64 * 7168))
    def pfa(uu, wave):
        lab = "%s_pa%d" % (name, uu)
        a.e("s_cmp_lg_u32 s%d, %d" % (SW, wave)); a.e("s_cbranch_scc1 %s" % lab)
        a.e("buffer_load_dword v217, v218, s[20:23], s39 offen")
        a.e("buffer_load_dword v217, v219, s[24:27], s38 offen")
        a.label(lab)
        a.e("s_add_u32 s39, s39, %d" % (64 * 2048)); a.e("s_add_u32 s38, s38, 128")
    if PF_A1:
        a.e("s_lshl_b32 s91, s%d, 7" % SNT)
        base(a, 20, WQ, "s91", 1024 * 2048)
        base(a, 24, X, None, 2048 * 2048)
        a.e("v_mov_b32 v4, 0x40000000"); a.e("v_cmp_le_u32 vcc, 16, v1")
        a.e("s_and_b32 s91, s%d, 3" % SMT); a.e("s_lshl_b32 s91, s91, 4"); a.e("v_add_u32 v3, s91, v1"); a.e("v_lshlrev_b32 v3, 11, v3")
        a.e("v_cndmask_b32 v218, v3, v4, vcc")
        a.e("s_and_b32 s91, s%d, 7" % SNT); a.e("s_lshl_b32 s91, s91, 4"); a.e("s_lshl_b32 s94, s%d, 7" % SMT); a.e("s_add_u32 s91, s91, s94")
        a.e("v_add_u32 v3, s91, v1"); a.e("v_lshlrev_b32 v3, 11, v3")
        a.e("v_cndmask_b32 v219, v3, v4, vcc")
        a.e("s_mov_b32 s39, %d" % (3 * 64 * 2048)); a.e("s_mov_b32 s38, %d" % (3 * 128))
    a.wait(vm=max(uid[0], xid[0])); a.e("s_barrier")
    a.stamp(1)
    wdma(2)
    if PF_A1:
        for uu in range(3, PF_A1): pfa(uu, uu & 3)
    a.e("s_cmp_lg_u32 s2, 0"); a.e("s_cbranch_scc1 %s_nopub" % name)
    a.e("s_cmp_lg_u32 s%d, 0" % SW); a.e("s_cbranch_scc1 %s_nopub" % name)
    base(a, 52, DBG, None, 256)
    a.e("v_lshlrev_b32 v6, 7, v1"); a.e("v_mov_b32 v4, 1")
    a.e("v_cmp_gt_u32 vcc, 2, v1"); a.e("s_nop 1")
    a.e("s_and_saveexec_b64 s[90:91], vcc")
    a.e("buffer_store_dword v4, v6, s[52:55], 0 offen sc1")
    a.e("s_mov_b64 exec, s[90:91]")
    a.label("%s_nopub" % name)
    xfr = {}; fr = {}
    def xread(u, kk):
        r = AX + 16 * (u % 2) + 4 * kk
        xfr[(u, kk)] = a.ds("ds_read_b128 v[%d:%d], v%d offset:%d" % (r, r + 3, A_XR + kk, (u % 2) * 4096))
    def reads(g):
        u, kk = g // 4, g % 4
        f = g % 3; b = AA + 12 * f
        so = LA_W + (u % 4) * 8192 + kk * 2048
        for ng in range(2):
            a.ds("ds_read_b64_tr_b16 v[%d:%d], v%d offset:%d" % (b + 4 * ng, b + 4 * ng + 1, A_WR + ng, so))
            fr[g] = a.ds("ds_read_b64_tr_b16 v[%d:%d], v%d offset:%d" % (b + 4 * ng + 2, b + 4 * ng + 3, A_WR + ng, so + 512))
        if kind:
            so = (u % 4) * 4096 + kk * 1024
            a.ds("ds_read_b64_tr_b16 v[%d:%d], v%d offset:%d" % (b + 8, b + 9, A_KR, so))
            fr[g] = a.ds("ds_read_b64_tr_b16 v[%d:%d], v%d offset:%d" % (b + 10, b + 11, A_KR, so + 256))
    for kk in range(4): xread(0, kk)
    reads(0); reads(1)
    pend = []
    for g in range(NU * 4):
        u, kk = g // 4, g % 4
        f = g % 3; b = AA + 12 * f
        if kk == 0 and u + 2 < NU and u >= 0 and (u + 2) not in xid:
            pass
        if kk == 2 and u + 1 < NU:
            a.wait(vm=uid[u + 1]); a.e("s_barrier")
        if g + 2 < NU * 4: reads(g + 2)
        if kk >= 2 and u + 1 < NU:
            a.wait(vm=xid[u + 1])
            xread(u + 1, 2 * (kk - 2)); xread(u + 1, 2 * (kk - 2) + 1)
        a.wait(lg=max(fr[g], xfr[(u, kk)]))
        xb = AX + 16 * (u % 2) + 4 * kk
        def pop():
            if pend:
                f, i0, i1 = pend.pop(0); f(i0, i1)
        if kk == 0 and u + 2 < NU:
            a.wait(lg=xfr[(u, 3)])
            pend += [(xdma1, u + 2, q) for q in range(4)]
        if kk == 2 and u + 3 < NU:
            pend += [(wdma1, u + 3, p) for p in range(NWP)]
        M32(a, AQ, b, xb, "0" if g == 0 else AQ)
        pop()
        M32(a, AQ + 16, b + 4, xb, "0" if g == 0 else AQ + 16)
        pop()
        if kind == "K": M32(a, AQ + 32, b + 8, xb, "0" if g == 0 else AQ + 32)
        if kind == "V": M32(a, AQ + 32, xb, b + 8, "0" if g == 0 else AQ + 32)
        if kk == 3:
            while pend: pop()
        if kk == 1 and PF_W1 and u + 2 < NU:
            lab = "%s_pf%d" % (name, u)
            a.e("s_cmp_lg_u32 s%d, %d" % (SW, u & 3)); a.e("s_cbranch_scc1 %s" % lab)
            a.e("buffer_load_dword v216, v215, s[16:19], s38 offen")
            a.label(lab)
            a.e("s_add_u32 s38, s38, %d" % (64 * 7168))
        if kk == 2 and PF_A1 and u + PF_A1 < NU: pfa(u + PF_A1, u & 3)
        if kk == 3 and u == 9: early_cleared(a, name + "_ec")
    a.stamp(2)
    a.e("s_nop 15")
    for c in range(2):
        for k in range(8):
            r = AQ + 16 * c + 2 * k
            a.e("v_pk_mul_f32 v[%d:%d], v[%d:%d], s[44:45]" % (r, r + 1, r, r + 1))
        for k in range(8):
            r = AQ + 16 * c + 2 * k
            a.e("v_cvt_pk_bf16_f32 v%d, v%d, v%d" % (VQ[c] + k, r, r + 1))
    if kind:
        for k in range(8): a.e("v_cvt_pk_bf16_f32 v%d, v%d, v%d" % (AX + k, AQ + 32 + 2 * k, AQ + 33 + 2 * k))
        base(a, 8, WS, "0x%x" % WS_KV, 64 * 4096)
        a.e("s_lshl_b32 s91, s%d, 2" % SMT); a.e("s_add_u32 s91, s91, s%d" % SW); a.e("s_lshl_b32 s91, s91, 12")
        o = 0 if kind == "K" else 2048
        a.e("buffer_store_dwordx4 v[%d:%d], v2, s[8:11], s91 offen offset:%d sc1" % (AX, AX + 3, o))
        a.e("buffer_store_dwordx4 v[%d:%d], v2, s[8:11], s91 offen offset:%d sc1" % (AX + 4, AX + 7, o + 1024))
    a.e("s_waitcnt vmcnt(0) lgkmcnt(0)")
    a.e("s_barrier")
    a.reset_counts()

def koff(t): return ((t // 4) % 4) * 16384 + (t % 4) * 4096
def kv_dma(a, slot):
    a.e("s_add_u32 m0, s30, %d" % (slot * 16384))
    a.e("s_add_u32 s31, s31, 16384")
    for q in range(4):
        a.e("buffer_load_dwordx4 v2, s[8:11], s31 offen offset:%d sc1 lds" % (q * 1024))
def rowmax(a, c):
    S = VS[c]
    a.e("v_max3_f32 v4, v%d, v%d, v%d" % (S, S + 1, S + 2))
    for k in range(3, 15, 2): a.e("v_max3_f32 v4, v4, v%d, v%d" % (S + k, S + k + 1))
    a.e("v_max_f32 v4, v4, v%d" % (S + 15))
def set_negm(a, c, src):
    a.e("v_mov_b32 v5, v%d" % src); a.e("v_mov_b32 v6, v%d" % src)
    a.e("s_nop 1"); a.e("v_permlane32_swap_b32 v5, v6"); a.e("s_nop 1")
    a.e("v_max_f32 v5, v5, v6"); a.e("v_sub_f32 v5, 0, v5")
    for k in range(16): a.e("v_mov_b32 v%d, v5" % (VNM[c] + k))

def gen_gate(a):
    G = GATE
    a.e("v_mov_b32 v4, 0"); a.e("v_mov_b32 v5, 0"); a.e("s_nop 0")
    for k in range(8):
        a.e("v_dot2c_f32_bf16 v4, v%d, v%d" % (G + 8 + k, G + k))
        a.e("v_dot2c_f32_bf16 v5, v%d, v%d" % (G + 16 + k, G + k))
    a.e("s_nop 2")
    for sh in (1, 2, 4, 8):
        for r in (4, 5): a.e("v_add_f32_dpp v%d, v%d, v%d row_shr:%d row_mask:0xf bank_mask:0xf bound_ctrl:0" % (r, r, r, sh))
        a.e("s_nop 0")
    for r in (4, 5): a.e("v_add_f32_dpp v%d, v%d, v%d row_bcast:15 row_mask:0xa bank_mask:0xf" % (r, r, r))
    a.e("s_nop 0")
    for r in (4, 5): a.e("v_add_f32_dpp v%d, v%d, v%d row_bcast:31 row_mask:0xc bank_mask:0xf" % (r, r, r))
    a.e("s_nop 0")
    for r in (4, 5): a.e("v_mul_f32 v%d, 0x%x, v%d" % (r, f2u(-LOG2E), r))
    for r in (4, 5): a.e("v_exp_f32 v%d, v%d" % (r, r))
    a.e("s_nop 0")
    for r in (4, 5): a.e("v_add_f32 v%d, 1.0, v%d" % (r, r))
    for r in (4, 5): a.e("v_rcp_f32 v%d, v%d" % (r, r))
    base(a, 24, WS, "0x%x" % WS_G, 256 * 128)
    a.e("s_lshl_b32 s91, s%d, 4" % SMT); a.e("s_add_u32 s91, s91, s%d" % SNT); a.e("s_lshl_b32 s91, s91, 7")
    a.e("s_lshl_b32 s94, s%d, 3" % SW); a.e("s_add_u32 s91, s91, s94")
    a.e("v_mov_b32 v6, s91")
    a.e("v_cmp_eq_u32 vcc, 63, v1"); a.e("s_nop 1")
    a.e("s_and_saveexec_b64 s[90:91], vcc")
    a.e("buffer_store_dwordx2 v[4:5], v6, s[24:27], 0 offen sc1")
    a.e("s_mov_b64 exec, s[90:91]")

def gen_attn(a, name):
    a.e("s_cmp_lg_u32 s%d, 0" % SW); a.e("s_cbranch_scc1 %s_kvw" % name)
    check_cleared(a, name + "_clr")
    a.e("s_cmp_ge_u32 s%d, 2" % SNT); a.e("s_cbranch_scc1 %s_nokvsig" % name)
    a.e("s_lshl_b32 s28, s%d, 1" % SMT); a.e("s_add_u32 s28, s28, s%d" % SNT); a.e("s_lshl_b32 s28, s28, 2"); a.e("s_add_u32 s28, s28, %d" % F_KV)
    set_flag(a, 28, nrep=8)
    a.label("%s_nokvsig" % name)
    a.e("s_and_b32 s28, s2, 7"); a.e("s_lshl_b32 s28, s28, 8"); a.e("s_add_u32 s28, s28, %d" % F_KV)
    wait_flags(a, name + "_kvp", 28, 31)
    a.label("%s_kvw" % name)
    a.e("s_barrier")
    if PRIO["attn"] != PRIO["a1"]: a.e("s_setprio %d" % PRIO["attn"])
    a.e("s_lshl_b32 s38, s%d, 2" % SMT); a.e("s_add_u32 s38, s38, s%d" % SW); a.e("s_lshl_b32 s38, s38, 6")
    a.e("s_lshl_b32 s91, s%d, 2" % SNT); a.e("s_add_u32 s38, s38, s91"); a.e("s_lshl_b32 s38, s38, 10")
    a.e("s_lshl_b32 s30, s%d, 12" % SW)
    a.e("s_mov_b32 s39, 0")
    base(a, 8, WS, "0x%x" % WS_KV, 64 * 4096)
    base(a, 12, WS, "0x%x" % WS_O, 4 << 20)
    a.label("%s_pass" % name)
    a.e("s_sub_u32 s31, s30, 16384")
    kv_dma(a, 0)
    a.e("v_mov_b32 v4, 0x%x" % FLAG); a.e("v_mov_b32 v5, 0")
    a.e("ds_write_b32 v4, v5")
    a.e("v_bfe_u32 v4, v1, 2, 1"); a.e("v_bfe_u32 v5, v1, 4, 1")
    a.e("v_cmp_eq_u32 vcc, v4, v5")
    a.e("v_mov_b32 v6, 0x3f803f80"); a.e("v_mov_b32 v7, 0")
    for k in range(4): a.e("v_cndmask_b32 v%d, v7, v6, vcc" % (VSEL + k))
    for c in range(2):
        for k in range(16): a.e("v_mov_b32 v%d, 0" % (VO[c] + k))
        for k in range(4): a.e("v_mov_b32 v%d, 0" % (VL[c] + k))
    for k in range(4): a.e("v_mov_b32 v%d, 0" % (VP[1] + 4 + k))
    for k in range(4): a.e("v_mov_b32 v%d, 0" % (VV + 4 + k))
    a.e("s_waitcnt vmcnt(0) lgkmcnt(0)")
    a.e("s_barrier")
    a.stamp(3)
    a.e("ds_read_b128 v[%d:%d], v2 offset:0" % (VK, VK + 3))
    a.e("ds_read_b128 v[%d:%d], v2 offset:1024" % (VK + 4, VK + 7))
    kv_dma(a, 1); kv_dma(a, 2)
    a.e("s_cmp_lg_u32 s39, 0")
    a.e("s_cbranch_scc1 %s_havemax" % name)
    base(a, 20, X, None, 2048 * 2048)
    base(a, 24, GW, None, 2048)
    a.e("s_lshl_b32 s91, s%d, 4" % SMT); a.e("s_add_u32 s91, s91, s%d" % SNT); a.e("s_lshl_b32 s91, s91, 2"); a.e("s_add_u32 s91, s91, s%d" % SW)
    a.e("s_lshl_b32 s28, s91, 12")
    a.e("v_lshlrev_b32 v3, 5, v1")
    G = GATE
    a.e("buffer_load_dwordx4 v[%d:%d], v3, s[24:27], 0 offen" % (G, G + 3))
    a.e("buffer_load_dwordx4 v[%d:%d], v3, s[24:27], 0 offen offset:16" % (G + 4, G + 7))
    a.e("buffer_load_dwordx4 v[%d:%d], v3, s[20:23], s28 offen" % (G + 8, G + 11))
    a.e("buffer_load_dwordx4 v[%d:%d], v3, s[20:23], s28 offen offset:16" % (G + 12, G + 15))
    a.e("buffer_load_dwordx4 v[%d:%d], v3, s[20:23], s28 offen offset:2048" % (G + 16, G + 19))
    a.e("buffer_load_dwordx4 v[%d:%d], v3, s[20:23], s28 offen offset:2064" % (G + 20, G + 23))
    a.e("s_waitcnt lgkmcnt(0)")
    for c in range(2):
        M32(a, VS[c], VK, VQ[c], "0")
        M32(a, VS[c], VK + 4, VQ[c] + 4, VS[c])
    a.e("s_nop 15")
    for c in range(2):
        rowmax(a, c); set_negm(a, c, 4)
    a.label("%s_havemax" % name)
    a.e("s_waitcnt lgkmcnt(0)")
    a.e("s_nop 0")
    M32(a, VS[0], VK, VQ[0], VNM[0])
    M32(a, VS[0], VK + 4, VQ[0] + 4, VS[0])
    a.e("ds_read_b128 v[%d:%d], v2 offset:%d" % (VV, VV + 3, 2048))
    a.e("s_nop 15")
    if PF_W2:
        a.e("s_lshl_b32 s91, s%d, 7" % SNT)
        base(a, 16, W2, "s91", 3584 * 2048)
        base(a, 40, WO, "s91", 1024 * 2048)
        a.e("s_and_b32 s91, s%d, 3" % SMT); a.e("s_lshl_b32 s91, s91, 4")
        a.e("v_lshrrev_b32 v3, 4, v1"); a.e("v_lshlrev_b32 v3, 6, v3"); a.e("v_and_b32 v4, 15, v1"); a.e("v_add_u32 v3, v3, v4"); a.e("v_add_u32 v3, s91, v3")
        a.e("v_lshlrev_b32 v215, 11, v3")
        a.e("s_mov_b32 s29, 0"); a.e("s_mov_b32 s32, 0")
    a.e("s_mov_b32 s33, 4")
    a.label("%s_loop" % name)
    for i in range(16):
        ex = None
        if i % 4 == 3:
            a.e("s_waitcnt vmcnt(4)")
            a.e("s_barrier")
            slot = (i // 4 + 3) % 4
            ex = [["s_add_u32 m0, s30, %d" % (slot * 16384), "s_add_u32 s31, s31, 16384", "buffer_load_dwordx4 v2, s[8:11], s31 offen sc1 lds"]]
            ex += [["buffer_load_dwordx4 v2, s[8:11], s31 offen offset:%d sc1 lds" % (q * 1024)] for q in range(1, 4)]
        A.phase(a.e, 0, i, koff, extra=ex)
        if i % 4 == 0 and PF_W2:
            lab = "%s_pf2_%d" % (name, i)
            a.e("s_cmp_lg_u32 s%d, %d" % (SW, i // 4)); a.e("s_cbranch_scc1 %s" % lab)
            a.e("buffer_load_dword v216, v215, s[16:19], s29 offen")
            a.e("s_cmp_lg_u32 s33, 1"); a.e("s_cbranch_scc1 %s" % lab)
            a.e("buffer_load_dword v217, v215, s[40:43], s32 offen")
            a.label(lab)
            a.e("s_add_u32 s29, s29, %d" % (4 * 64 * 2048))
            a.e("s_cmp_lg_u32 s33, 1"); a.e("s_cbranch_scc1 %s_n" % lab)
            a.e("s_add_u32 s32, s32, %d" % (4 * 64 * 2048))
            a.label("%s_n" % lab)
        A.phase(a.e, 1, i, koff)
    a.e("s_cmp_lg_u32 s33, 4")
    a.e("s_cbranch_scc1 %s_nog2" % name)
    a.e("s_cmp_lg_u32 s39, 0")
    a.e("s_cbranch_scc1 %s_nog2" % name)
    gen_gate(a)
    a.label("%s_nog2" % name)
    a.e("s_sub_u32 s33, s33, 1")
    a.e("s_cmp_lg_u32 s33, 0")
    a.e("s_cbranch_scc1 %s_loop" % name)
    a.e("s_waitcnt vmcnt(0) lgkmcnt(0)")
    M32(a, VO[1], VV + 4, VP[1] + 4, VO[1])
    M16(a, VL[1], VSEL, VP[1] + 4, VL[1])
    a.stamp(4)
    a.e("s_nop 15")
    a.e("v_mov_b32 v5, 0x%x" % f2u(2.0 ** 30))
    a.e("v_mov_b32 v7, 0")
    a.e("s_mov_b64 s[34:35], 0")
    for c in range(2):
        a.e("v_rcp_f32 v4, v%d" % VL[c])
        a.e("v_cmp_nle_f32 vcc, v%d, v5" % VL[c])
        a.e("s_or_b64 s[34:35], s[34:35], vcc")
        for k in range(16): a.e("v_mul_f32 v%d, v%d, v4" % (VO[c] + k, VO[c] + k))
        for k in range(16): a.e("v_fma_f32 v7, v%d, 0, v7" % (VO[c] + k))
    a.e("v_cmp_u_f32 vcc, v7, v7")
    a.e("s_or_b64 s[34:35], s[34:35], vcc")
    for c in range(2):
        for k in range(8): a.e("v_cvt_pk_bf16_f32 v%d, v%d, v%d" % (VT + 8 * c + k, VO[c] + 2 * k, VO[c] + 2 * k + 1))
    for c in range(2):
        for m in range(2):
            a.e("buffer_store_dwordx4 v[%d:%d], v2, s[12:15], s38 offen offset:%d sc1" % (VT + 8 * c + 4 * m, VT + 8 * c + 4 * m + 3, c * 2048 + m * 1024))
    a.e("s_cmp_lg_u32 s39, 0")
    a.e("s_cbranch_scc1 %s_ok" % name)
    a.e("s_cmp_eq_u64 s[34:35], 0")
    a.e("s_cbranch_scc1 %s_ok" % name)
    a.e("v_mov_b32 v4, 0x%x" % FLAG); a.e("v_mov_b32 v5, 1")
    a.e("ds_write_b32 v4, v5")
    a.label("%s_ok" % name)
    a.e("s_waitcnt vmcnt(0) lgkmcnt(0)")
    a.e("s_barrier")
    a.e("v_mov_b32 v4, 0x%x" % FLAG)
    a.e("ds_read_b32 v5, v4")
    a.e("s_waitcnt lgkmcnt(0)")
    a.e("v_readfirstlane_b32 s36, v5")
    a.e("s_nop 3")
    a.e("s_cmp_eq_u32 s36, 0")
    a.e("s_cbranch_scc1 %s_store" % name)
    a.e("s_cmp_lg_u32 s39, 0")
    a.e("s_cbranch_scc1 %s_store" % name)
    a.e("s_barrier")
    a.e("s_mov_b32 s39, 1")
    a.e("v_mov_b32 v%d, 0xff800000" % VT)
    a.e("v_mov_b32 v%d, 0xff800000" % (VT + 1))
    a.e("s_mov_b32 s37, 0")
    a.label("%s_mx" % name)
    a.e("buffer_load_dwordx4 v[%d:%d], v2, s[8:11], s37 offen sc1" % (VK, VK + 3))
    a.e("buffer_load_dwordx4 v[%d:%d], v2, s[8:11], s37 offen offset:1024 sc1" % (VK + 4, VK + 7))
    a.e("s_waitcnt vmcnt(0)")
    for c in range(2):
        M32(a, VS[c], VK, VQ[c], "0")
        M32(a, VS[c], VK + 4, VQ[c] + 4, VS[c])
    a.e("s_nop 15")
    for c in range(2):
        for k in range(0, 16, 2): a.e("v_max3_f32 v%d, v%d, v%d, v%d" % (VT + c, VT + c, VS[c] + k, VS[c] + k + 1))
    a.e("s_add_u32 s37, s37, 4096")
    a.e("s_cmp_lt_u32 s37, %d" % (64 * 4096))
    a.e("s_cbranch_scc1 %s_mx" % name)
    for c in range(2): set_negm(a, c, VT + c)
    a.e("s_branch %s_pass" % name)
    a.label("%s_store" % name)
    a.e("s_cmp_lg_u32 s%d, 0" % SW)
    a.e("s_cbranch_scc1 %s_nosig" % name)
    a.e("s_lshl_b32 s28, s%d, 8" % SMT); a.e("s_lshl_b32 s91, s%d, 2" % SNT); a.e("s_add_u32 s28, s28, s91"); a.e("s_add_u32 s28, s28, %d" % F_O)
    set_flag(a, 28, nrep=1)
    a.label("%s_nosig" % name)
    a.stamp(5)
    a.stamp_flush(WS, WS + 1, WS_PROF, SW, 4)
    a.e("s_endpgm")

def gen_role_a(a, name):
    if PRIO["a1"]: a.e("s_setprio %d" % PRIO["a1"])
    a1_setup(a)
    a.e("s_mov_b32 s44, 0x%x" % f2u(QSCALE)); a.e("s_mov_b32 s45, s44")
    a.e("s_lshl_b32 s94, s%d, 7" % SNT)
    a.e("s_waitcnt lgkmcnt(0)")
    a.e("s_cmp_lg_u32 s2, 0"); a.e("s_cbranch_scc1 %s_noclr" % name)
    base(a, 52, WS, "0x%x" % WS_F, F_BYTES)
    a.e("s_mul_i32 s91, s%d, 3072" % SW)
    for k in range(4): a.e("v_mov_b32 v%d, 0" % (8 + k))
    for k in range(3): a.e("buffer_store_dwordx4 v[8:11], v2, s[52:55], s91 offen offset:%d sc1" % (k * 1024))
    a.label("%s_noclr" % name)
    base(a, 8, WQ, "s94", 1024 * 2048)
    base(a, 4, X, None, 2048 * 2048)
    a.e("s_cmp_eq_u32 s%d, 0" % SNT); a.e("s_cbranch_scc1 %s_aK" % name)
    a.e("s_cmp_eq_u32 s%d, 1" % SNT); a.e("s_cbranch_scc1 %s_aV" % name)
    gen_a1(a, name + "_n", None)
    a.e("s_branch %s_attn" % name)
    a.label("%s_aK" % name); a.reset_counts()
    base(a, 12, WK, None, 1024 * 64)
    gen_a1(a, name + "_k", "K")
    a.e("s_branch %s_attn" % name)
    a.label("%s_aV" % name); a.reset_counts()
    base(a, 12, WV, None, 1024 * 64)
    gen_a1(a, name + "_v", "V")
    a.label("%s_attn" % name)
    gen_attn(a, name)

BW = [8, 36]
BX = [64, 80]
HAC = 100
HB = 212
B_XD, B_WD, B_XR, B_BI, B_WR = 240, 241, 243, 245, 246
LB_X, LB_W = 0, 32768
def hacc(j, tb): return HAC + 16 * j + 4 * tb

def b1_setup(a):
    a.e("v_lshrrev_b32 v3, 3, v1"); a.e("v_and_b32 v4, 6, v3"); a.e("v_and_b32 v5, 7, v1"); a.e("v_xor_b32 v4, v4, v5")
    a.e("v_lshlrev_b32 v4, 4, v4"); a.e("v_lshl_add_u32 v%d, v3, 11, v4" % B_XD)
    a.e("s_lshl_b32 s91, s%d, 7" % SMT); a.e("s_lshl_b32 s92, s%d, 5" % SW); a.e("s_add_u32 s91, s91, s92"); a.e("s_lshl_b32 s91, s91, 11")
    for q in range(4): a.e("s_add_u32 s%d, s91, %d" % (28 + q, q * (8 * 2048 - 1024)))
    a.e("s_lshl_b32 s35, s%d, 12" % SW); a.e("s_add_u32 s36, s35, %d" % LB_W)
    a.e("s_add_u32 s35, s35, %d" % LB_X)

def b1_setup_w(a):
    a.e("v_lshrrev_b32 v3, 5, v1"); a.e("v_bfe_u32 v4, v1, 1, 4"); a.e("v_and_b32 v9, 1, v1"); a.e("v_lshlrev_b32 v9, 4, v9")
    a.e("s_and_b32 s91, s%d, 1" % SW); a.e("s_lshl_b32 s91, s91, 2")
    a.e("v_or_b32 v5, s91, v3")
    a.e("v_mul_u32_u24 v8, 7168, v3"); a.e("v_add_u32 v8, v8, v9")
    a.e("v_mov_b32 v10, 0x40000000")
    for par in range(2):
        a.e("v_xor_b32 v6, %d, v5" % (2 * par))
        a.e("v_xor_b32 v6, v6, v4")
        a.e("v_lshl_add_u32 v7, v6, 5, v8")
        a.e("v_cmp_le_u32 vcc, 14, v6")
        a.e("s_nop 1")
        a.e("v_cndmask_b32 v%d, v7, v10, vcc" % (B_WD + par))

def b1_reads_setup(a):
    a.e("v_and_b32 v5, 15, v1"); a.e("v_lshrrev_b32 v6, 4, v1"); a.e("v_bfe_u32 v7, v1, 2, 2"); a.e("v_and_b32 v8, 3, v1")
    a.e("s_and_b32 s37, s%d, 1" % SW); a.e("s_lshr_b32 s38, s%d, 1" % SW)
    a.e("v_and_b32 v3, 6, v5"); a.e("v_xor_b32 v3, v3, v6"); a.e("v_lshlrev_b32 v4, 4, v3"); a.e("v_lshl_add_u32 v4, v5, 7, v4")
    a.e("s_lshl_b32 s91, s37, 13"); a.e("v_add_u32 v%d, s91, v4" % B_XR); a.e("v_xor_b32 v%d, 64, v%d" % (B_XR + 1, B_XR))
    a.e("v_and_b32 v3, 1, v6"); a.e("v_lshl_or_b32 v3, v3, 2, v7")
    a.e("v_lshl_add_u32 v4, v6, 3, v7"); a.e("v_lshlrev_b32 v4, 9, v4"); a.e("v_lshl_add_u32 v4, v8, 3, v4"); a.e("v_add_u32 v4, %d, v4" % LB_W)
    a.e("s_mul_i32 s91, s38, 7")
    for j in range(7):
        a.e("s_add_u32 s94, s91, %d" % j)
        a.e("v_xor_b32 v9, s94, v3")
        a.e("v_lshl_add_u32 v%d, v9, 5, v4" % (B_WR + j))
    a.e("v_lshlrev_b32 v%d, 3, v6" % B_BI)
    a.e("s_mul_i32 s39, s%d, 448" % SNT); a.e("s_mul_i32 s91, s38, 224"); a.e("s_add_u32 s39, s39, s91")

def b1_x0(a, xid):
    a.set_m0(35, 0)
    for q in range(4):
        xid[0] = a.vm("buffer_load_dwordx4 v%d, s[4:7], s%d offen offset:%d lds" % (B_XD, 28 + q, q * 1024))
    if ROT_B1: rot_adv(a, 4, X, 57, 128, 2048)
    else: add64(a, 4, 128)

def gen_b1(a, name, after_loop, xid):
    NH = 32
    wid = {}
    def wdma1(h, i):
        a.set_m0(36, (h % 3) * 16384)
        wid[h] = a.vm("buffer_load_dwordx4 v%d, s[8:11], s%d offen offset:%d lds" % (B_WD + (i & 1), 48 + i, i * 1024))
        if i == 3:
            if ROT_B1: rot_adv(a, 8, 12, 56, 32 * 7168, 1024 * 7168)
            else: add64(a, 8, 32 * 7168)
    def xdma1(s, q):
        a.set_m0(35, (s % 2) * 16384)
        xid[s] = a.vm("buffer_load_dwordx4 v%d, s[4:7], s%d offen offset:%d lds" % (B_XD, 28 + q, q * 1024))
        if q == 3:
            if ROT_B1: rot_adv(a, 4, X, 57, 128, 2048)
            else: add64(a, 4, 128)
    def wdma(h):
        for i in range(4): wdma1(h, i)
    def xdma(s):
        for q in range(4): xdma1(s, q)
    wdma(0); wdma(1)
    b1_reads_setup(a)
    base(a, 24, B1P, None, 3584 * 2)
    bias = []
    for j in range(7):
        bias.append(a.vm("buffer_load_dwordx2 v[%d:%d], v%d, s[24:27], s39 offen offset:%d" % (HB + 4 * j, HB + 4 * j + 1, B_BI, 32 * j)))
    def pf(hh, wave):
        lab = "%s_pf%d" % (name, hh)
        a.e("s_cmp_lg_u32 s%d, %d" % (SW, wave)); a.e("s_cbranch_scc1 %s" % lab)
        a.e("buffer_load_dword v96, v97, s[16:19], s34 offen")
        a.label(lab)
        a.e("s_add_u32 s34, s34, %d" % (32 * 7168))
    if PF_B1:
        a.e("s_mul_i32 s91, s%d, 448" % SNT); a.e("s_and_b32 s91, s91, 0xffffff80")
        base(a, 16, W1, "s91", 1024 * 7168)
        a.e("s_and_b32 s91, s%d, 3" % SMT); a.e("s_lshl_b32 s91, s91, 3")
        a.e("v_lshrrev_b32 v3, 2, v1"); a.e("v_add_u32 v3, s91, v3"); a.e("v_mul_u32_u24 v3, 7168, v3")
        a.e("v_and_b32 v4, 3, v1"); a.e("v_lshl_add_u32 v3, v4, 7, v3"); a.e("v_mov_b32 v4, 0x40000000")
        a.e("v_cmp_le_u32 vcc, 32, v1"); a.e("s_nop 1"); a.e("v_cndmask_b32 v97, v3, v4, vcc")
        a.e("s_mov_b32 s34, %d" % (3 * 32 * 7168))
    a.wait(vm=max(wid[0], xid[0])); a.e("s_barrier")
    a.stamp(1)
    wdma(2); xdma(1)
    if PF_B1:
        for hh in range(3, PF_B1): pf(hh, hh & 3)
    rd = {}
    def rlist(h):
        s, kk = h // 2, h % 2
        L = []
        for tb in range(4):
            r = BX[h % 2] + 4 * tb
            L.append("ds_read_b128 v[%d:%d], v%d offset:%d" % (r, r + 3, B_XR + kk, (s % 2) * 16384 + tb * 2048))
        for j in range(7):
            r = BW[h % 2] + 4 * j
            o = (h % 3) * 16384
            L.append("ds_read_b64_tr_b16 v[%d:%d], v%d offset:%d" % (r, r + 1, B_WR + j, o))
            L.append("ds_read_b64_tr_b16 v[%d:%d], v%d offset:%d" % (r + 2, r + 3, B_WR + j, o + 2048))
        return L
    for x in rlist(0): rd[0] = a.ds(x)
    a.wait(vm=bias[-1])
    for j in range(7):
        b = HB + 4 * j
        a.e("v_and_b32 v%d, 0xffff0000, v%d" % (b + 3, b + 1))
        a.e("v_lshlrev_b32 v%d, 16, v%d" % (b + 2, b + 1))
        a.e("v_and_b32 v%d, 0xffff0000, v%d" % (b + 1, b))
        a.e("v_lshlrev_b32 v%d, 16, v%d" % (b, b))
    for h in range(NH):
        s, kk = h // 2, h % 2
        need = None
        if h + 1 < NH:
            need = wid[h + 1]
            need = max(need, xid[(h + 1) // 2])
        a.wait(vm=need if "nowait" not in EXP else None, lg=rd[h])
        if "nobar" not in EXP: a.e("s_barrier")
        if DIAG == "b1" and h in (8, 16, 24): a.stamp(1 + h // 8, force=True)
        todo = rlist(h + 1) if h + 1 < NH else []
        if "nords" in EXP and todo: rd[h + 1] = a.lg_n - 1; todo = []
        dma = []
        if h + 3 < NH:
            if "now" in EXP: wid[h + 3] = a.vm_n - 1
            else: dma += [(wdma1, h + 3, i) for i in range(4)]
        if kk == 1 and s + 2 < 16:
            if "nox" in EXP: xid[s + 2] = a.vm_n - 1
            else: dma += [(xdma1, s + 2, q) for q in range(4)]
        if h == NH - 1: after_loop()
        if h == 16 and "noa" not in EXP: early_cleared(a, name + "_ec")
        n = 0
        for j in range(7):
            for tb in range(4):
                d = hacc(j, tb)
                c = "v[%d:%d]" % (HB + 4 * j, HB + 4 * j + 3) if h == 0 else "v[%d:%d]" % (d, d + 3)
                a.e("v_mfma_f32_16x16x32_bf16 v[%d:%d], v[%d:%d], v[%d:%d], %s" % (d, d + 3, BW[h % 2] + 4 * j, BW[h % 2] + 4 * j + 3, BX[h % 2] + 4 * tb, BX[h % 2] + 4 * tb + 3, c))
                n += 1
                if todo and n >= 1 and tb != 3:
                    rd[h + 1] = a.ds(todo.pop(0))
                if dma and (tb == 3 or (tb == 1 and j == 3)):
                    f, i0, i1 = dma.pop(0)
                    f(i0, i1)
                if tb == 3 and j == 4 and PF_B1 and h + PF_B1 < NH: pf(h + PF_B1, h & 3)
        while todo: rd[h + 1] = a.ds(todo.pop(0))
        assert not dma
    a.stamp(5 if DIAG == "b1" else 2, force=True)
    if DIAG == "b1": a.nostamp = True

def b1_epilogue(a):
    a.e("s_mov_b32 s44, 0x%x" % f2u(LOG2E)); a.e("s_mov_b32 s45, s44")
    a.e("s_mov_b32 s46, 0x%x" % f2u(-2.0)); a.e("s_mov_b32 s47, s46")
    base(a, 20, WS, "0x%x" % WS_H, WS_H_BYTES)
    a.e("s_lshl_b32 s91, s%d, 2" % SMT); a.e("s_lshl_b32 s94, s37, 1"); a.e("s_add_u32 s91, s91, s94")
    a.e("s_mul_i32 s91, s91, 224"); a.e("s_mul_i32 s94, s%d, 14" % SNT); a.e("s_add_u32 s91, s91, s94")
    a.e("s_mul_i32 s94, s38, 7"); a.e("s_add_u32 s91, s91, s94"); a.e("s_lshl_b32 s56, s91, 10")
    a.e("s_add_u32 s57, s56, %d" % (224 * 1024))
    a.e("s_add_u32 s58, s56, 4096"); a.e("s_add_u32 s59, s57, 4096")
    a.e("s_nop 7")
    cnt = 0
    for j in range(7):
        for pair in range(2):
            Aa = hacc(j, 2 * pair)
            t = HB + 16 * (cnt % 2); q = t + 12; cnt += 1
            for k in range(4): a.e("v_pk_mul_f32 v[%d:%d], v[%d:%d], s[44:45]" % (t + 2 * k, t + 2 * k + 1, Aa + 2 * k, Aa + 2 * k + 1))
            for k in range(8): a.e("v_exp_f32 v%d, v%d" % (t + k, t + k))
            for k in range(4): a.e("v_pk_add_f32 v[%d:%d], v[%d:%d], 2.0 op_sel_hi:[1,0]" % (t + 8 + 2 * k, t + 9 + 2 * k, t + 2 * k, t + 2 * k + 1))
            for k in range(4): a.e("v_pk_fma_f32 v[%d:%d], v[%d:%d], v[%d:%d], 2.0 op_sel_hi:[1,1,0]" % (t + 2 * k, t + 2 * k + 1, t + 2 * k, t + 2 * k + 1, t + 8 + 2 * k, t + 9 + 2 * k))
            for k in range(8): a.e("v_rcp_f32 v%d, v%d" % (t + k, t + k))
            for k in range(4): a.e("v_pk_fma_f32 v[%d:%d], v[%d:%d], s[46:47], 1.0 op_sel_hi:[1,1,0]" % (t + 2 * k, t + 2 * k + 1, t + 2 * k, t + 2 * k + 1))
            for k in range(4): a.e("v_pk_mul_f32 v[%d:%d], v[%d:%d], v[%d:%d]" % (t + 2 * k, t + 2 * k + 1, t + 2 * k, t + 2 * k + 1, Aa + 2 * k, Aa + 2 * k + 1))
            for k in range(4): a.e("v_cvt_pk_bf16_f32 v%d, v%d, v%d" % (q + k, t + 2 * k, t + 2 * k + 1))
            a.e("s_nop 1")
            a.e("v_permlane16_swap_b32 v%d, v%d" % (q, q + 2))
            a.e("v_permlane16_swap_b32 v%d, v%d" % (q + 1, q + 3))
            a.vm("buffer_store_dwordx4 v[%d:%d], v2, s[20:23], s%d offen offset:%d sc1" % (q, q + 3, (56 if j < 4 else 58) + pair, (j % 4) * 1024))

NHR = 20; NWU = 8
BH = 32; BA = 144; BAC = 168; AAC = 200
POLL_U = 55; OBURST = 4
def gen_role_b(a, name):
    if PRIO["b1"]: a.e("s_setprio %d" % PRIO["b1"])
    b1_setup(a)
    a.e("s_waitcnt lgkmcnt(0)")
    base(a, 4, X, None, 2048 * 2048)
    if ROT_B1:
        a.e("s_add_u32 s91, s%d, s%d" % (SMT, SNT)); a.e("s_and_b32 s91, s91, 3"); a.e("s_mul_i32 s91, s91, %d" % ROT_B1)
        a.e("s_lshl_b32 s57, s91, 6")
        a.e("s_mul_i32 s56, s91, %d" % (32 * 7168))
        a.e("s_add_u32 s4, s%d, s57" % X); a.e("s_addc_u32 s5, s%d, 0" % (X + 1))
    xid0 = {}
    b1_x0(a, xid0)
    b1_setup_w(a)
    a.e("s_mul_i32 s94, s%d, 448" % SNT)
    a.e("s_add_u32 s92, s%d, s94" % W1); a.e("s_addc_u32 s93, s%d, 0" % (W1 + 1))
    srd(a, 8, 92, 93, 1024 * 7168)
    if ROT_B1:
        a.e("s_mov_b32 s12, s92"); a.e("s_mov_b32 s13, s93")
        a.e("s_add_u32 s8, s12, s56"); a.e("s_addc_u32 s9, s13, 0")
    a.e("s_mul_i32 s91, s%d, %d" % (SW, 8 * 7168))
    for i in range(4): a.e("s_add_u32 s%d, s91, %d" % (48 + i, i * (2 * 7168 - 1024)))
    NG = 288; NU = 72; GB = 224; UB = 56
    uid = {}; hid = {}
    st = dict(nu=0)
    def wdma(u):
        sb = 16 if u < UB else 40
        a.set_m0(35, (u % NWU) * 8192)
        a.vm("buffer_load_dwordx4 v10, s[%d:%d], s33 offen lds" % (sb, sb + 3))
        uid[u] = a.vm("buffer_load_dwordx4 v10, s[%d:%d], s32 offen offset:1024 lds" % (sb, sb + 3))
        add64(a, sb, 64 * 2048)
    def after_loop():
        a.e("v_lshrrev_b32 v3, 3, v1"); a.e("v_bfe_u32 v4, v1, 4, 1"); a.e("v_lshlrev_b32 v4, 2, v4"); a.e("v_and_b32 v5, 7, v1")
        a.e("v_xor_b32 v4, v4, v5"); a.e("v_lshlrev_b32 v4, 4, v4"); a.e("v_lshl_add_u32 v10, v3, 11, v4")
        a.e("s_lshl_b32 s33, s%d, 15" % SW); a.e("s_add_u32 s32, s33, %d" % (8 * 2048 - 1024))
        a.e("s_lshl_b32 s35, s%d, 11" % SW)
        a.e("s_lshl_b32 s34, s%d, 7" % SNT)
        base(a, 16, W2, "s34", 3584 * 2048)
        base(a, 40, WO, "s34", 1024 * 2048)
        a.cur_m0 = None
        for u in range(4): wdma(u)
        st["nu"] = 4
    gen_b1(a, name + "_b1", after_loop, xid0)
    if "b1only" in EXP:
        a.e("s_waitcnt vmcnt(0)")
        a.stamp_flush(WS, WS + 1, WS_PROF, SW, 4)
        a.e("s_endpgm")
        return
    if PRIO["mish"] != PRIO["b1"]: a.e("s_setprio %d" % PRIO["mish"])
    b1_epilogue(a)
    for u in range(4, NWU - 1): wdma(u)
    st["nu"] = NWU - 1
    a.e("s_waitcnt vmcnt(0)"); a.vm_done = a.vm_n
    a.e("s_barrier")
    a.e("s_cmp_lg_u32 s%d, 0" % SW); a.e("s_cbranch_scc1 %s_hw" % name)
    check_cleared(a, name + "_clrb")
    a.e("s_lshl_b32 s28, s%d, 8" % SMT); a.e("s_add_u32 s29, s28, %d" % F_H)
    a.e("s_lshl_b32 s91, s%d, 2" % SNT); a.e("s_add_u32 s28, s29, s91")
    set_flag(a, 28, nrep=1)
    a.stamp(3)
    wait_flags(a, name + "_hp", 29, 15)
    a.label("%s_hw" % name)
    a.e("s_lshl_b32 s90, s%d, 2" % SMT); a.e("s_add_u32 s56, s90, s%d" % SW)
    a.e("s_mul_i32 s31, s56, %d" % (224 * 1024))
    a.e("s_lshl_b32 s38, s56, 16")
    base(a, 8, WS, "0x%x" % WS_H, WS_H_BYTES)
    base(a, 4, WS, "0x%x" % WS_O, 4 << 20)
    base(a, 20, WS, "0x%x" % WS_G, 256 * 128)
    base(a, 24, OUT, None, 2048 * 2048)
    a.e("v_lshrrev_b32 v3, 5, v1"); a.e("v_bfe_u32 v4, v1, 2, 2"); a.e("v_bfe_u32 v5, v1, 4, 1"); a.e("v_and_b32 v6, 3, v1")
    a.e("v_lshrrev_b32 v7, 1, v4"); a.e("v_lshlrev_b32 v7, 6, v7"); a.e("v_lshl_add_u32 v7, v5, 5, v7"); a.e("v_lshl_add_u32 v7, v6, 3, v7")
    a.e("v_lshl_add_u32 v8, v3, 3, v4"); a.e("v_lshl_add_u32 v12, v8, 7, v7"); a.e("v_xor_b32 v13, 64, v12")
    a.e("v_lshl_add_u32 v8, v3, 2, v4"); a.e("v_lshl_add_u32 v14, v8, 7, v7"); a.e("v_xor_b32 v15, 64, v14")
    a.e("v_and_b32 v4, 31, v1"); a.e("s_lshl_b32 s91, s56, 5"); a.e("v_add_u32 v4, s91, v4")
    a.e("v_lshrrev_b32 v5, 3, v4"); a.e("v_and_b32 v6, 7, v4"); a.e("v_lshlrev_b32 v6, 2, v6"); a.e("v_lshl_add_u32 v16, v5, 7, v6")
    a.e("v_lshlrev_b32 v17, 11, v4"); a.e("v_lshl_add_u32 v17, v3, 4, v17")
    a.e("s_lshl_b32 s37, s%d, 8" % SMT); a.e("s_add_u32 s37, s37, %d" % F_O)
    a.e("s_barrier")
    a.stamp(4)
    a.e("s_setprio %d" % PRIO["b"])
    def hload(g):
        r = BH + 4 * (g % NHR)
        if g < GB:
            hid[g] = a.vm("buffer_load_dwordx4 v[%d:%d], v2, s[8:11], s31 offen offset:%d sc1" % (r, r + 3, (g % 4) * 1024))
            if g % 4 == 3: a.e("s_add_u32 s31, s31, 4096")
        else:
            hid[g] = a.vm("buffer_load_dwordx4 v[%d:%d], v2, s[4:7], s38 offen offset:%d sc1" % (r, r + 3, (g % 4) * 1024))
            if g % 4 == 3: a.e("s_add_u32 s38, s38, 4096")
    for g in range(8): hload(g)
    nh = 8
    fr = {}
    def reads(g):
        u, kk = g // 4, g % 4
        so = (u % NWU) * 8192 + kk * 2048
        f = g % 3
        va, d = (12, 512) if g < GB else (14, 1024)
        for ng in range(2):
            a.ds("ds_read_b64_tr_b16 v[%d:%d], v%d offset:%d" % (BA + 8 * f + 4 * ng, BA + 8 * f + 4 * ng + 1, va + ng, so))
            fr[g] = a.ds("ds_read_b64_tr_b16 v[%d:%d], v%d offset:%d" % (BA + 8 * f + 4 * ng + 2, BA + 8 * f + 4 * ng + 3, va + ng, so + d))
    reads(0); reads(1)
    polled = False
    nu = st["nu"]
    for g in range(NG):
        u, kk = g // 4, g % 4
        f = g % 3
        if kk == 2 and u + 1 < NU:
            assert u + 1 in uid
            if u == POLL_U:
                a.e("s_cmp_lg_u32 s%d, 0" % SW)
                a.e("s_cbranch_scc1 %s_polled" % name)
                wait_flags(a, name + "_op", 37, 15)
                a.label("%s_polled" % name)
                polled = True
            a.wait(vm=uid[u + 1]); a.e("s_barrier")
            if u == POLL_U:
                gid = a.vm("buffer_load_dword v22, v16, s[20:23], 0 offen sc1")
                a.stamp(5)
        if g + 2 < NG: reads(g + 2)
        assert g in hid
        a.wait(vm=hid[g], lg=fr[g])
        hb = BH + 4 * (g % NHR)
        acc = BAC if g < GB else AAC
        for ng in range(2):
            M32(a, acc + 16 * ng, BA + 8 * f + 4 * ng, hb, "0" if g in (0, GB) else acc + 16 * ng)
        cnt = 0
        while nh < min(g + 1 + NHR, NG) and cnt < (OBURST if polled else 2) and (nh < GB or polled):
            hload(nh); nh += 1; cnt += 1
        if nu < NU and (nu < NWU or (u, kk) >= (nu - NWU + 1, 2)):
            wdma(nu); nu += 1
    a.stamp(6)
    a.wait(vm=gid)
    a.e("v_sub_f32 v23, 1.0, v22")
    for k in range(32): a.e("v_mul_f32 v%d, v%d, v23" % (BAC + k, BAC + k))
    for k in range(32): a.e("v_fmac_f32 v%d, v%d, v22" % (BAC + k, AAC + k))
    for k in range(16): a.e("v_cvt_pk_bf16_f32 v%d, v%d, v%d" % (BH + k, BAC + 2 * k, BAC + 2 * k + 1))
    a.e("s_nop 1")
    for q in range(4):
        b = BH + 4 * q
        a.e("v_permlane32_swap_b32 v%d, v%d" % (b, b + 2))
        a.e("v_permlane32_swap_b32 v%d, v%d" % (b + 1, b + 3))
    for q in range(4):
        b = BH + 4 * q
        a.vm("buffer_store_dwordx4 v[%d:%d], v17, s[24:27], s34 offen offset:%d" % (b, b + 3, 32 * q))
    if a.prof: a.e("s_waitcnt vmcnt(0)")
    a.stamp(7)
    a.stamp_flush(WS, WS + 1, WS_PROF, SW, 4)
    a.e("s_endpgm")

def gen_kernel(name, prof=False):
    a = Asm(); a.prof = prof; a.PROF_V = 254
    a.raw(kernel_header(name))
    a.e("s_cmp_ge_u32 s2, 512")
    a.e("s_cbranch_scc1 %s_exit" % name)
    if prof: a.e("v_mov_b32 v254, 0")
    a.stamp(0)
    a.e("s_load_dwordx8 s[60:67], s[0:1], 0")
    a.e("s_load_dwordx8 s[72:79], s[0:1], 48")
    a.e("s_load_dwordx2 s[68:69], s[0:1], 32")
    a.e("s_load_dwordx4 s[80:83], s[0:1], 80")
    a.e("s_load_dwordx2 s[84:85], s[0:1], 96")
    a.e("v_and_b32 v1, 63, v0")
    a.e("v_lshrrev_b32 v3, 6, v0")
    a.e("v_lshlrev_b32 v2, 4, v1")
    a.e("v_readfirstlane_b32 s%d, v3" % SW)
    a.e("s_and_b32 s%d, s2, 255" % SID)
    a.e("s_and_b32 s90, s%d, 7" % SID); a.e("s_lshr_b32 s91, s%d, 3" % SID)
    a.e("s_lshr_b32 s92, s90, 1"); a.e("s_lshl_b32 s92, s92, 2"); a.e("s_lshr_b32 s93, s91, 3"); a.e("s_add_u32 s%d, s92, s93" % SMT)
    a.e("s_and_b32 s92, s90, 1"); a.e("s_lshl_b32 s92, s92, 3"); a.e("s_and_b32 s93, s91, 7"); a.e("s_add_u32 s%d, s92, s93" % SNT)
    a.e("s_cmp_ge_u32 s2, 256")
    a.e("s_cbranch_scc1 %s_roleb" % name)
    if "noa" in EXP: a.e("s_endpgm")
    else: gen_role_a(a, name)
    a.label("%s_roleb" % name)
    a.reset_counts()
    gen_role_b(a, name)
    a.label("%s_exit" % name)
    a.e("s_endpgm")
    return a.text()
```

```python
import sys
sys.path.insert(0, "work")
from build import build
import s1
prof = "prof" in sys.argv
for x in sys.argv:
    if x.startswith("prio="):
        v = x[5:]; s1.PRIO = dict(a1=int(v[0]), attn=int(v[1]), b1=int(v[2]), b=int(v[3]), mish=int(v[4]) if len(v) > 4 else int(v[2]))
    if x == "nopf1": s1.PF_W1 = False
    if x == "pf1": s1.PF_W1 = True
    if x.startswith("rotb="): s1.ROT_B1 = int(x[5:])
    if x.startswith("exp="): s1.EXP = set(x[4:].split("+"))
    if x.startswith("pfb="): s1.PF_B1 = int(x[4:])
    if x.startswith("pfa="): s1.PF_A1 = int(x[4:])
    if x.startswith("diag="): s1.DIAG = x[5:]
    if x == "nopf2": s1.PF_W2 = False
    if x.startswith("pollu="): s1.POLL_U = int(x[6:])
    if x.startswith("nhr="): s1.NHR = int(x[4:])
NAME = "gated_mix__grouped_kv_mqa__dense_activation_mish__prompt_kernel"
ks = [dict(name=NAME, text=s1.gen_kernel(NAME, prof=prof), grid=512, block=256, lds=81920, nfv=256, accum=256)]
open(sys.argv[1], "w").write(build(ks, plain=("plain" in sys.argv)))
```

```python
from asmlib import *
import struct
def f2u(x): return struct.unpack("<I", struct.pack("<f", x))[0]
import attn64 as A
from attn64 import VQ, VK, VV, VS, VP, VO, VL, VSEL, VNM, VT

WS_H = 4 << 20; WS_H_BYTES = 64 * 224 * 1024
WS_KV = 20 << 20; WS_O = 21 << 20; WS_G = 25 << 20; WS_F = 27 << 20; WS_PROF = 48 << 20
F_KV = 0; F_H = 8192; F_O = 12288; F_BYTES = 16384
KVREP = 32; SLEEP = 6
QSCALE = 0.25503486322159136
LOG2E = 1.4426950408889634
X, WQ, WK, WV, WO, W1, B1P, W2, GW, OUT, DBG, WS = 60, 62, 64, 66, 68, 72, 74, 76, 78, 80, 82, 84
SW, SMT, SNT, SID = 86, 87, 88, 89
FLAG = 65536; GATE = 180
PRIO = dict(a1=2, attn=0, b1=2, b=0, mish=3)
SPIN = 0x40000
PF_W1 = False
PF_B1 = 0
PF_BX = 0
PF_A1 = 0
DIAG = None
LAT_A1 = False
LAT_B = False
LAT_B1 = False
PKMISH = True
BPRO = None
BURST = False
ROT_B1 = 0
EXP = set()
PF_W2 = True

def M32(a, d, x, y, c): A.M32(a.e, d, x, y, c)
def M16(a, d, x, y, c): A.M16(a.e, d, x, y, c)
def base(a, d, ptr, add, nbytes):
    if add is None:
        srd(a, d, ptr, ptr + 1, nbytes)
    else:
        a.e("s_add_u32 s92, s%d, %s" % (ptr, add)); a.e("s_addc_u32 s93, s%d, 0" % (ptr + 1))
        srd(a, d, 92, 93, nbytes)

def rot_adv(a, sb, blo, sk, step, total):
    a.e("s_add_u32 s%d, s%d, %d" % (sk, sk, step))
    a.e("s_cmp_eq_u32 s%d, %d" % (sk, total))
    a.e("s_cselect_b32 s%d, 0, s%d" % (sk, sk))
    a.e("s_add_u32 s%d, s%d, s%d" % (sb, blo, sk)); a.e("s_addc_u32 s%d, s%d, 0" % (sb + 1, blo + 1))

def burst(a, va=98, vd=99):
    a.e("s_lshl_b32 s96, s2, 2"); a.e("s_add_u32 s96, s96, s%d" % SW)
    a.e("v_lshlrev_b32 v3, 7, v1"); a.e("v_mov_b32 v4, 0x40000000")
    for ptr, nbytes, nl in ((W1, 1024 * 7168, 28), (X, 2048 * 2048, 16), (WQ, 1024 * 2048, 8)):
        base(a, 40, ptr, None, nbytes)
        a.e("s_mul_i32 s95, s96, %d" % (nl * 128))
        a.e("v_cmp_le_u32 vcc, %d, v1" % nl); a.e("s_nop 1")
        a.e("v_cndmask_b32 v%d, v3, v4, vcc" % va)
        a.e("buffer_load_dword v%d, v%d, s[40:43], s95 offen" % (vd, va))

def lat_base(a, sb, blo, q, rreg, nslots, step):
    a.e("s_add_u32 s94, s%d, %d" % (rreg, q % nslots)); a.e("s_and_b32 s94, s94, %d" % (nslots - 1))
    if q // nslots: a.e("s_add_u32 s94, s94, %d" % (nslots * (q // nslots)))
    a.e("s_mul_i32 s94, s94, %d" % step)
    a.e("s_add_u32 s%d, s%d, s94" % (sb, blo)); a.e("s_addc_u32 s%d, s%d, 0" % (sb + 1, blo + 1))

def lat_off(a, sd, sbase, q, rreg, nslots, step):
    a.e("s_add_u32 s94, s%d, %d" % (rreg, q % nslots)); a.e("s_and_b32 s94, s94, %d" % (nslots - 1))
    if q // nslots: a.e("s_add_u32 s94, s94, %d" % (nslots * (q // nslots)))
    a.e("s_mul_i32 s94, s94, %d" % step)
    a.e("s_add_u32 s%d, s%d, s94" % (sd, sbase))

def poll(a, tag, srd4, voff, soff, nlanes_mask_exec=None):
    a.e("s_mov_b32 s96, 0x%x" % SPIN)
    a.label(tag)
    a.e("buffer_load_dword v5, %s, s[%d:%d], %s offen sc1" % (voff, srd4, srd4 + 3, soff))
    a.e("s_waitcnt vmcnt(0)")
    a.e("v_cmp_eq_u32 vcc, 1, v5")
    a.e("s_nop 3")
    a.e("s_cmp_eq_u64 vcc, exec")
    a.e("s_cbranch_scc1 %s_ok" % tag)
    a.e("s_sleep %d" % SLEEP)
    a.e("s_sub_u32 s96, s96, 1")
    a.e("s_cmp_lg_u32 s96, 0")
    a.e("s_cbranch_scc1 %s" % tag)
    a.label("%s_ok" % tag)

CLR = 253
def early_cleared(a, tag):
    a.e("s_cmp_lg_u32 s%d, 0" % SW); a.e("s_cbranch_scc1 %s" % tag)
    base(a, 52, DBG, None, 256)
    a.e("s_and_b32 s97, s2, 1"); a.e("s_lshl_b32 s97, s97, 7")
    a.e("v_mov_b32 v4, s97")
    a.e("buffer_load_dword v%d, v4, s[52:55], 0 offen sc1" % CLR)
    a.label(tag)

def check_cleared(a, tag):
    a.e("v_readfirstlane_b32 s97, v%d" % CLR)
    a.e("s_nop 3")
    a.e("s_cmp_eq_u32 s97, 1"); a.e("s_cbranch_scc1 %s_ok" % tag)
    base(a, 52, DBG, None, 256)
    a.e("s_and_b32 s97, s2, 1"); a.e("s_lshl_b32 s97, s97, 7")
    a.e("v_mov_b32 v4, s97")
    poll(a, tag, 52, "v4", "0")

def set_flag(a, soff_reg, nrep=1):
    base(a, 52, WS, "0x%x" % WS_F, F_BYTES)
    a.e("v_lshlrev_b32 v6, 8, v1"); a.e("v_add_u32 v6, s%d, v6" % soff_reg)
    a.e("v_mov_b32 v4, 1")
    a.e("v_cmp_gt_u32 vcc, %d, v1" % nrep)
    a.e("s_nop 1")
    a.e("s_and_saveexec_b64 s[90:91], vcc")
    a.e("buffer_store_dword v4, v6, s[52:55], 0 offen sc1")
    a.e("s_mov_b64 exec, s[90:91]")

def wait_flags(a, tag, soff_reg, mask):
    base(a, 52, WS, "0x%x" % WS_F, F_BYTES)
    a.e("v_and_b32 v4, %d, v1" % mask); a.e("v_lshlrev_b32 v4, 2, v4")
    poll(a, tag, 52, "v4", "s%d" % soff_reg)

AX = 32
AA = 64
AQ = 100
A_XD0, A_XD1, A_WD, A_KD = 204, 205, 206, 207
A_XR, A_WR, A_KR = 208, 212, 214
LA_W, LA_KV, LA_X = 0, 32768, 49152

def a1_setup(a):
    a.e("v_lshrrev_b32 v3, 3, v1")
    a.e("v_lshrrev_b32 v4, 4, v1")
    a.e("v_and_b32 v5, 7, v1")
    a.e("v_xor_b32 v4, v4, v5")
    a.e("v_lshlrev_b32 v4, 4, v4")
    a.e("v_lshl_add_u32 v%d, v3, 11, v4" % A_XD0)
    a.e("v_xor_b32 v%d, 64, v%d" % (A_XD1, A_XD0))
    a.e("v_bfe_u32 v4, v1, 4, 1"); a.e("v_lshlrev_b32 v4, 2, v4"); a.e("v_xor_b32 v4, v4, v5"); a.e("v_lshlrev_b32 v4, 4, v4")
    a.e("v_lshl_add_u32 v%d, v3, 11, v4" % A_WD)
    a.e("v_lshrrev_b32 v3, 2, v1"); a.e("v_and_b32 v4, 3, v1"); a.e("v_lshlrev_b32 v4, 4, v4")
    a.e("v_lshl_add_u32 v%d, v3, 6, v4" % A_KD)
    a.e("s_lshl_b32 s91, s%d, 7" % SMT); a.e("s_lshl_b32 s92, s%d, 5" % SW); a.e("s_add_u32 s91, s91, s92"); a.e("s_lshl_b32 s91, s91, 11")
    for q in range(4): a.e("s_add_u32 s%d, s91, %d" % (28 + q, q * (8 * 2048 - 1024)))
    a.e("s_lshl_b32 s33, s%d, 15" % SW); a.e("s_add_u32 s32, s33, %d" % (8 * 2048 - 1024))
    a.e("s_lshl_b32 s34, s%d, 10" % SW)
    a.e("s_lshl_b32 s35, s%d, 11" % SW)
    a.e("s_lshl_b32 s36, s%d, 10" % SW); a.e("s_add_u32 s36, s36, %d" % LA_KV)
    a.e("s_lshl_b32 s37, s%d, 13" % SW); a.e("s_add_u32 s37, s37, %d" % LA_X)

def a1_reads_setup(a):
    a.e("v_and_b32 v3, 31, v1"); a.e("v_lshrrev_b32 v4, 5, v1")
    a.e("v_bfe_u32 v5, v3, 1, 3"); a.e("v_xor_b32 v5, v5, v4"); a.e("v_lshlrev_b32 v5, 4, v5")
    a.e("v_lshl_add_u32 v5, v3, 7, v5"); a.e("v_add_u32 v5, s37, v5")
    for kk in range(4): a.e("v_xor_b32 v%d, %d, v5" % (A_XR + kk, kk * 32))
    a.e("v_bfe_u32 v6, v1, 2, 2"); a.e("v_bfe_u32 v5, v1, 4, 1"); a.e("v_and_b32 v7, 3, v1")
    a.e("v_lshlrev_b32 v3, 5, v5"); a.e("v_lshl_add_u32 v3, v7, 3, v3")
    a.e("v_lshl_add_u32 v4, v4, 3, v6")
    a.e("v_lshrrev_b32 v5, 1, v6"); a.e("v_lshl_add_u32 v5, v5, 6, v3")
    a.e("v_lshl_add_u32 v%d, v4, 7, v5" % A_WR); a.e("v_xor_b32 v%d, 64, v%d" % (A_WR + 1, A_WR))
    a.e("v_lshl_add_u32 v%d, v4, 6, v3" % A_KR); a.e("v_add_u32 v%d, %d, v%d" % (A_KR, LA_KV, A_KR))

def burst_a(a):
    burst(a, 220, 221)

def gen_a1(a, name, kind):
    NU = 16
    uid = {}; xid = {}
    def wdma1(u, p):
        if p == 0:
            a.set_m0(35, LA_W + (u % 4) * 8192)
            uid[u] = a.vm("buffer_load_dwordx4 v%d, s[8:11], s33 offen lds" % A_WD)
        elif p == 1:
            a.set_m0(35, LA_W + (u % 4) * 8192)
            uid[u] = a.vm("buffer_load_dwordx4 v%d, s[8:11], s32 offen offset:1024 lds" % A_WD)
            if LAT_A1 and (u + 1) % 2 == 0:
                if u + 1 < NU: lat_base(a, 8, 48, (u + 1) // 2, 59, 4, 2 * 64 * 2048)
            else: add64(a, 8, 64 * 2048)
        else:
            a.set_m0(36, (u % 4) * 4096)
            uid[u] = a.vm("buffer_load_dwordx4 v%d, s[12:15], s34 offen lds" % A_KD)
            if LAT_A1 and (u + 1) % 2 == 0:
                if u + 1 < NU: lat_base(a, 12, 50, (u + 1) // 2, 59, 4, 2 * 64 * 64)
            else: add64(a, 12, 64 * 64)
    NWP = 3 if kind else 2
    def wdma(u):
        for p in range(NWP): wdma1(u, p)
    def xdma1(u, q):
        a.set_m0(37, (u % 2) * 4096)
        xid[u] = a.vm("buffer_load_dwordx4 v%d, s[4:7], s%d offen offset:%d lds" % (A_XD0 + (q & 1), 28 + q, q * 1024))
        if q == 3:
            if LAT_A1 and (u + 1) % 2 == 0:
                if u + 1 < NU: lat_base(a, 4, X, (u + 1) // 2, 59, 4, 256)
            else: add64(a, 4, 128)
    def xdma(u):
        for q in range(4): xdma1(u, q)
    wdma(0); xdma(0); xdma(1); wdma(1)
    a1_reads_setup(a)
    if PF_W1:
        a.e("s_mul_i32 s91, s%d, 448" % SNT); a.e("s_and_b32 s91, s91, 0xffffff80")
        base(a, 16, W1, "s91", 1024 * 7168)
        a.e("s_and_b32 s91, s%d, 3" % SMT); a.e("s_lshl_b32 s91, s91, 4")
        a.e("v_lshrrev_b32 v3, 2, v1"); a.e("v_add_u32 v3, s91, v3"); a.e("s_movk_i32 s91, 7168"); a.e("v_mul_lo_u32 v3, v3, s91")
        a.e("v_and_b32 v4, 3, v1"); a.e("v_lshl_add_u32 v215, v4, 7, v3")
        a.e("s_mov_b32 s38, %d" % (2 * 64 * 7168))
    def pfa(uu, wave):
        lab = "%s_pa%d" % (name, uu)
        a.e("s_cmp_lg_u32 s%d, %d" % (SW, wave)); a.e("s_cbranch_scc1 %s" % lab)
        a.e("buffer_load_dword v217, v218, s[20:23], s39 offen")
        a.e("buffer_load_dword v217, v219, s[24:27], s38 offen")
        a.label(lab)
        a.e("s_add_u32 s39, s39, %d" % (64 * 2048)); a.e("s_add_u32 s38, s38, 128")
    if PF_A1:
        a.e("s_lshl_b32 s91, s%d, 7" % SNT)
        base(a, 20, WQ, "s91", 1024 * 2048)
        base(a, 24, X, None, 2048 * 2048)
        a.e("v_mov_b32 v4, 0x40000000"); a.e("v_cmp_le_u32 vcc, 16, v1")
        a.e("s_and_b32 s91, s%d, 3" % SMT); a.e("s_lshl_b32 s91, s91, 4"); a.e("v_add_u32 v3, s91, v1"); a.e("v_lshlrev_b32 v3, 11, v3")
        a.e("v_cndmask_b32 v218, v3, v4, vcc")
        a.e("s_and_b32 s91, s%d, 7" % SNT); a.e("s_lshl_b32 s91, s91, 4"); a.e("s_lshl_b32 s94, s%d, 7" % SMT); a.e("s_add_u32 s91, s91, s94")
        a.e("v_add_u32 v3, s91, v1"); a.e("v_lshlrev_b32 v3, 11, v3")
        a.e("v_cndmask_b32 v219, v3, v4, vcc")
        a.e("s_mov_b32 s39, %d" % (3 * 64 * 2048)); a.e("s_mov_b32 s38, %d" % (3 * 128))
    a.wait(vm=max(uid[0], xid[0])); a.e("s_barrier")
    a.stamp(1)
    wdma(2)
    if BURST: burst_a(a)
    if PF_A1:
        for uu in range(3, PF_A1): pfa(uu, uu & 3)
    a.e("s_cmp_lg_u32 s2, 0"); a.e("s_cbranch_scc1 %s_nopub" % name)
    a.e("s_cmp_lg_u32 s%d, 0" % SW); a.e("s_cbranch_scc1 %s_nopub" % name)
    base(a, 52, DBG, None, 256)
    a.e("v_lshlrev_b32 v6, 7, v1"); a.e("v_mov_b32 v4, 1")
    a.e("v_cmp_gt_u32 vcc, 2, v1"); a.e("s_nop 1")
    a.e("s_and_saveexec_b64 s[90:91], vcc")
    a.e("buffer_store_dword v4, v6, s[52:55], 0 offen sc1")
    a.e("s_mov_b64 exec, s[90:91]")
    a.label("%s_nopub" % name)
    xfr = {}; fr = {}
    def xread(u, kk):
        r = AX + 16 * (u % 2) + 4 * kk
        xfr[(u, kk)] = a.ds("ds_read_b128 v[%d:%d], v%d offset:%d" % (r, r + 3, A_XR + kk, (u % 2) * 4096))
    def reads(g):
        u, kk = g // 4, g % 4
        f = g % 3; b = AA + 12 * f
        so = LA_W + (u % 4) * 8192 + kk * 2048
        for ng in range(2):
            a.ds("ds_read_b64_tr_b16 v[%d:%d], v%d offset:%d" % (b + 4 * ng, b + 4 * ng + 1, A_WR + ng, so))
            fr[g] = a.ds("ds_read_b64_tr_b16 v[%d:%d], v%d offset:%d" % (b + 4 * ng + 2, b + 4 * ng + 3, A_WR + ng, so + 512))
        if kind:
            so = (u % 4) * 4096 + kk * 1024
            a.ds("ds_read_b64_tr_b16 v[%d:%d], v%d offset:%d" % (b + 8, b + 9, A_KR, so))
            fr[g] = a.ds("ds_read_b64_tr_b16 v[%d:%d], v%d offset:%d" % (b + 10, b + 11, A_KR, so + 256))
    for kk in range(4): xread(0, kk)
    reads(0); reads(1)
    pend = []
    for g in range(NU * 4):
        u, kk = g // 4, g % 4
        f = g % 3; b = AA + 12 * f
        if kk == 0 and u + 2 < NU and u >= 0 and (u + 2) not in xid:
            pass
        if kk == 2 and u + 1 < NU:
            a.wait(vm=uid[u + 1]); a.e("s_barrier")
        if g + 2 < NU * 4: reads(g + 2)
        if kk >= 2 and u + 1 < NU:
            a.wait(vm=xid[u + 1])
            xread(u + 1, 2 * (kk - 2)); xread(u + 1, 2 * (kk - 2) + 1)
        a.wait(lg=max(fr[g], xfr[(u, kk)]))
        xb = AX + 16 * (u % 2) + 4 * kk
        def pop():
            if pend:
                f, i0, i1 = pend.pop(0); f(i0, i1)
        if kk == 0 and u + 2 < NU:
            a.wait(lg=xfr[(u, 3)])
            pend += [(xdma1, u + 2, q) for q in range(4)]
        if kk == 2 and u + 3 < NU:
            pend += [(wdma1, u + 3, p) for p in range(NWP)]
        M32(a, AQ, b, xb, "0" if g == 0 else AQ)
        pop()
        M32(a, AQ + 16, b + 4, xb, "0" if g == 0 else AQ + 16)
        pop()
        if kind == "K": M32(a, AQ + 32, b + 8, xb, "0" if g == 0 else AQ + 32)
        if kind == "V": M32(a, AQ + 32, xb, b + 8, "0" if g == 0 else AQ + 32)
        if kk == 3:
            while pend: pop()
        if kk == 1 and PF_W1 and u + 2 < NU:
            lab = "%s_pf%d" % (name, u)
            a.e("s_cmp_lg_u32 s%d, %d" % (SW, u & 3)); a.e("s_cbranch_scc1 %s" % lab)
            a.e("buffer_load_dword v216, v215, s[16:19], s38 offen")
            a.label(lab)
            a.e("s_add_u32 s38, s38, %d" % (64 * 7168))
        if kk == 2 and PF_A1 and u + PF_A1 < NU: pfa(u + PF_A1, u & 3)
        if kk == 3 and u == 9: early_cleared(a, name + "_ec")
    a.stamp(2)
    a.e("s_nop 15")
    for c in range(2):
        for k in range(8):
            r = AQ + 16 * c + 2 * k
            a.e("v_pk_mul_f32 v[%d:%d], v[%d:%d], s[44:45]" % (r, r + 1, r, r + 1))
        for k in range(8):
            r = AQ + 16 * c + 2 * k
            a.e("v_cvt_pk_bf16_f32 v%d, v%d, v%d" % (VQ[c] + k, r, r + 1))
    if kind:
        for k in range(8): a.e("v_cvt_pk_bf16_f32 v%d, v%d, v%d" % (AX + k, AQ + 32 + 2 * k, AQ + 33 + 2 * k))
        base(a, 8, WS, "0x%x" % WS_KV, 64 * 4096)
        a.e("s_lshl_b32 s91, s%d, 2" % SMT); a.e("s_add_u32 s91, s91, s%d" % SW); a.e("s_lshl_b32 s91, s91, 12")
        o = 0 if kind == "K" else 2048
        a.e("buffer_store_dwordx4 v[%d:%d], v2, s[8:11], s91 offen offset:%d sc1" % (AX, AX + 3, o))
        a.e("buffer_store_dwordx4 v[%d:%d], v2, s[8:11], s91 offen offset:%d sc1" % (AX + 4, AX + 7, o + 1024))
    a.e("s_waitcnt vmcnt(0) lgkmcnt(0)")
    if DIAG == "kv": a.stamp(3, force=True)
    a.e("s_barrier")
    a.reset_counts()

def koff(t): return ((t // 4) % 4) * 16384 + (t % 4) * 4096
def kv_dma(a, slot):
    a.e("s_add_u32 m0, s30, %d" % (slot * 16384))
    a.e("s_add_u32 s31, s31, 16384")
    for q in range(4):
        a.e("buffer_load_dwordx4 v2, s[8:11], s31 offen offset:%d sc1 lds" % (q * 1024))
def rowmax(a, c):
    S = VS[c]
    a.e("v_max3_f32 v4, v%d, v%d, v%d" % (S, S + 1, S + 2))
    for k in range(3, 15, 2): a.e("v_max3_f32 v4, v4, v%d, v%d" % (S + k, S + k + 1))
    a.e("v_max_f32 v4, v4, v%d" % (S + 15))
def set_negm(a, c, src):
    a.e("v_mov_b32 v5, v%d" % src); a.e("v_mov_b32 v6, v%d" % src)
    a.e("s_nop 1"); a.e("v_permlane32_swap_b32 v5, v6"); a.e("s_nop 1")
    a.e("v_max_f32 v5, v5, v6"); a.e("v_sub_f32 v5, 0, v5")
    for k in range(16): a.e("v_mov_b32 v%d, v5" % (VNM[c] + k))

def gen_gate(a):
    G = GATE
    a.e("v_mov_b32 v4, 0"); a.e("v_mov_b32 v5, 0"); a.e("s_nop 0")
    for k in range(8):
        a.e("v_dot2c_f32_bf16 v4, v%d, v%d" % (G + 8 + k, G + k))
        a.e("v_dot2c_f32_bf16 v5, v%d, v%d" % (G + 16 + k, G + k))
    a.e("s_nop 2")
    for sh in (1, 2, 4, 8):
        for r in (4, 5): a.e("v_add_f32_dpp v%d, v%d, v%d row_shr:%d row_mask:0xf bank_mask:0xf bound_ctrl:0" % (r, r, r, sh))
        a.e("s_nop 0")
    for r in (4, 5): a.e("v_add_f32_dpp v%d, v%d, v%d row_bcast:15 row_mask:0xa bank_mask:0xf" % (r, r, r))
    a.e("s_nop 0")
    for r in (4, 5): a.e("v_add_f32_dpp v%d, v%d, v%d row_bcast:31 row_mask:0xc bank_mask:0xf" % (r, r, r))
    a.e("s_nop 0")
    for r in (4, 5): a.e("v_mul_f32 v%d, 0x%x, v%d" % (r, f2u(-LOG2E), r))
    for r in (4, 5): a.e("v_exp_f32 v%d, v%d" % (r, r))
    a.e("s_nop 0")
    for r in (4, 5): a.e("v_add_f32 v%d, 1.0, v%d" % (r, r))
    for r in (4, 5): a.e("v_rcp_f32 v%d, v%d" % (r, r))
    base(a, 24, WS, "0x%x" % WS_G, 256 * 128)
    a.e("s_lshl_b32 s91, s%d, 4" % SMT); a.e("s_add_u32 s91, s91, s%d" % SNT); a.e("s_lshl_b32 s91, s91, 7")
    a.e("s_lshl_b32 s94, s%d, 3" % SW); a.e("s_add_u32 s91, s91, s94")
    a.e("v_mov_b32 v6, s91")
    a.e("v_cmp_eq_u32 vcc, 63, v1"); a.e("s_nop 1")
    a.e("s_and_saveexec_b64 s[90:91], vcc")
    a.e("buffer_store_dwordx2 v[4:5], v6, s[24:27], 0 offen sc1")
    a.e("s_mov_b64 exec, s[90:91]")

def gen_attn(a, name):
    a.e("s_cmp_lg_u32 s%d, 0" % SW); a.e("s_cbranch_scc1 %s_kvw" % name)
    check_cleared(a, name + "_clr")
    a.e("s_cmp_ge_u32 s%d, 2" % SNT); a.e("s_cbranch_scc1 %s_nokvsig" % name)
    a.e("s_lshl_b32 s28, s%d, 1" % SMT); a.e("s_add_u32 s28, s28, s%d" % SNT); a.e("s_lshl_b32 s28, s28, 2"); a.e("s_add_u32 s28, s28, %d" % F_KV)
    set_flag(a, 28, nrep=KVREP)
    a.label("%s_nokvsig" % name)
    if DIAG == "kv": a.stamp(4, force=True)
    a.e("s_and_b32 s28, s2, %d" % (KVREP - 1)); a.e("s_lshl_b32 s28, s28, 8"); a.e("s_add_u32 s28, s28, %d" % F_KV)
    if "nokvwait" not in EXP: wait_flags(a, name + "_kvp", 28, 31)
    if DIAG == "kv": a.stamp(5, force=True)
    a.label("%s_kvw" % name)
    a.e("s_barrier")
    if PRIO["attn"] != PRIO["a1"]: a.e("s_setprio %d" % PRIO["attn"])
    a.e("s_lshl_b32 s38, s%d, 2" % SMT); a.e("s_add_u32 s38, s38, s%d" % SW); a.e("s_lshl_b32 s38, s38, 6")
    a.e("s_lshl_b32 s91, s%d, 2" % SNT); a.e("s_add_u32 s38, s38, s91"); a.e("s_lshl_b32 s38, s38, 10")
    a.e("s_lshl_b32 s30, s%d, 12" % SW)
    a.e("s_mov_b32 s39, 0")
    base(a, 8, WS, "0x%x" % WS_KV, 64 * 4096)
    base(a, 12, WS, "0x%x" % WS_O, 4 << 20)
    a.label("%s_pass" % name)
    a.e("s_sub_u32 s31, s30, 16384")
    kv_dma(a, 0)
    a.e("v_mov_b32 v4, 0x%x" % FLAG); a.e("v_mov_b32 v5, 0")
    a.e("ds_write_b32 v4, v5")
    a.e("v_bfe_u32 v4, v1, 2, 1"); a.e("v_bfe_u32 v5, v1, 4, 1")
    a.e("v_cmp_eq_u32 vcc, v4, v5")
    a.e("v_mov_b32 v6, 0x3f803f80"); a.e("v_mov_b32 v7, 0")
    for k in range(4): a.e("v_cndmask_b32 v%d, v7, v6, vcc" % (VSEL + k))
    for c in range(2):
        for k in range(16): a.e("v_mov_b32 v%d, 0" % (VO[c] + k))
        for k in range(4): a.e("v_mov_b32 v%d, 0" % (VL[c] + k))
    for k in range(4): a.e("v_mov_b32 v%d, 0" % (VP[1] + 4 + k))
    for k in range(4): a.e("v_mov_b32 v%d, 0" % (VV + 4 + k))
    a.e("s_waitcnt vmcnt(0) lgkmcnt(0)")
    a.e("s_barrier")
    if DIAG == "kv": a.stamp(6, force=True); a.nostamp = True
    a.stamp(3)
    a.e("ds_read_b128 v[%d:%d], v2 offset:0" % (VK, VK + 3))
    a.e("ds_read_b128 v[%d:%d], v2 offset:1024" % (VK + 4, VK + 7))
    kv_dma(a, 1); kv_dma(a, 2)
    a.e("s_cmp_lg_u32 s39, 0")
    a.e("s_cbranch_scc1 %s_havemax" % name)
    base(a, 20, X, None, 2048 * 2048)
    base(a, 24, GW, None, 2048)
    a.e("s_lshl_b32 s91, s%d, 4" % SMT); a.e("s_add_u32 s91, s91, s%d" % SNT); a.e("s_lshl_b32 s91, s91, 2"); a.e("s_add_u32 s91, s91, s%d" % SW)
    a.e("s_lshl_b32 s28, s91, 12")
    a.e("v_lshlrev_b32 v3, 5, v1")
    G = GATE
    a.e("buffer_load_dwordx4 v[%d:%d], v3, s[24:27], 0 offen" % (G, G + 3))
    a.e("buffer_load_dwordx4 v[%d:%d], v3, s[24:27], 0 offen offset:16" % (G + 4, G + 7))
    a.e("buffer_load_dwordx4 v[%d:%d], v3, s[20:23], s28 offen" % (G + 8, G + 11))
    a.e("buffer_load_dwordx4 v[%d:%d], v3, s[20:23], s28 offen offset:16" % (G + 12, G + 15))
    a.e("buffer_load_dwordx4 v[%d:%d], v3, s[20:23], s28 offen offset:2048" % (G + 16, G + 19))
    a.e("buffer_load_dwordx4 v[%d:%d], v3, s[20:23], s28 offen offset:2064" % (G + 20, G + 23))
    a.e("s_waitcnt lgkmcnt(0)")
    for c in range(2):
        M32(a, VS[c], VK, VQ[c], "0")
        M32(a, VS[c], VK + 4, VQ[c] + 4, VS[c])
    a.e("s_nop 15")
    for c in range(2):
        rowmax(a, c); set_negm(a, c, 4)
    a.label("%s_havemax" % name)
    a.e("s_waitcnt lgkmcnt(0)")
    a.e("s_nop 0")
    M32(a, VS[0], VK, VQ[0], VNM[0])
    M32(a, VS[0], VK + 4, VQ[0] + 4, VS[0])
    a.e("ds_read_b128 v[%d:%d], v2 offset:%d" % (VV, VV + 3, 2048))
    a.e("s_nop 15")
    if PF_W2:
        a.e("s_lshl_b32 s91, s%d, 7" % SNT)
        base(a, 16, W2, "s91", 3584 * 2048)
        base(a, 40, WO, "s91", 1024 * 2048)
        a.e("s_and_b32 s91, s%d, 3" % SMT); a.e("s_lshl_b32 s91, s91, 4")
        a.e("v_lshrrev_b32 v3, 4, v1"); a.e("v_lshlrev_b32 v3, 6, v3"); a.e("v_and_b32 v4, 15, v1"); a.e("v_add_u32 v3, v3, v4"); a.e("v_add_u32 v3, s91, v3")
        a.e("v_lshlrev_b32 v215, 11, v3")
        a.e("s_mov_b32 s29, 0"); a.e("s_mov_b32 s32, 0")
    a.e("s_mov_b32 s33, 4")
    a.label("%s_loop" % name)
    for i in range(16):
        ex = None
        if i % 4 == 3:
            a.e("s_waitcnt vmcnt(4)")
            a.e("s_barrier")
            slot = (i // 4 + 3) % 4
            ex = [["s_add_u32 m0, s30, %d" % (slot * 16384), "s_add_u32 s31, s31, 16384", "buffer_load_dwordx4 v2, s[8:11], s31 offen sc1 lds"]]
            ex += [["buffer_load_dwordx4 v2, s[8:11], s31 offen offset:%d sc1 lds" % (q * 1024)] for q in range(1, 4)]
        A.phase(a.e, 0, i, koff, extra=ex)
        if i % 4 == 0 and PF_W2:
            lab = "%s_pf2_%d" % (name, i)
            a.e("s_cmp_lg_u32 s%d, %d" % (SW, i // 4)); a.e("s_cbranch_scc1 %s" % lab)
            a.e("buffer_load_dword v216, v215, s[16:19], s29 offen")
            a.e("s_cmp_lg_u32 s33, 1"); a.e("s_cbranch_scc1 %s" % lab)
            a.e("buffer_load_dword v217, v215, s[40:43], s32 offen")
            a.label(lab)
            a.e("s_add_u32 s29, s29, %d" % (4 * 64 * 2048))
            a.e("s_cmp_lg_u32 s33, 1"); a.e("s_cbranch_scc1 %s_n" % lab)
            a.e("s_add_u32 s32, s32, %d" % (4 * 64 * 2048))
            a.label("%s_n" % lab)
        A.phase(a.e, 1, i, koff)
    a.e("s_cmp_lg_u32 s33, 4")
    a.e("s_cbranch_scc1 %s_nog2" % name)
    a.e("s_cmp_lg_u32 s39, 0")
    a.e("s_cbranch_scc1 %s_nog2" % name)
    gen_gate(a)
    a.label("%s_nog2" % name)
    a.e("s_sub_u32 s33, s33, 1")
    a.e("s_cmp_lg_u32 s33, 0")
    a.e("s_cbranch_scc1 %s_loop" % name)
    a.e("s_waitcnt vmcnt(0) lgkmcnt(0)")
    M32(a, VO[1], VV + 4, VP[1] + 4, VO[1])
    M16(a, VL[1], VSEL, VP[1] + 4, VL[1])
    a.stamp(4)
    a.e("s_nop 15")
    a.e("v_mov_b32 v5, 0x%x" % f2u(2.0 ** 30))
    a.e("v_mov_b32 v7, 0")
    a.e("s_mov_b64 s[34:35], 0")
    for c in range(2):
        a.e("v_rcp_f32 v4, v%d" % VL[c])
        a.e("v_cmp_nle_f32 vcc, v%d, v5" % VL[c])
        a.e("s_or_b64 s[34:35], s[34:35], vcc")
        for k in range(16): a.e("v_mul_f32 v%d, v%d, v4" % (VO[c] + k, VO[c] + k))
        for k in range(16): a.e("v_fma_f32 v7, v%d, 0, v7" % (VO[c] + k))
    a.e("v_cmp_u_f32 vcc, v7, v7")
    a.e("s_or_b64 s[34:35], s[34:35], vcc")
    for c in range(2):
        for k in range(8): a.e("v_cvt_pk_bf16_f32 v%d, v%d, v%d" % (VT + 8 * c + k, VO[c] + 2 * k, VO[c] + 2 * k + 1))
    for c in range(2):
        for m in range(2):
            a.e("buffer_store_dwordx4 v[%d:%d], v2, s[12:15], s38 offen offset:%d sc1" % (VT + 8 * c + 4 * m, VT + 8 * c + 4 * m + 3, c * 2048 + m * 1024))
    a.e("s_cmp_lg_u32 s39, 0")
    a.e("s_cbranch_scc1 %s_ok" % name)
    a.e("s_cmp_eq_u64 s[34:35], 0")
    a.e("s_cbranch_scc1 %s_ok" % name)
    a.e("v_mov_b32 v4, 0x%x" % FLAG); a.e("v_mov_b32 v5, 1")
    a.e("ds_write_b32 v4, v5")
    a.label("%s_ok" % name)
    a.e("s_waitcnt vmcnt(0) lgkmcnt(0)")
    a.e("s_barrier")
    a.e("v_mov_b32 v4, 0x%x" % FLAG)
    a.e("ds_read_b32 v5, v4")
    a.e("s_waitcnt lgkmcnt(0)")
    a.e("v_readfirstlane_b32 s36, v5")
    a.e("s_nop 3")
    a.e("s_cmp_eq_u32 s36, 0")
    a.e("s_cbranch_scc1 %s_store" % name)
    a.e("s_cmp_lg_u32 s39, 0")
    a.e("s_cbranch_scc1 %s_store" % name)
    a.e("s_barrier")
    a.e("s_mov_b32 s39, 1")
    a.e("v_mov_b32 v%d, 0xff800000" % VT)
    a.e("v_mov_b32 v%d, 0xff800000" % (VT + 1))
    a.e("s_mov_b32 s37, 0")
    a.label("%s_mx" % name)
    a.e("buffer_load_dwordx4 v[%d:%d], v2, s[8:11], s37 offen sc1" % (VK, VK + 3))
    a.e("buffer_load_dwordx4 v[%d:%d], v2, s[8:11], s37 offen offset:1024 sc1" % (VK + 4, VK + 7))
    a.e("s_waitcnt vmcnt(0)")
    for c in range(2):
        M32(a, VS[c], VK, VQ[c], "0")
        M32(a, VS[c], VK + 4, VQ[c] + 4, VS[c])
    a.e("s_nop 15")
    for c in range(2):
        for k in range(0, 16, 2): a.e("v_max3_f32 v%d, v%d, v%d, v%d" % (VT + c, VT + c, VS[c] + k, VS[c] + k + 1))
    a.e("s_add_u32 s37, s37, 4096")
    a.e("s_cmp_lt_u32 s37, %d" % (64 * 4096))
    a.e("s_cbranch_scc1 %s_mx" % name)
    for c in range(2): set_negm(a, c, VT + c)
    a.e("s_branch %s_pass" % name)
    a.label("%s_store" % name)
    a.e("s_cmp_lg_u32 s%d, 0" % SW)
    a.e("s_cbranch_scc1 %s_nosig" % name)
    a.e("s_lshl_b32 s28, s%d, 8" % SMT); a.e("s_lshl_b32 s91, s%d, 2" % SNT); a.e("s_add_u32 s28, s28, s91"); a.e("s_add_u32 s28, s28, %d" % F_O)
    set_flag(a, 28, nrep=1)
    a.label("%s_nosig" % name)
    a.stamp(5)
    a.stamp_flush(WS, WS + 1, WS_PROF, SW, 4)
    a.e("s_endpgm")

def gen_role_a(a, name):
    if PRIO["a1"]: a.e("s_setprio %d" % PRIO["a1"])
    a1_setup(a)
    a.e("s_mov_b32 s44, 0x%x" % f2u(QSCALE)); a.e("s_mov_b32 s45, s44")
    a.e("s_lshl_b32 s94, s%d, 7" % SNT)
    a.e("s_waitcnt lgkmcnt(0)")
    a.e("s_cmp_lg_u32 s2, 0"); a.e("s_cbranch_scc1 %s_noclr" % name)
    base(a, 52, WS, "0x%x" % WS_F, F_BYTES)
    a.e("s_lshl_b32 s91, s%d, 12" % SW)
    for k in range(4): a.e("v_mov_b32 v%d, 0" % (8 + k))
    for k in range(4): a.e("buffer_store_dwordx4 v[8:11], v2, s[52:55], s91 offen offset:%d sc1" % (k * 1024))
    a.label("%s_noclr" % name)
    base(a, 8, WQ, "s94", 1024 * 2048)
    base(a, 4, X, None, 2048 * 2048)
    if LAT_A1:
        a.e("s_add_u32 s59, s%d, s%d" % (SMT, SNT)); a.e("s_and_b32 s59, s59, 3")
        a.e("s_mov_b32 s48, s8"); a.e("s_mov_b32 s49, s9")
        lat_base(a, 8, 48, 0, 59, 4, 2 * 64 * 2048)
        lat_base(a, 4, X, 0, 59, 4, 256)
    a.e("s_cmp_eq_u32 s%d, 0" % SNT); a.e("s_cbranch_scc1 %s_aK" % name)
    a.e("s_cmp_eq_u32 s%d, 1" % SNT); a.e("s_cbranch_scc1 %s_aV" % name)
    gen_a1(a, name + "_n", None)
    a.e("s_branch %s_attn" % name)
    a.label("%s_aK" % name); a.reset_counts()
    base(a, 12, WK, None, 1024 * 64)
    if LAT_A1:
        a.e("s_mov_b32 s50, s12"); a.e("s_mov_b32 s51, s13")
        lat_base(a, 12, 50, 0, 59, 4, 2 * 64 * 64)
    gen_a1(a, name + "_k", "K")
    a.e("s_branch %s_attn" % name)
    a.label("%s_aV" % name); a.reset_counts()
    base(a, 12, WV, None, 1024 * 64)
    if LAT_A1:
        a.e("s_mov_b32 s50, s12"); a.e("s_mov_b32 s51, s13")
        lat_base(a, 12, 50, 0, 59, 4, 2 * 64 * 64)
    gen_a1(a, name + "_v", "V")
    a.label("%s_attn" % name)
    gen_attn(a, name)

BW = [8, 36]
BX = [64, 80]
HAC = 100
HB = 212
B_XD, B_WD, B_XR, B_BI, B_WR = 240, 241, 243, 245, 246
LB_X, LB_W = 0, 32768
def hacc(j, tb): return HAC + 16 * j + 4 * tb

def b1_setup(a):
    a.e("v_lshrrev_b32 v3, 3, v1"); a.e("v_and_b32 v4, 6, v3"); a.e("v_and_b32 v5, 7, v1"); a.e("v_xor_b32 v4, v4, v5")
    a.e("v_lshlrev_b32 v4, 4, v4"); a.e("v_lshl_add_u32 v%d, v3, 11, v4" % B_XD)
    a.e("s_lshl_b32 s91, s%d, 7" % SMT); a.e("s_lshl_b32 s92, s%d, 5" % SW); a.e("s_add_u32 s91, s91, s92"); a.e("s_lshl_b32 s91, s91, 11")
    for q in range(4): a.e("s_add_u32 s%d, s91, %d" % (28 + q, q * (8 * 2048 - 1024)))
    a.e("s_lshl_b32 s35, s%d, 12" % SW); a.e("s_add_u32 s36, s35, %d" % LB_W)
    a.e("s_add_u32 s35, s35, %d" % LB_X)

def b1_setup_w(a):
    a.e("v_lshrrev_b32 v3, 5, v1"); a.e("v_bfe_u32 v4, v1, 1, 4"); a.e("v_and_b32 v9, 1, v1"); a.e("v_lshlrev_b32 v9, 4, v9")
    a.e("s_and_b32 s91, s%d, 1" % SW); a.e("s_lshl_b32 s91, s91, 2")
    a.e("v_or_b32 v5, s91, v3")
    a.e("v_mul_u32_u24 v8, 7168, v3"); a.e("v_add_u32 v8, v8, v9")
    a.e("v_mov_b32 v10, 0x40000000")
    for par in range(2):
        a.e("v_xor_b32 v6, %d, v5" % (2 * par))
        a.e("v_xor_b32 v6, v6, v4")
        a.e("v_lshl_add_u32 v7, v6, 5, v8")
        a.e("v_cmp_le_u32 vcc, 14, v6")
        a.e("s_nop 1")
        a.e("v_cndmask_b32 v%d, v7, v10, vcc" % (B_WD + par))

def b1_reads_setup(a):
    a.e("v_and_b32 v5, 15, v1"); a.e("v_lshrrev_b32 v6, 4, v1"); a.e("v_bfe_u32 v7, v1, 2, 2"); a.e("v_and_b32 v8, 3, v1")
    a.e("s_and_b32 s37, s%d, 1" % SW); a.e("s_lshr_b32 s38, s%d, 1" % SW)
    a.e("v_and_b32 v3, 6, v5"); a.e("v_xor_b32 v3, v3, v6"); a.e("v_lshlrev_b32 v4, 4, v3"); a.e("v_lshl_add_u32 v4, v5, 7, v4")
    a.e("s_lshl_b32 s91, s37, 13"); a.e("v_add_u32 v%d, s91, v4" % B_XR); a.e("v_xor_b32 v%d, 64, v%d" % (B_XR + 1, B_XR))
    a.e("v_and_b32 v3, 1, v6"); a.e("v_lshl_or_b32 v3, v3, 2, v7")
    a.e("v_lshl_add_u32 v4, v6, 3, v7"); a.e("v_lshlrev_b32 v4, 9, v4"); a.e("v_lshl_add_u32 v4, v8, 3, v4"); a.e("v_add_u32 v4, %d, v4" % LB_W)
    a.e("s_mul_i32 s91, s38, 7")
    for j in range(7):
        a.e("s_add_u32 s94, s91, %d" % j)
        a.e("v_xor_b32 v9, s94, v3")
        a.e("v_lshl_add_u32 v%d, v9, 5, v4" % (B_WR + j))
    a.e("v_lshlrev_b32 v%d, 3, v6" % B_BI)
    a.e("s_mul_i32 s39, s%d, 448" % SNT); a.e("s_mul_i32 s91, s38, 224"); a.e("s_add_u32 s39, s39, s91")

def b1_x0(a, xid):
    a.set_m0(35, 0)
    for q in range(4):
        xid[0] = a.vm("buffer_load_dwordx4 v%d, s[4:7], s%d offen offset:%d lds" % (B_XD, 28 + q, q * 1024))
    if ROT_B1: rot_adv(a, 4, X, 57, 128, 2048)
    else: add64(a, 4, 128)

def gen_b1(a, name, after_loop, xid):
    NH = 32
    wid = {}
    def wdma1(h, i):
        a.set_m0(36, (h % 3) * 16384)
        wid[h] = a.vm("buffer_load_dwordx4 v%d, s[8:11], s%d offen offset:%d lds" % (B_WD + (i & 1), 48 + i, i * 1024))
        if i == 3:
            if LAT_B1 and (h + 1) % 4 == 0:
                if h + 1 < NH: lat_base(a, 8, 12, (h + 1) // 4, 59, 4, 4 * 32 * 7168)
            elif ROT_B1: rot_adv(a, 8, 12, 56, 32 * 7168, 1024 * 7168)
            else: add64(a, 8, 32 * 7168)
    def xdma1(s, q):
        a.set_m0(35, (s % 2) * 16384)
        xid[s] = a.vm("buffer_load_dwordx4 v%d, s[4:7], s%d offen offset:%d lds" % (B_XD, 28 + q, q * 1024))
        if q == 3:
            if LAT_B1 and (s + 1) % 2 == 0:
                if s + 1 < 16: lat_base(a, 4, X, (s + 1) // 2, 59, 4, 256)
            elif ROT_B1: rot_adv(a, 4, X, 57, 128, 2048)
            else: add64(a, 4, 128)
    def wdma(h):
        for i in range(4): wdma1(h, i)
    def xdma(s):
        for q in range(4): xdma1(s, q)
    wdma(0); wdma(1)
    b1_reads_setup(a)
    base(a, 24, B1P, None, 3584 * 2)
    bias = []
    for j in range(7):
        bias.append(a.vm("buffer_load_dwordx2 v[%d:%d], v%d, s[24:27], s39 offen offset:%d" % (HB + 4 * j, HB + 4 * j + 1, B_BI, 32 * j)))
    def pf(hh, wave):
        lab = "%s_pf%d" % (name, hh)
        a.e("s_cmp_lg_u32 s%d, %d" % (SW, wave)); a.e("s_cbranch_scc1 %s" % lab)
        a.e("buffer_load_dword v96, v97, s[16:19], s34 offen")
        a.label(lab)
        a.e("s_add_u32 s34, s34, %d" % (32 * 7168))
    def pfx(st, wave):
        lab = "%s_px%d" % (name, st)
        a.e("s_cmp_lg_u32 s%d, %d" % (SW, wave)); a.e("s_cbranch_scc1 %s" % lab)
        a.e("buffer_load_dword v96, v98, s[20:23], s39x offen".replace("s39x", "s58"))
        a.label(lab)
        a.e("s_add_u32 s58, s58, 128")
    if PF_BX:
        base(a, 20, X, None, 2048 * 2048)
        a.e("s_and_b32 s91, s%d, 7" % SNT); a.e("s_lshl_b32 s91, s91, 4"); a.e("s_lshl_b32 s94, s%d, 7" % SMT); a.e("s_add_u32 s91, s91, s94")
        a.e("v_add_u32 v3, s91, v1"); a.e("v_lshlrev_b32 v3, 11, v3"); a.e("v_mov_b32 v4, 0x40000000")
        a.e("v_cmp_le_u32 vcc, 16, v1"); a.e("s_nop 1"); a.e("v_cndmask_b32 v98, v3, v4, vcc")
        a.e("s_mov_b32 s58, %d" % (2 * 128))
    if PF_B1:
        a.e("s_mul_i32 s91, s%d, 448" % SNT); a.e("s_and_b32 s91, s91, 0xffffff80")
        base(a, 16, W1, "s91", 1024 * 7168)
        a.e("s_and_b32 s91, s%d, 3" % SMT); a.e("s_lshl_b32 s91, s91, 3")
        a.e("v_lshrrev_b32 v3, 2, v1"); a.e("v_add_u32 v3, s91, v3"); a.e("v_mul_u32_u24 v3, 7168, v3")
        a.e("v_and_b32 v4, 3, v1"); a.e("v_lshl_add_u32 v3, v4, 7, v3"); a.e("v_mov_b32 v4, 0x40000000")
        a.e("v_cmp_le_u32 vcc, 32, v1"); a.e("s_nop 1"); a.e("v_cndmask_b32 v97, v3, v4, vcc")
        a.e("s_mov_b32 s34, %d" % (3 * 32 * 7168))
    a.wait(vm=max(wid[0], xid[0])); a.e("s_barrier")
    a.stamp(1)
    if BPRO is not None: a.e("s_setprio %d" % PRIO["b1"])
    wdma(2); xdma(1)
    if BURST: burst(a)
    if PF_B1:
        for hh in range(3, PF_B1): pf(hh, hh & 3)
    if PF_BX:
        for st in range(2, PF_BX): pfx(st, st & 3)
    rd = {}
    def rlist(h):
        s, kk = h // 2, h % 2
        L = []
        for tb in range(4):
            r = BX[h % 2] + 4 * tb
            L.append("ds_read_b128 v[%d:%d], v%d offset:%d" % (r, r + 3, B_XR + kk, (s % 2) * 16384 + tb * 2048))
        for j in range(7):
            r = BW[h % 2] + 4 * j
            o = (h % 3) * 16384
            L.append("ds_read_b64_tr_b16 v[%d:%d], v%d offset:%d" % (r, r + 1, B_WR + j, o))
            L.append("ds_read_b64_tr_b16 v[%d:%d], v%d offset:%d" % (r + 2, r + 3, B_WR + j, o + 2048))
        return L
    for x in rlist(0): rd[0] = a.ds(x)
    a.wait(vm=bias[-1])
    for j in range(7):
        b = HB + 4 * j
        a.e("v_and_b32 v%d, 0xffff0000, v%d" % (b + 3, b + 1))
        a.e("v_lshlrev_b32 v%d, 16, v%d" % (b + 2, b + 1))
        a.e("v_and_b32 v%d, 0xffff0000, v%d" % (b + 1, b))
        a.e("v_lshlrev_b32 v%d, 16, v%d" % (b, b))
    for h in range(NH):
        s, kk = h // 2, h % 2
        need = None
        if h + 1 < NH:
            need = wid[h + 1]
            need = max(need, xid[(h + 1) // 2])
        a.wait(vm=need if "nowait" not in EXP else None, lg=rd[h])
        if "nobar" not in EXP: a.e("s_barrier")
        if DIAG == "b1" and h in (8, 16, 24): a.stamp(1 + h // 8, force=True)
        todo = rlist(h + 1) if h + 1 < NH else []
        if "nords" in EXP and todo: rd[h + 1] = a.lg_n - 1; todo = []
        dma = []
        if h + 3 < NH:
            if "now" in EXP: wid[h + 3] = a.vm_n - 1
            else: dma += [(wdma1, h + 3, i) for i in range(4)]
        if kk == 1 and s + 2 < 16:
            if "nox" in EXP: xid[s + 2] = a.vm_n - 1
            else: dma += [(xdma1, s + 2, q) for q in range(4)]
        if h == NH - 1: after_loop()
        if h == 16 and "noa" not in EXP: early_cleared(a, name + "_ec")
        n = 0
        for j in range(7):
            for tb in range(4):
                d = hacc(j, tb)
                c = "v[%d:%d]" % (HB + 4 * j, HB + 4 * j + 3) if h == 0 else "v[%d:%d]" % (d, d + 3)
                a.e("v_mfma_f32_16x16x32_bf16 v[%d:%d], v[%d:%d], v[%d:%d], %s" % (d, d + 3, BW[h % 2] + 4 * j, BW[h % 2] + 4 * j + 3, BX[h % 2] + 4 * tb, BX[h % 2] + 4 * tb + 3, c))
                n += 1
                if todo and n >= 1 and tb != 3:
                    rd[h + 1] = a.ds(todo.pop(0))
                if dma and (tb == 3 or (tb == 1 and j == 3)):
                    f, i0, i1 = dma.pop(0)
                    f(i0, i1)
                if tb == 3 and j == 4 and PF_B1 and h + PF_B1 < NH: pf(h + PF_B1, h & 3)
                if tb == 3 and j == 5 and PF_BX and kk == 0 and s + PF_BX < 16: pfx(s + PF_BX, s & 3)
        while todo: rd[h + 1] = a.ds(todo.pop(0))
        assert not dma
    a.stamp(5 if DIAG == "b1" else 2, force=True)
    if DIAG == "b1": a.nostamp = True

def b1_epilogue(a):
    a.e("s_mov_b32 s44, 0x%x" % f2u(LOG2E)); a.e("s_mov_b32 s45, s44")
    a.e("s_mov_b32 s46, 0x%x" % f2u(-2.0)); a.e("s_mov_b32 s47, s46")
    base(a, 20, WS, "0x%x" % WS_H, WS_H_BYTES)
    a.e("s_lshl_b32 s91, s%d, 2" % SMT); a.e("s_lshl_b32 s94, s37, 1"); a.e("s_add_u32 s91, s91, s94")
    a.e("s_mul_i32 s91, s91, 224"); a.e("s_mul_i32 s94, s%d, 14" % SNT); a.e("s_add_u32 s91, s91, s94")
    a.e("s_mul_i32 s94, s38, 7"); a.e("s_add_u32 s91, s91, s94"); a.e("s_lshl_b32 s56, s91, 10")
    a.e("s_add_u32 s57, s56, %d" % (224 * 1024))
    a.e("s_add_u32 s58, s56, 4096"); a.e("s_add_u32 s59, s57, 4096")
    a.e("s_nop 7")
    cnt = 0
    for j in range(7):
        for pair in range(2):
            Aa = hacc(j, 2 * pair)
            t = HB + 16 * (cnt % 2); q = t + 12; cnt += 1
            if PKMISH:
                for k in range(4): a.e("v_pk_mul_f32 v[%d:%d], v[%d:%d], s[44:45]" % (t + 2 * k, t + 2 * k + 1, Aa + 2 * k, Aa + 2 * k + 1))
                for k in range(8): a.e("v_exp_f32 v%d, v%d" % (t + k, t + k))
                for k in range(4): a.e("v_pk_add_f32 v[%d:%d], v[%d:%d], 2.0 op_sel_hi:[1,0]" % (t + 8 + 2 * k, t + 9 + 2 * k, t + 2 * k, t + 2 * k + 1))
                for k in range(4): a.e("v_pk_fma_f32 v[%d:%d], v[%d:%d], v[%d:%d], 2.0 op_sel_hi:[1,1,0]" % (t + 2 * k, t + 2 * k + 1, t + 2 * k, t + 2 * k + 1, t + 8 + 2 * k, t + 9 + 2 * k))
                for k in range(8): a.e("v_rcp_f32 v%d, v%d" % (t + k, t + k))
                for k in range(4): a.e("v_pk_fma_f32 v[%d:%d], v[%d:%d], s[46:47], 1.0 op_sel_hi:[1,1,0]" % (t + 2 * k, t + 2 * k + 1, t + 2 * k, t + 2 * k + 1))
                for k in range(4): a.e("v_pk_mul_f32 v[%d:%d], v[%d:%d], v[%d:%d]" % (t + 2 * k, t + 2 * k + 1, t + 2 * k, t + 2 * k + 1, Aa + 2 * k, Aa + 2 * k + 1))
            else:
                for k in range(8): a.e("v_mul_f32 v%d, s44, v%d" % (t + k, Aa + k))
                for k in range(8): a.e("v_exp_f32 v%d, v%d" % (t + k, t + k))
                for k in range(8): a.e("v_add_f32 v%d, 2.0, v%d" % (t + 8 + k, t + k))
                for k in range(8): a.e("v_fma_f32 v%d, v%d, v%d, 2.0" % (t + k, t + k, t + 8 + k))
                for k in range(8): a.e("v_rcp_f32 v%d, v%d" % (t + k, t + k))
                for k in range(8): a.e("v_fma_f32 v%d, v%d, -2.0, 1.0" % (t + k, t + k))
                for k in range(8): a.e("v_mul_f32 v%d, v%d, v%d" % (t + k, t + k, Aa + k))
            for k in range(4): a.e("v_cvt_pk_bf16_f32 v%d, v%d, v%d" % (q + k, t + 2 * k, t + 2 * k + 1))
            a.e("s_nop 1")
            a.e("v_permlane16_swap_b32 v%d, v%d" % (q, q + 2))
            a.e("v_permlane16_swap_b32 v%d, v%d" % (q + 1, q + 3))
            a.vm("buffer_store_dwordx4 v[%d:%d], v2, s[20:23], s%d offen offset:%d sc1" % (q, q + 3, (56 if j < 4 else 58) + pair, (j % 4) * 1024))

NHR = 20; NWU = 8
BH = 32; BA = 144; BAC = 168; AAC = 200
POLL_U = 55; OBURST = 4
BSW = None
def gen_role_b(a, name):
    a.e("s_setprio %d" % (BPRO if BPRO is not None else PRIO["b1"]))
    for e in EXP:
        if e.startswith("bdelay"):
            for k in range(int(e[6:])): a.e("s_sleep 32")
    b1_setup(a)
    a.e("s_waitcnt lgkmcnt(0)")
    base(a, 4, X, None, 2048 * 2048)
    if LAT_B1:
        a.e("s_add_u32 s59, s%d, s%d" % (SMT, SNT)); a.e("s_and_b32 s59, s59, 3")
        lat_base(a, 4, X, 0, 59, 4, 256)
    if ROT_B1:
        a.e("s_add_u32 s91, s%d, s%d" % (SMT, SNT)); a.e("s_and_b32 s91, s91, 3"); a.e("s_mul_i32 s91, s91, %d" % ROT_B1)
        a.e("s_lshl_b32 s57, s91, 6")
        a.e("s_mul_i32 s56, s91, %d" % (32 * 7168))
        a.e("s_add_u32 s4, s%d, s57" % X); a.e("s_addc_u32 s5, s%d, 0" % (X + 1))
    xid0 = {}
    b1_x0(a, xid0)
    b1_setup_w(a)
    a.e("s_mul_i32 s94, s%d, 448" % SNT)
    a.e("s_add_u32 s92, s%d, s94" % W1); a.e("s_addc_u32 s93, s%d, 0" % (W1 + 1))
    srd(a, 8, 92, 93, 1024 * 7168)
    if LAT_B1:
        a.e("s_mov_b32 s12, s92"); a.e("s_mov_b32 s13, s93")
        lat_base(a, 8, 12, 0, 59, 4, 4 * 32 * 7168)
    if ROT_B1:
        a.e("s_mov_b32 s12, s92"); a.e("s_mov_b32 s13, s93")
        a.e("s_add_u32 s8, s12, s56"); a.e("s_addc_u32 s9, s13, 0")
    a.e("s_mul_i32 s91, s%d, %d" % (SW, 8 * 7168))
    for i in range(4): a.e("s_add_u32 s%d, s91, %d" % (48 + i, i * (2 * 7168 - 1024)))
    NG = 288; NU = 72; GB = 224; UB = 56
    uid = {}; hid = {}
    st = dict(nu=0)
    def wdma(u):
        sb = 16 if u < UB else 40
        a.set_m0(35, (u % NWU) * 8192)
        a.vm("buffer_load_dwordx4 v10, s[%d:%d], s33 offen lds" % (sb, sb + 3))
        uid[u] = a.vm("buffer_load_dwordx4 v10, s[%d:%d], s32 offen offset:1024 lds" % (sb, sb + 3))
        if LAT_B and (u + 1) % 2 == 0:
            if u + 1 < UB: lat_base(a, 16, 12, (u + 1) // 2, 36, 4, 2 * 64 * 2048)
            elif UB < u + 1 < NU: lat_base(a, 40, 14, (u + 1 - UB) // 2, 36, 4, 2 * 64 * 2048)
        else: add64(a, sb, 64 * 2048)
    def after_loop():
        a.e("v_lshrrev_b32 v3, 3, v1"); a.e("v_bfe_u32 v4, v1, 4, 1"); a.e("v_lshlrev_b32 v4, 2, v4"); a.e("v_and_b32 v5, 7, v1")
        a.e("v_xor_b32 v4, v4, v5"); a.e("v_lshlrev_b32 v4, 4, v4"); a.e("v_lshl_add_u32 v10, v3, 11, v4")
        a.e("s_lshl_b32 s33, s%d, 15" % SW); a.e("s_add_u32 s32, s33, %d" % (8 * 2048 - 1024))
        a.e("s_lshl_b32 s35, s%d, 11" % SW)
        a.e("s_lshl_b32 s34, s%d, 7" % SNT)
        base(a, 16, W2, "s34", 3584 * 2048)
        base(a, 40, WO, "s34", 1024 * 2048)
        if LAT_B:
            a.e("s_add_u32 s36, s%d, s%d" % (SMT, SNT)); a.e("s_and_b32 s36, s36, 3")
            a.e("s_mov_b32 s12, s16"); a.e("s_mov_b32 s13, s17"); a.e("s_mov_b32 s14, s40"); a.e("s_mov_b32 s15, s41")
            lat_base(a, 16, 12, 0, 36, 4, 2 * 64 * 2048)
            lat_base(a, 40, 14, 0, 36, 4, 2 * 64 * 2048)
        a.cur_m0 = None
        for u in range(4): wdma(u)
        st["nu"] = 4
    gen_b1(a, name + "_b1", after_loop, xid0)
    if "b1only" in EXP:
        a.e("s_waitcnt vmcnt(0)")
        a.stamp_flush(WS, WS + 1, WS_PROF, SW, 4)
        a.e("s_endpgm")
        return
    if PRIO["mish"] != PRIO["b1"]: a.e("s_setprio %d" % PRIO["mish"])
    b1_epilogue(a)
    for u in range(4, NWU - 1): wdma(u)
    st["nu"] = NWU - 1
    a.e("s_waitcnt vmcnt(0)"); a.vm_done = a.vm_n
    a.e("s_barrier")
    a.e("s_cmp_lg_u32 s%d, 0" % SW); a.e("s_cbranch_scc1 %s_hw" % name)
    check_cleared(a, name + "_clrb")
    a.e("s_lshl_b32 s28, s%d, 8" % SMT); a.e("s_add_u32 s29, s28, %d" % F_H)
    a.e("s_lshl_b32 s91, s%d, 2" % SNT); a.e("s_add_u32 s28, s29, s91")
    set_flag(a, 28, nrep=1)
    a.stamp(3)
    if "nohwait" not in EXP: wait_flags(a, name + "_hp", 29, 15)
    a.label("%s_hw" % name)
    a.e("s_lshl_b32 s90, s%d, 2" % SMT); a.e("s_add_u32 s56, s90, s%d" % SW)
    a.e("s_mul_i32 s31, s56, %d" % (224 * 1024))
    a.e("s_lshl_b32 s38, s56, 16")
    if LAT_B:
        a.e("s_mov_b32 s57, s31"); a.e("s_mov_b32 s58, s38")
        lat_off(a, 31, 57, 0, 36, 4, 8192)
        lat_off(a, 38, 58, 0, 36, 4, 8192)
    base(a, 8, WS, "0x%x" % WS_H, WS_H_BYTES)
    base(a, 4, WS, "0x%x" % WS_O, 4 << 20)
    base(a, 20, WS, "0x%x" % WS_G, 256 * 128)
    base(a, 24, OUT, None, 2048 * 2048)
    a.e("v_lshrrev_b32 v3, 5, v1"); a.e("v_bfe_u32 v4, v1, 2, 2"); a.e("v_bfe_u32 v5, v1, 4, 1"); a.e("v_and_b32 v6, 3, v1")
    a.e("v_lshrrev_b32 v7, 1, v4"); a.e("v_lshlrev_b32 v7, 6, v7"); a.e("v_lshl_add_u32 v7, v5, 5, v7"); a.e("v_lshl_add_u32 v7, v6, 3, v7")
    a.e("v_lshl_add_u32 v8, v3, 3, v4"); a.e("v_lshl_add_u32 v12, v8, 7, v7"); a.e("v_xor_b32 v13, 64, v12")
    a.e("v_lshl_add_u32 v8, v3, 2, v4"); a.e("v_lshl_add_u32 v14, v8, 7, v7"); a.e("v_xor_b32 v15, 64, v14")
    a.e("v_and_b32 v4, 31, v1"); a.e("s_lshl_b32 s91, s56, 5"); a.e("v_add_u32 v4, s91, v4")
    a.e("v_lshrrev_b32 v5, 3, v4"); a.e("v_and_b32 v6, 7, v4"); a.e("v_lshlrev_b32 v6, 2, v6"); a.e("v_lshl_add_u32 v16, v5, 7, v6")
    a.e("v_lshlrev_b32 v17, 11, v4"); a.e("v_lshl_add_u32 v17, v3, 4, v17")
    a.e("s_lshl_b32 s37, s%d, 8" % SMT); a.e("s_add_u32 s37, s37, %d" % F_O)
    a.e("s_barrier")
    a.stamp(4)
    a.e("s_setprio %d" % PRIO["b"])
    def hload(g):
        r = BH + 4 * (g % NHR)
        if g < GB:
            hid[g] = a.vm("buffer_load_dwordx4 v[%d:%d], v2, s[8:11], s31 offen offset:%d sc1" % (r, r + 3, (g % 4) * 1024))
            if g % 4 == 3:
                if LAT_B and (g + 1) % 8 == 0:
                    if g + 1 < GB: lat_off(a, 31, 57, (g + 1) // 8, 36, 4, 8192)
                else: a.e("s_add_u32 s31, s31, 4096")
        else:
            hid[g] = a.vm("buffer_load_dwordx4 v[%d:%d], v2, s[4:7], s38 offen offset:%d sc1" % (r, r + 3, (g % 4) * 1024))
            if g % 4 == 3:
                if LAT_B and (g + 1) % 8 == 0:
                    if g + 1 < NG: lat_off(a, 38, 58, (g + 1 - GB) // 8, 36, 4, 8192)
                else: a.e("s_add_u32 s38, s38, 4096")
    for g in range(8): hload(g)
    nh = 8
    fr = {}
    def reads(g):
        u, kk = g // 4, g % 4
        so = (u % NWU) * 8192 + kk * 2048
        f = g % 3
        va, d = (12, 512) if g < GB else (14, 1024)
        for ng in range(2):
            a.ds("ds_read_b64_tr_b16 v[%d:%d], v%d offset:%d" % (BA + 8 * f + 4 * ng, BA + 8 * f + 4 * ng + 1, va + ng, so))
            fr[g] = a.ds("ds_read_b64_tr_b16 v[%d:%d], v%d offset:%d" % (BA + 8 * f + 4 * ng + 2, BA + 8 * f + 4 * ng + 3, va + ng, so + d))
    reads(0); reads(1)
    polled = False
    nu = st["nu"]
    for g in range(NG):
        u, kk = g // 4, g % 4
        f = g % 3
        if kk == 2 and u + 1 < NU:
            assert u + 1 in uid
            if u == POLL_U:
                a.e("s_cmp_lg_u32 s%d, 0" % SW)
                a.e("s_cbranch_scc1 %s_polled" % name)
                if "noowait" not in EXP: wait_flags(a, name + "_op", 37, 15)
                a.label("%s_polled" % name)
                polled = True
            a.wait(vm=uid[u + 1]); a.e("s_barrier")
            if u == POLL_U:
                gid = a.vm("buffer_load_dword v22, v16, s[20:23], 0 offen sc1")
                a.stamp(5)
        if BSW and g == BSW[0]: a.e("s_setprio %d" % BSW[1])
        if g + 2 < NG: reads(g + 2)
        assert g in hid
        a.wait(vm=hid[g], lg=fr[g])
        hb = BH + 4 * (g % NHR)
        acc = BAC if g < GB else AAC
        for ng in range(2):
            M32(a, acc + 16 * ng, BA + 8 * f + 4 * ng, hb, "0" if g in (0, GB) else acc + 16 * ng)
        cnt = 0
        while nh < min(g + 1 + NHR, NG) and cnt < (OBURST if polled else 2) and (nh < GB or polled):
            hload(nh); nh += 1; cnt += 1
        if nu < NU and (nu < NWU or (u, kk) >= (nu - NWU + 1, 2)):
            wdma(nu); nu += 1
    a.stamp(6)
    a.wait(vm=gid)
    a.e("v_sub_f32 v23, 1.0, v22")
    for k in range(32): a.e("v_mul_f32 v%d, v%d, v23" % (BAC + k, BAC + k))
    for k in range(32): a.e("v_fmac_f32 v%d, v%d, v22" % (BAC + k, AAC + k))
    for k in range(16): a.e("v_cvt_pk_bf16_f32 v%d, v%d, v%d" % (BH + k, BAC + 2 * k, BAC + 2 * k + 1))
    a.e("s_nop 1")
    for q in range(4):
        b = BH + 4 * q
        a.e("v_permlane32_swap_b32 v%d, v%d" % (b, b + 2))
        a.e("v_permlane32_swap_b32 v%d, v%d" % (b + 1, b + 3))
    for q in range(4):
        b = BH + 4 * q
        a.vm("buffer_store_dwordx4 v[%d:%d], v17, s[24:27], s34 offen offset:%d" % (b, b + 3, 32 * q))
    if a.prof: a.e("s_waitcnt vmcnt(0)")
    a.stamp(7)
    a.stamp_flush(WS, WS + 1, WS_PROF, SW, 4)
    a.e("s_endpgm")

def gen_kernel(name, prof=False):
    a = Asm(); a.prof = prof; a.PROF_V = 254
    a.raw(kernel_header(name))
    a.e("s_cmp_ge_u32 s2, 512")
    a.e("s_cbranch_scc1 %s_exit" % name)
    if prof: a.e("v_mov_b32 v254, 0")
    a.stamp(0)
    a.e("s_load_dwordx8 s[60:67], s[0:1], 0")
    a.e("s_load_dwordx8 s[72:79], s[0:1], 48")
    a.e("s_load_dwordx2 s[68:69], s[0:1], 32")
    a.e("s_load_dwordx4 s[80:83], s[0:1], 80")
    a.e("s_load_dwordx2 s[84:85], s[0:1], 96")
    a.e("v_and_b32 v1, 63, v0")
    a.e("v_lshrrev_b32 v3, 6, v0")
    a.e("v_lshlrev_b32 v2, 4, v1")
    a.e("v_readfirstlane_b32 s%d, v3" % SW)
    a.e("s_and_b32 s%d, s2, 255" % SID)
    a.e("s_and_b32 s90, s%d, 7" % SID); a.e("s_lshr_b32 s91, s%d, 3" % SID)
    a.e("s_lshr_b32 s92, s90, 1"); a.e("s_lshl_b32 s92, s92, 2"); a.e("s_lshr_b32 s93, s91, 3"); a.e("s_add_u32 s%d, s92, s93" % SMT)
    a.e("s_and_b32 s92, s90, 1"); a.e("s_lshl_b32 s92, s92, 3"); a.e("s_and_b32 s93, s91, 7"); a.e("s_add_u32 s%d, s92, s93" % SNT)
    a.e("s_cmp_ge_u32 s2, 256")
    a.e("s_cbranch_scc1 %s_roleb" % name)
    if "noa" in EXP: a.e("s_endpgm")
    else: gen_role_a(a, name)
    a.label("%s_roleb" % name)
    a.nostamp = False
    a.reset_counts()
    gen_role_b(a, name)
    a.label("%s_exit" % name)
    a.e("s_endpgm")
    return a.text()
```

```python
import sys
sys.path.insert(0, "work")
from build import build
import s1
prof = "prof" in sys.argv
for x in sys.argv:
    if x.startswith("prio="):
        v = x[5:]; s1.PRIO = dict(a1=int(v[0]), attn=int(v[1]), b1=int(v[2]), b=int(v[3]), mish=int(v[4]) if len(v) > 4 else int(v[2]))
    if x == "nopf1": s1.PF_W1 = False
    if x == "pf1": s1.PF_W1 = True
    if x == "latb": s1.LAT_B1 = True
    if x == "nolat": s1.LAT_B1 = s1.LAT_A1 = s1.LAT_B = False
    if x == "dbgt": s1.DBGT = True
    if x == "lata": s1.LAT_A1 = True
    if x == "latbb": s1.LAT_B = True
    if x == "nopk": s1.PKMISH = False
    if x.startswith("bpro="): s1.BPRO = int(x[5:])
    if x.startswith("bsw="): s1.BSW = tuple(int(v) for v in x[4:].split(","))
    if x.startswith("pfx="): s1.PF_BX = int(x[4:])
    if x.startswith("kvrep="): s1.KVREP = int(x[6:])
    if x.startswith("sleep="): s1.SLEEP = int(x[6:])
    if x == "burst": s1.BURST = True
    if x.startswith("rotb="): s1.ROT_B1 = int(x[5:])
    if x.startswith("exp="): s1.EXP = set(x[4:].split("+"))
    if x.startswith("pfb="): s1.PF_B1 = int(x[4:])
    if x.startswith("pfa="): s1.PF_A1 = int(x[4:])
    if x.startswith("diag="): s1.DIAG = x[5:]
    if x == "nopf2": s1.PF_W2 = False
    if x.startswith("pollu="): s1.POLL_U = int(x[6:])
    if x.startswith("nhr="): s1.NHR = int(x[4:])
NAME = "gated_mix__grouped_kv_mqa__dense_activation_mish__prompt_kernel"
ks = [dict(name=NAME, text=s1.gen_kernel(NAME, prof=prof), grid=512, block=256, lds=81920, nfv=256, accum=256)]
open(sys.argv[1], "w").write(build(ks, plain=("plain" in sys.argv)))
```

```python
from asmlib import *
import struct
def f2u(x): return struct.unpack("<I", struct.pack("<f", x))[0]
import attn64 as A
from attn64 import VQ, VK, VV, VS, VP, VO, VL, VSEL, VNM, VT

WS_H = 4 << 20; WS_H_BYTES = 64 * 224 * 1024
WS_KV = 20 << 20; WS_O = 21 << 20; WS_G = 25 << 20; WS_F = 27 << 20; WS_PROF = 48 << 20
F_KV = 0; F_H = 8192; F_O = 12288; F_BYTES = 16384
KVREP = 32; SLEEP = 6
QSCALE = 0.25503486322159136
LOG2E = 1.4426950408889634
X, WQ, WK, WV, WO, W1, B1P, W2, GW, OUT, DBG, WS = 60, 62, 64, 66, 68, 72, 74, 76, 78, 80, 82, 84
SW, SMT, SNT, SID = 86, 87, 88, 89
FLAG = 65536; GATE = 180
PRIO = dict(a1=2, attn=0, b1=2, b=0, mish=3)
SPIN = 0x40000
PF_W1 = False
PF_B1 = 0
PF_BX = 0
PF_A1 = 0
DIAG = None
DBGT = False
LAT_A1 = True
LAT_B = True
LAT_B1 = True
PKMISH = True
BPRO = None
BURST = False
ROT_B1 = 0
EXP = set()
PF_W2 = True

def M32(a, d, x, y, c): A.M32(a.e, d, x, y, c)
def M16(a, d, x, y, c): A.M16(a.e, d, x, y, c)
def base(a, d, ptr, add, nbytes):
    if add is None:
        srd(a, d, ptr, ptr + 1, nbytes)
    else:
        a.e("s_add_u32 s92, s%d, %s" % (ptr, add)); a.e("s_addc_u32 s93, s%d, 0" % (ptr + 1))
        srd(a, d, 92, 93, nbytes)

def rot_adv(a, sb, blo, sk, step, total):
    a.e("s_add_u32 s%d, s%d, %d" % (sk, sk, step))
    a.e("s_cmp_eq_u32 s%d, %d" % (sk, total))
    a.e("s_cselect_b32 s%d, 0, s%d" % (sk, sk))
    a.e("s_add_u32 s%d, s%d, s%d" % (sb, blo, sk)); a.e("s_addc_u32 s%d, s%d, 0" % (sb + 1, blo + 1))

def burst(a, va=98, vd=99):
    a.e("s_lshl_b32 s96, s2, 2"); a.e("s_add_u32 s96, s96, s%d" % SW)
    a.e("v_lshlrev_b32 v3, 7, v1"); a.e("v_mov_b32 v4, 0x40000000")
    for ptr, nbytes, nl in ((W1, 1024 * 7168, 28), (X, 2048 * 2048, 16), (WQ, 1024 * 2048, 8)):
        base(a, 40, ptr, None, nbytes)
        a.e("s_mul_i32 s95, s96, %d" % (nl * 128))
        a.e("v_cmp_le_u32 vcc, %d, v1" % nl); a.e("s_nop 1")
        a.e("v_cndmask_b32 v%d, v3, v4, vcc" % va)
        a.e("buffer_load_dword v%d, v%d, s[40:43], s95 offen" % (vd, va))

def lat_base(a, sb, blo, q, rreg, nslots, step):
    a.e("s_add_u32 s94, s%d, %d" % (rreg, q % nslots)); a.e("s_and_b32 s94, s94, %d" % (nslots - 1))
    if q // nslots: a.e("s_add_u32 s94, s94, %d" % (nslots * (q // nslots)))
    a.e("s_mul_i32 s94, s94, %d" % step)
    a.e("s_add_u32 s%d, s%d, s94" % (sb, blo)); a.e("s_addc_u32 s%d, s%d, 0" % (sb + 1, blo + 1))

def lat_off(a, sd, sbase, q, rreg, nslots, step):
    a.e("s_add_u32 s94, s%d, %d" % (rreg, q % nslots)); a.e("s_and_b32 s94, s94, %d" % (nslots - 1))
    if q // nslots: a.e("s_add_u32 s94, s94, %d" % (nslots * (q // nslots)))
    a.e("s_mul_i32 s94, s94, %d" % step)
    a.e("s_add_u32 s%d, s%d, s94" % (sd, sbase))

def dbg_mark(a, tag, word, neg=False):
    if not DBGT: return
    a.e("s_cmp_lg_u32 s%d, 0" % SW); a.e("s_cbranch_scc1 %s" % tag)
    a.e("s_memrealtime s[98:99]"); a.e("s_waitcnt lgkmcnt(0)"); a.lg_done = a.lg_n
    if neg: a.e("s_not_b32 s98, s98")
    a.e("s_mov_b32 s52, s%d" % DBG); a.e("s_mov_b32 s53, s%d" % (DBG + 1)); a.e("s_mov_b32 s54, 256"); a.e("s_mov_b32 s55, 0x00020000")
    a.e("v_mov_b32 v4, s98"); a.e("v_mov_b32 v5, %d" % (word * 4))
    a.e("v_cmp_eq_u32 vcc, 0, v1"); a.e("s_nop 1"); a.e("s_and_saveexec_b64 s[90:91], vcc")
    a.e("buffer_atomic_umax v4, v5, s[52:55], 0 offen")
    a.e("s_mov_b64 exec, s[90:91]")
    a.label(tag)

def poll(a, tag, srd4, voff, soff, nlanes_mask_exec=None):
    a.e("s_mov_b32 s96, 0x%x" % SPIN)
    a.label(tag)
    a.e("buffer_load_dword v5, %s, s[%d:%d], %s offen sc1" % (voff, srd4, srd4 + 3, soff))
    a.e("s_waitcnt vmcnt(0)")
    a.e("v_cmp_eq_u32 vcc, 1, v5")
    a.e("s_nop 3")
    a.e("s_cmp_eq_u64 vcc, exec")
    a.e("s_cbranch_scc1 %s_ok" % tag)
    a.e("s_sleep %d" % SLEEP)
    a.e("s_sub_u32 s96, s96, 1")
    a.e("s_cmp_lg_u32 s96, 0")
    a.e("s_cbranch_scc1 %s" % tag)
    a.label("%s_ok" % tag)

CLR = 253
def early_cleared(a, tag):
    a.e("s_cmp_lg_u32 s%d, 0" % SW); a.e("s_cbranch_scc1 %s" % tag)
    base(a, 52, DBG, None, 256)
    a.e("s_and_b32 s97, s2, 1"); a.e("s_lshl_b32 s97, s97, 7")
    a.e("v_mov_b32 v4, s97")
    a.e("buffer_load_dword v%d, v4, s[52:55], 0 offen sc1" % CLR)
    a.label(tag)

def check_cleared(a, tag):
    a.e("v_readfirstlane_b32 s97, v%d" % CLR)
    a.e("s_nop 3")
    a.e("s_cmp_eq_u32 s97, 1"); a.e("s_cbranch_scc1 %s_ok" % tag)
    base(a, 52, DBG, None, 256)
    a.e("s_and_b32 s97, s2, 1"); a.e("s_lshl_b32 s97, s97, 7")
    a.e("v_mov_b32 v4, s97")
    poll(a, tag, 52, "v4", "0")

def set_flag(a, soff_reg, nrep=1):
    base(a, 52, WS, "0x%x" % WS_F, F_BYTES)
    a.e("v_lshlrev_b32 v6, 8, v1"); a.e("v_add_u32 v6, s%d, v6" % soff_reg)
    a.e("v_mov_b32 v4, 1")
    a.e("v_cmp_gt_u32 vcc, %d, v1" % nrep)
    a.e("s_nop 1")
    a.e("s_and_saveexec_b64 s[90:91], vcc")
    a.e("buffer_store_dword v4, v6, s[52:55], 0 offen sc1")
    a.e("s_mov_b64 exec, s[90:91]")

def wait_flags(a, tag, soff_reg, mask):
    base(a, 52, WS, "0x%x" % WS_F, F_BYTES)
    a.e("v_and_b32 v4, %d, v1" % mask); a.e("v_lshlrev_b32 v4, 2, v4")
    poll(a, tag, 52, "v4", "s%d" % soff_reg)

AX = 32
AA = 64
AQ = 100
A_XD0, A_XD1, A_WD, A_KD = 204, 205, 206, 207
A_XR, A_WR, A_KR = 208, 212, 214
LA_W, LA_KV, LA_X = 0, 32768, 49152

def a1_setup(a):
    a.e("v_lshrrev_b32 v3, 3, v1")
    a.e("v_lshrrev_b32 v4, 4, v1")
    a.e("v_and_b32 v5, 7, v1")
    a.e("v_xor_b32 v4, v4, v5")
    a.e("v_lshlrev_b32 v4, 4, v4")
    a.e("v_lshl_add_u32 v%d, v3, 11, v4" % A_XD0)
    a.e("v_xor_b32 v%d, 64, v%d" % (A_XD1, A_XD0))
    a.e("v_bfe_u32 v4, v1, 4, 1"); a.e("v_lshlrev_b32 v4, 2, v4"); a.e("v_xor_b32 v4, v4, v5"); a.e("v_lshlrev_b32 v4, 4, v4")
    a.e("v_lshl_add_u32 v%d, v3, 11, v4" % A_WD)
    a.e("v_lshrrev_b32 v3, 2, v1"); a.e("v_and_b32 v4, 3, v1"); a.e("v_lshlrev_b32 v4, 4, v4")
    a.e("v_lshl_add_u32 v%d, v3, 6, v4" % A_KD)
    a.e("s_lshl_b32 s91, s%d, 7" % SMT); a.e("s_lshl_b32 s92, s%d, 5" % SW); a.e("s_add_u32 s91, s91, s92"); a.e("s_lshl_b32 s91, s91, 11")
    for q in range(4): a.e("s_add_u32 s%d, s91, %d" % (28 + q, q * (8 * 2048 - 1024)))
    a.e("s_lshl_b32 s33, s%d, 15" % SW); a.e("s_add_u32 s32, s33, %d" % (8 * 2048 - 1024))
    a.e("s_lshl_b32 s34, s%d, 10" % SW)
    a.e("s_lshl_b32 s35, s%d, 11" % SW)
    a.e("s_lshl_b32 s36, s%d, 10" % SW); a.e("s_add_u32 s36, s36, %d" % LA_KV)
    a.e("s_lshl_b32 s37, s%d, 13" % SW); a.e("s_add_u32 s37, s37, %d" % LA_X)

def a1_reads_setup(a):
    a.e("v_and_b32 v3, 31, v1"); a.e("v_lshrrev_b32 v4, 5, v1")
    a.e("v_bfe_u32 v5, v3, 1, 3"); a.e("v_xor_b32 v5, v5, v4"); a.e("v_lshlrev_b32 v5, 4, v5")
    a.e("v_lshl_add_u32 v5, v3, 7, v5"); a.e("v_add_u32 v5, s37, v5")
    for kk in range(4): a.e("v_xor_b32 v%d, %d, v5" % (A_XR + kk, kk * 32))
    a.e("v_bfe_u32 v6, v1, 2, 2"); a.e("v_bfe_u32 v5, v1, 4, 1"); a.e("v_and_b32 v7, 3, v1")
    a.e("v_lshlrev_b32 v3, 5, v5"); a.e("v_lshl_add_u32 v3, v7, 3, v3")
    a.e("v_lshl_add_u32 v4, v4, 3, v6")
    a.e("v_lshrrev_b32 v5, 1, v6"); a.e("v_lshl_add_u32 v5, v5, 6, v3")
    a.e("v_lshl_add_u32 v%d, v4, 7, v5" % A_WR); a.e("v_xor_b32 v%d, 64, v%d" % (A_WR + 1, A_WR))
    a.e("v_lshl_add_u32 v%d, v4, 6, v3" % A_KR); a.e("v_add_u32 v%d, %d, v%d" % (A_KR, LA_KV, A_KR))

def burst_a(a):
    burst(a, 220, 221)

def gen_a1(a, name, kind):
    NU = 16
    uid = {}; xid = {}
    def wdma1(u, p):
        if p == 0:
            a.set_m0(35, LA_W + (u % 4) * 8192)
            uid[u] = a.vm("buffer_load_dwordx4 v%d, s[8:11], s33 offen lds" % A_WD)
        elif p == 1:
            a.set_m0(35, LA_W + (u % 4) * 8192)
            uid[u] = a.vm("buffer_load_dwordx4 v%d, s[8:11], s32 offen offset:1024 lds" % A_WD)
            if LAT_A1 and (u + 1) % 2 == 0:
                if u + 1 < NU: lat_base(a, 8, 48, (u + 1) // 2, 59, 4, 2 * 64 * 2048)
            else: add64(a, 8, 64 * 2048)
        else:
            a.set_m0(36, (u % 4) * 4096)
            uid[u] = a.vm("buffer_load_dwordx4 v%d, s[12:15], s34 offen lds" % A_KD)
            if LAT_A1 and (u + 1) % 2 == 0:
                if u + 1 < NU: lat_base(a, 12, 50, (u + 1) // 2, 59, 4, 2 * 64 * 64)
            else: add64(a, 12, 64 * 64)
    NWP = 3 if kind else 2
    def wdma(u):
        for p in range(NWP): wdma1(u, p)
    def xdma1(u, q):
        a.set_m0(37, (u % 2) * 4096)
        xid[u] = a.vm("buffer_load_dwordx4 v%d, s[4:7], s%d offen offset:%d lds" % (A_XD0 + (q & 1), 28 + q, q * 1024))
        if q == 3:
            if LAT_A1 and (u + 1) % 2 == 0:
                if u + 1 < NU: lat_base(a, 4, X, (u + 1) // 2, 59, 4, 256)
            else: add64(a, 4, 128)
    def xdma(u):
        for q in range(4): xdma1(u, q)
    wdma(0); xdma(0); xdma(1); wdma(1)
    a1_reads_setup(a)
    if PF_W1:
        a.e("s_mul_i32 s91, s%d, 448" % SNT); a.e("s_and_b32 s91, s91, 0xffffff80")
        base(a, 16, W1, "s91", 1024 * 7168)
        a.e("s_and_b32 s91, s%d, 3" % SMT); a.e("s_lshl_b32 s91, s91, 4")
        a.e("v_lshrrev_b32 v3, 2, v1"); a.e("v_add_u32 v3, s91, v3"); a.e("s_movk_i32 s91, 7168"); a.e("v_mul_lo_u32 v3, v3, s91")
        a.e("v_and_b32 v4, 3, v1"); a.e("v_lshl_add_u32 v215, v4, 7, v3")
        a.e("s_mov_b32 s38, %d" % (2 * 64 * 7168))
    def pfa(uu, wave):
        lab = "%s_pa%d" % (name, uu)
        a.e("s_cmp_lg_u32 s%d, %d" % (SW, wave)); a.e("s_cbranch_scc1 %s" % lab)
        a.e("buffer_load_dword v217, v218, s[20:23], s39 offen")
        a.e("buffer_load_dword v217, v219, s[24:27], s38 offen")
        a.label(lab)
        a.e("s_add_u32 s39, s39, %d" % (64 * 2048)); a.e("s_add_u32 s38, s38, 128")
    if PF_A1:
        a.e("s_lshl_b32 s91, s%d, 7" % SNT)
        base(a, 20, WQ, "s91", 1024 * 2048)
        base(a, 24, X, None, 2048 * 2048)
        a.e("v_mov_b32 v4, 0x40000000"); a.e("v_cmp_le_u32 vcc, 16, v1")
        a.e("s_and_b32 s91, s%d, 3" % SMT); a.e("s_lshl_b32 s91, s91, 4"); a.e("v_add_u32 v3, s91, v1"); a.e("v_lshlrev_b32 v3, 11, v3")
        a.e("v_cndmask_b32 v218, v3, v4, vcc")
        a.e("s_and_b32 s91, s%d, 7" % SNT); a.e("s_lshl_b32 s91, s91, 4"); a.e("s_lshl_b32 s94, s%d, 7" % SMT); a.e("s_add_u32 s91, s91, s94")
        a.e("v_add_u32 v3, s91, v1"); a.e("v_lshlrev_b32 v3, 11, v3")
        a.e("v_cndmask_b32 v219, v3, v4, vcc")
        a.e("s_mov_b32 s39, %d" % (3 * 64 * 2048)); a.e("s_mov_b32 s38, %d" % (3 * 128))
    a.wait(vm=max(uid[0], xid[0])); a.e("s_barrier")
    a.stamp(1)
    wdma(2)
    if BURST: burst_a(a)
    if PF_A1:
        for uu in range(3, PF_A1): pfa(uu, uu & 3)
    a.e("s_cmp_lg_u32 s2, 0"); a.e("s_cbranch_scc1 %s_nopub" % name)
    a.e("s_cmp_lg_u32 s%d, 0" % SW); a.e("s_cbranch_scc1 %s_nopub" % name)
    base(a, 52, DBG, None, 256)
    a.e("v_lshlrev_b32 v6, 7, v1"); a.e("v_mov_b32 v4, 1")
    a.e("v_cmp_gt_u32 vcc, 2, v1"); a.e("s_nop 1")
    a.e("s_and_saveexec_b64 s[90:91], vcc")
    a.e("buffer_store_dword v4, v6, s[52:55], 0 offen sc1")
    a.e("s_mov_b64 exec, s[90:91]")
    a.label("%s_nopub" % name)
    xfr = {}; fr = {}
    def xread(u, kk):
        r = AX + 16 * (u % 2) + 4 * kk
        xfr[(u, kk)] = a.ds("ds_read_b128 v[%d:%d], v%d offset:%d" % (r, r + 3, A_XR + kk, (u % 2) * 4096))
    def reads(g):
        u, kk = g // 4, g % 4
        f = g % 3; b = AA + 12 * f
        so = LA_W + (u % 4) * 8192 + kk * 2048
        for ng in range(2):
            a.ds("ds_read_b64_tr_b16 v[%d:%d], v%d offset:%d" % (b + 4 * ng, b + 4 * ng + 1, A_WR + ng, so))
            fr[g] = a.ds("ds_read_b64_tr_b16 v[%d:%d], v%d offset:%d" % (b + 4 * ng + 2, b + 4 * ng + 3, A_WR + ng, so + 512))
        if kind:
            so = (u % 4) * 4096 + kk * 1024
            a.ds("ds_read_b64_tr_b16 v[%d:%d], v%d offset:%d" % (b + 8, b + 9, A_KR, so))
            fr[g] = a.ds("ds_read_b64_tr_b16 v[%d:%d], v%d offset:%d" % (b + 10, b + 11, A_KR, so + 256))
    for kk in range(4): xread(0, kk)
    reads(0); reads(1)
    pend = []
    for g in range(NU * 4):
        u, kk = g // 4, g % 4
        f = g % 3; b = AA + 12 * f
        if kk == 0 and u + 2 < NU and u >= 0 and (u + 2) not in xid:
            pass
        if kk == 2 and u + 1 < NU:
            a.wait(vm=uid[u + 1]); a.e("s_barrier")
        if g + 2 < NU * 4: reads(g + 2)
        if kk >= 2 and u + 1 < NU:
            a.wait(vm=xid[u + 1])
            xread(u + 1, 2 * (kk - 2)); xread(u + 1, 2 * (kk - 2) + 1)
        a.wait(lg=max(fr[g], xfr[(u, kk)]))
        xb = AX + 16 * (u % 2) + 4 * kk
        def pop():
            if pend:
                f, i0, i1 = pend.pop(0); f(i0, i1)
        if kk == 0 and u + 2 < NU:
            a.wait(lg=xfr[(u, 3)])
            pend += [(xdma1, u + 2, q) for q in range(4)]
        if kk == 2 and u + 3 < NU:
            pend += [(wdma1, u + 3, p) for p in range(NWP)]
        M32(a, AQ, b, xb, "0" if g == 0 else AQ)
        pop()
        M32(a, AQ + 16, b + 4, xb, "0" if g == 0 else AQ + 16)
        pop()
        if kind == "K": M32(a, AQ + 32, b + 8, xb, "0" if g == 0 else AQ + 32)
        if kind == "V": M32(a, AQ + 32, xb, b + 8, "0" if g == 0 else AQ + 32)
        if kk == 3:
            while pend: pop()
        if kk == 1 and PF_W1 and u + 2 < NU:
            lab = "%s_pf%d" % (name, u)
            a.e("s_cmp_lg_u32 s%d, %d" % (SW, u & 3)); a.e("s_cbranch_scc1 %s" % lab)
            a.e("buffer_load_dword v216, v215, s[16:19], s38 offen")
            a.label(lab)
            a.e("s_add_u32 s38, s38, %d" % (64 * 7168))
        if kk == 2 and PF_A1 and u + PF_A1 < NU: pfa(u + PF_A1, u & 3)
        if kk == 3 and u == 9: early_cleared(a, name + "_ec")
    a.stamp(2)
    a.e("s_nop 15")
    for c in range(2):
        for k in range(8):
            r = AQ + 16 * c + 2 * k
            a.e("v_pk_mul_f32 v[%d:%d], v[%d:%d], s[44:45]" % (r, r + 1, r, r + 1))
        for k in range(8):
            r = AQ + 16 * c + 2 * k
            a.e("v_cvt_pk_bf16_f32 v%d, v%d, v%d" % (VQ[c] + k, r, r + 1))
    if kind:
        for k in range(8): a.e("v_cvt_pk_bf16_f32 v%d, v%d, v%d" % (AX + k, AQ + 32 + 2 * k, AQ + 33 + 2 * k))
        base(a, 8, WS, "0x%x" % WS_KV, 64 * 4096)
        a.e("s_lshl_b32 s91, s%d, 2" % SMT); a.e("s_add_u32 s91, s91, s%d" % SW); a.e("s_lshl_b32 s91, s91, 12")
        o = 0 if kind == "K" else 2048
        a.e("buffer_store_dwordx4 v[%d:%d], v2, s[8:11], s91 offen offset:%d sc1" % (AX, AX + 3, o))
        a.e("buffer_store_dwordx4 v[%d:%d], v2, s[8:11], s91 offen offset:%d sc1" % (AX + 4, AX + 7, o + 1024))
    a.e("s_waitcnt vmcnt(0) lgkmcnt(0)")
    if DIAG == "kv": a.stamp(3, force=True)
    a.e("s_barrier")
    a.reset_counts()

def koff(t): return ((t // 4) % 4) * 16384 + (t % 4) * 4096
def kv_dma(a, slot):
    a.e("s_add_u32 m0, s30, %d" % (slot * 16384))
    a.e("s_add_u32 s31, s31, 16384")
    for q in range(4):
        a.e("buffer_load_dwordx4 v2, s[8:11], s31 offen offset:%d sc1 lds" % (q * 1024))
def rowmax(a, c):
    S = VS[c]
    a.e("v_max3_f32 v4, v%d, v%d, v%d" % (S, S + 1, S + 2))
    for k in range(3, 15, 2): a.e("v_max3_f32 v4, v4, v%d, v%d" % (S + k, S + k + 1))
    a.e("v_max_f32 v4, v4, v%d" % (S + 15))
def set_negm(a, c, src):
    a.e("v_mov_b32 v5, v%d" % src); a.e("v_mov_b32 v6, v%d" % src)
    a.e("s_nop 1"); a.e("v_permlane32_swap_b32 v5, v6"); a.e("s_nop 1")
    a.e("v_max_f32 v5, v5, v6"); a.e("v_sub_f32 v5, 0, v5")
    for k in range(16): a.e("v_mov_b32 v%d, v5" % (VNM[c] + k))

def gen_gate(a):
    G = GATE
    a.e("v_mov_b32 v4, 0"); a.e("v_mov_b32 v5, 0"); a.e("s_nop 0")
    for k in range(8):
        a.e("v_dot2c_f32_bf16 v4, v%d, v%d" % (G + 8 + k, G + k))
        a.e("v_dot2c_f32_bf16 v5, v%d, v%d" % (G + 16 + k, G + k))
    a.e("s_nop 2")
    for sh in (1, 2, 4, 8):
        for r in (4, 5): a.e("v_add_f32_dpp v%d, v%d, v%d row_shr:%d row_mask:0xf bank_mask:0xf bound_ctrl:0" % (r, r, r, sh))
        a.e("s_nop 0")
    for r in (4, 5): a.e("v_add_f32_dpp v%d, v%d, v%d row_bcast:15 row_mask:0xa bank_mask:0xf" % (r, r, r))
    a.e("s_nop 0")
    for r in (4, 5): a.e("v_add_f32_dpp v%d, v%d, v%d row_bcast:31 row_mask:0xc bank_mask:0xf" % (r, r, r))
    a.e("s_nop 0")
    for r in (4, 5): a.e("v_mul_f32 v%d, 0x%x, v%d" % (r, f2u(-LOG2E), r))
    for r in (4, 5): a.e("v_exp_f32 v%d, v%d" % (r, r))
    a.e("s_nop 0")
    for r in (4, 5): a.e("v_add_f32 v%d, 1.0, v%d" % (r, r))
    for r in (4, 5): a.e("v_rcp_f32 v%d, v%d" % (r, r))
    base(a, 24, WS, "0x%x" % WS_G, 256 * 128)
    a.e("s_lshl_b32 s91, s%d, 4" % SMT); a.e("s_add_u32 s91, s91, s%d" % SNT); a.e("s_lshl_b32 s91, s91, 7")
    a.e("s_lshl_b32 s94, s%d, 3" % SW); a.e("s_add_u32 s91, s91, s94")
    a.e("v_mov_b32 v6, s91")
    a.e("v_cmp_eq_u32 vcc, 63, v1"); a.e("s_nop 1")
    a.e("s_and_saveexec_b64 s[90:91], vcc")
    a.e("buffer_store_dwordx2 v[4:5], v6, s[24:27], 0 offen sc1")
    a.e("s_mov_b64 exec, s[90:91]")

def gen_attn(a, name):
    a.e("s_cmp_lg_u32 s%d, 0" % SW); a.e("s_cbranch_scc1 %s_kvw" % name)
    check_cleared(a, name + "_clr")
    a.e("s_cmp_ge_u32 s%d, 2" % SNT); a.e("s_cbranch_scc1 %s_nokvsig" % name)
    a.e("s_lshl_b32 s28, s%d, 1" % SMT); a.e("s_add_u32 s28, s28, s%d" % SNT); a.e("s_lshl_b32 s28, s28, 2"); a.e("s_add_u32 s28, s28, %d" % F_KV)
    set_flag(a, 28, nrep=KVREP)
    a.label("%s_nokvsig" % name)
    if DIAG == "kv": a.stamp(4, force=True)
    a.e("s_and_b32 s28, s2, %d" % (KVREP - 1)); a.e("s_lshl_b32 s28, s28, 8"); a.e("s_add_u32 s28, s28, %d" % F_KV)
    if "nokvwait" not in EXP: wait_flags(a, name + "_kvp", 28, 31)
    if DIAG == "kv": a.stamp(5, force=True)
    a.label("%s_kvw" % name)
    a.e("s_barrier")
    if PRIO["attn"] != PRIO["a1"]: a.e("s_setprio %d" % PRIO["attn"])
    a.e("s_lshl_b32 s38, s%d, 2" % SMT); a.e("s_add_u32 s38, s38, s%d" % SW); a.e("s_lshl_b32 s38, s38, 6")
    a.e("s_lshl_b32 s91, s%d, 2" % SNT); a.e("s_add_u32 s38, s38, s91"); a.e("s_lshl_b32 s38, s38, 10")
    a.e("s_lshl_b32 s30, s%d, 12" % SW)
    a.e("s_mov_b32 s39, 0")
    base(a, 8, WS, "0x%x" % WS_KV, 64 * 4096)
    base(a, 12, WS, "0x%x" % WS_O, 4 << 20)
    a.label("%s_pass" % name)
    a.e("s_sub_u32 s31, s30, 16384")
    kv_dma(a, 0)
    a.e("v_mov_b32 v4, 0x%x" % FLAG); a.e("v_mov_b32 v5, 0")
    a.e("ds_write_b32 v4, v5")
    a.e("v_bfe_u32 v4, v1, 2, 1"); a.e("v_bfe_u32 v5, v1, 4, 1")
    a.e("v_cmp_eq_u32 vcc, v4, v5")
    a.e("v_mov_b32 v6, 0x3f803f80"); a.e("v_mov_b32 v7, 0")
    for k in range(4): a.e("v_cndmask_b32 v%d, v7, v6, vcc" % (VSEL + k))
    for c in range(2):
        for k in range(16): a.e("v_mov_b32 v%d, 0" % (VO[c] + k))
        for k in range(4): a.e("v_mov_b32 v%d, 0" % (VL[c] + k))
    for k in range(4): a.e("v_mov_b32 v%d, 0" % (VP[1] + 4 + k))
    for k in range(4): a.e("v_mov_b32 v%d, 0" % (VV + 4 + k))
    a.e("s_waitcnt vmcnt(0) lgkmcnt(0)")
    a.e("s_barrier")
    if DIAG == "kv": a.stamp(6, force=True); a.nostamp = True
    a.stamp(3)
    a.e("ds_read_b128 v[%d:%d], v2 offset:0" % (VK, VK + 3))
    a.e("ds_read_b128 v[%d:%d], v2 offset:1024" % (VK + 4, VK + 7))
    kv_dma(a, 1); kv_dma(a, 2)
    a.e("s_cmp_lg_u32 s39, 0")
    a.e("s_cbranch_scc1 %s_havemax" % name)
    base(a, 20, X, None, 2048 * 2048)
    base(a, 24, GW, None, 2048)
    a.e("s_lshl_b32 s91, s%d, 4" % SMT); a.e("s_add_u32 s91, s91, s%d" % SNT); a.e("s_lshl_b32 s91, s91, 2"); a.e("s_add_u32 s91, s91, s%d" % SW)
    a.e("s_lshl_b32 s28, s91, 12")
    a.e("v_lshlrev_b32 v3, 5, v1")
    G = GATE
    a.e("buffer_load_dwordx4 v[%d:%d], v3, s[24:27], 0 offen" % (G, G + 3))
    a.e("buffer_load_dwordx4 v[%d:%d], v3, s[24:27], 0 offen offset:16" % (G + 4, G + 7))
    a.e("buffer_load_dwordx4 v[%d:%d], v3, s[20:23], s28 offen" % (G + 8, G + 11))
    a.e("buffer_load_dwordx4 v[%d:%d], v3, s[20:23], s28 offen offset:16" % (G + 12, G + 15))
    a.e("buffer_load_dwordx4 v[%d:%d], v3, s[20:23], s28 offen offset:2048" % (G + 16, G + 19))
    a.e("buffer_load_dwordx4 v[%d:%d], v3, s[20:23], s28 offen offset:2064" % (G + 20, G + 23))
    a.e("s_waitcnt lgkmcnt(0)")
    for c in range(2):
        M32(a, VS[c], VK, VQ[c], "0")
        M32(a, VS[c], VK + 4, VQ[c] + 4, VS[c])
    a.e("s_nop 15")
    for c in range(2):
        rowmax(a, c); set_negm(a, c, 4)
    a.label("%s_havemax" % name)
    a.e("s_waitcnt lgkmcnt(0)")
    a.e("s_nop 0")
    M32(a, VS[0], VK, VQ[0], VNM[0])
    M32(a, VS[0], VK + 4, VQ[0] + 4, VS[0])
    a.e("ds_read_b128 v[%d:%d], v2 offset:%d" % (VV, VV + 3, 2048))
    a.e("s_nop 15")
    if PF_W2:
        a.e("s_lshl_b32 s91, s%d, 7" % SNT)
        base(a, 16, W2, "s91", 3584 * 2048)
        base(a, 40, WO, "s91", 1024 * 2048)
        a.e("s_and_b32 s91, s%d, 3" % SMT); a.e("s_lshl_b32 s91, s91, 4")
        a.e("v_lshrrev_b32 v3, 4, v1"); a.e("v_lshlrev_b32 v3, 6, v3"); a.e("v_and_b32 v4, 15, v1"); a.e("v_add_u32 v3, v3, v4"); a.e("v_add_u32 v3, s91, v3")
        a.e("v_lshlrev_b32 v215, 11, v3")
        a.e("s_mov_b32 s29, 0"); a.e("s_mov_b32 s32, 0")
    dbg_mark(a, name + "_m1", 5)
    a.e("s_mov_b32 s33, 4")
    a.label("%s_loop" % name)
    for i in range(16):
        ex = None
        if i % 4 == 3:
            a.e("s_waitcnt vmcnt(4)")
            a.e("s_barrier")
            slot = (i // 4 + 3) % 4
            ex = [["s_add_u32 m0, s30, %d" % (slot * 16384), "s_add_u32 s31, s31, 16384", "buffer_load_dwordx4 v2, s[8:11], s31 offen sc1 lds"]]
            ex += [["buffer_load_dwordx4 v2, s[8:11], s31 offen offset:%d sc1 lds" % (q * 1024)] for q in range(1, 4)]
        A.phase(a.e, 0, i, koff, extra=ex)
        if i % 4 == 0 and PF_W2:
            lab = "%s_pf2_%d" % (name, i)
            a.e("s_cmp_lg_u32 s%d, %d" % (SW, i // 4)); a.e("s_cbranch_scc1 %s" % lab)
            a.e("buffer_load_dword v216, v215, s[16:19], s29 offen")
            a.e("s_cmp_lg_u32 s33, 1"); a.e("s_cbranch_scc1 %s" % lab)
            a.e("buffer_load_dword v217, v215, s[40:43], s32 offen")
            a.label(lab)
            a.e("s_add_u32 s29, s29, %d" % (4 * 64 * 2048))
            a.e("s_cmp_lg_u32 s33, 1"); a.e("s_cbranch_scc1 %s_n" % lab)
            a.e("s_add_u32 s32, s32, %d" % (4 * 64 * 2048))
            a.label("%s_n" % lab)
        A.phase(a.e, 1, i, koff)
    a.e("s_cmp_lg_u32 s33, 4")
    a.e("s_cbranch_scc1 %s_nog2" % name)
    a.e("s_cmp_lg_u32 s39, 0")
    a.e("s_cbranch_scc1 %s_nog2" % name)
    gen_gate(a)
    a.label("%s_nog2" % name)
    a.e("s_sub_u32 s33, s33, 1")
    a.e("s_cmp_lg_u32 s33, 0")
    a.e("s_cbranch_scc1 %s_loop" % name)
    a.e("s_waitcnt vmcnt(0) lgkmcnt(0)")
    M32(a, VO[1], VV + 4, VP[1] + 4, VO[1])
    M16(a, VL[1], VSEL, VP[1] + 4, VL[1])
    a.stamp(4)
    a.e("s_nop 15")
    a.e("v_mov_b32 v5, 0x%x" % f2u(2.0 ** 30))
    a.e("v_mov_b32 v7, 0")
    a.e("s_mov_b64 s[34:35], 0")
    for c in range(2):
        a.e("v_rcp_f32 v4, v%d" % VL[c])
        a.e("v_cmp_nle_f32 vcc, v%d, v5" % VL[c])
        a.e("s_or_b64 s[34:35], s[34:35], vcc")
        for k in range(16): a.e("v_mul_f32 v%d, v%d, v4" % (VO[c] + k, VO[c] + k))
        for k in range(16): a.e("v_fma_f32 v7, v%d, 0, v7" % (VO[c] + k))
    a.e("v_cmp_u_f32 vcc, v7, v7")
    a.e("s_or_b64 s[34:35], s[34:35], vcc")
    for c in range(2):
        for k in range(8): a.e("v_cvt_pk_bf16_f32 v%d, v%d, v%d" % (VT + 8 * c + k, VO[c] + 2 * k, VO[c] + 2 * k + 1))
    for c in range(2):
        for m in range(2):
            a.e("buffer_store_dwordx4 v[%d:%d], v2, s[12:15], s38 offen offset:%d sc1" % (VT + 8 * c + 4 * m, VT + 8 * c + 4 * m + 3, c * 2048 + m * 1024))
    a.e("s_cmp_lg_u32 s39, 0")
    a.e("s_cbranch_scc1 %s_ok" % name)
    a.e("s_cmp_eq_u64 s[34:35], 0")
    a.e("s_cbranch_scc1 %s_ok" % name)
    a.e("v_mov_b32 v4, 0x%x" % FLAG); a.e("v_mov_b32 v5, 1")
    a.e("ds_write_b32 v4, v5")
    a.label("%s_ok" % name)
    a.e("s_waitcnt vmcnt(0) lgkmcnt(0)")
    a.e("s_barrier")
    a.e("v_mov_b32 v4, 0x%x" % FLAG)
    a.e("ds_read_b32 v5, v4")
    a.e("s_waitcnt lgkmcnt(0)")
    a.e("v_readfirstlane_b32 s36, v5")
    a.e("s_nop 3")
    a.e("s_cmp_eq_u32 s36, 0")
    a.e("s_cbranch_scc1 %s_store" % name)
    a.e("s_cmp_lg_u32 s39, 0")
    a.e("s_cbranch_scc1 %s_store" % name)
    a.e("s_barrier")
    a.e("s_mov_b32 s39, 1")
    a.e("v_mov_b32 v%d, 0xff800000" % VT)
    a.e("v_mov_b32 v%d, 0xff800000" % (VT + 1))
    a.e("s_mov_b32 s37, 0")
    a.label("%s_mx" % name)
    a.e("buffer_load_dwordx4 v[%d:%d], v2, s[8:11], s37 offen sc1" % (VK, VK + 3))
    a.e("buffer_load_dwordx4 v[%d:%d], v2, s[8:11], s37 offen offset:1024 sc1" % (VK + 4, VK + 7))
    a.e("s_waitcnt vmcnt(0)")
    for c in range(2):
        M32(a, VS[c], VK, VQ[c], "0")
        M32(a, VS[c], VK + 4, VQ[c] + 4, VS[c])
    a.e("s_nop 15")
    for c in range(2):
        for k in range(0, 16, 2): a.e("v_max3_f32 v%d, v%d, v%d, v%d" % (VT + c, VT + c, VS[c] + k, VS[c] + k + 1))
    a.e("s_add_u32 s37, s37, 4096")
    a.e("s_cmp_lt_u32 s37, %d" % (64 * 4096))
    a.e("s_cbranch_scc1 %s_mx" % name)
    for c in range(2): set_negm(a, c, VT + c)
    a.e("s_branch %s_pass" % name)
    a.label("%s_store" % name)
    a.e("s_cmp_lg_u32 s%d, 0" % SW)
    a.e("s_cbranch_scc1 %s_nosig" % name)
    a.e("s_lshl_b32 s28, s%d, 8" % SMT); a.e("s_lshl_b32 s91, s%d, 2" % SNT); a.e("s_add_u32 s28, s28, s91"); a.e("s_add_u32 s28, s28, %d" % F_O)
    set_flag(a, 28, nrep=1)
    a.label("%s_nosig" % name)
    dbg_mark(a, name + "_m2", 6)
    a.stamp(5)
    a.stamp_flush(WS, WS + 1, WS_PROF, SW, 4)
    a.e("s_endpgm")

def gen_role_a(a, name):
    if PRIO["a1"]: a.e("s_setprio %d" % PRIO["a1"])
    a1_setup(a)
    a.e("s_mov_b32 s44, 0x%x" % f2u(QSCALE)); a.e("s_mov_b32 s45, s44")
    a.e("s_lshl_b32 s94, s%d, 7" % SNT)
    a.e("s_waitcnt lgkmcnt(0)")
    a.e("s_cmp_lg_u32 s2, 0"); a.e("s_cbranch_scc1 %s_noclr" % name)
    base(a, 52, WS, "0x%x" % WS_F, F_BYTES)
    a.e("s_lshl_b32 s91, s%d, 12" % SW)
    for k in range(4): a.e("v_mov_b32 v%d, 0" % (8 + k))
    for k in range(4): a.e("buffer_store_dwordx4 v[8:11], v2, s[52:55], s91 offen offset:%d sc1" % (k * 1024))
    a.label("%s_noclr" % name)
    base(a, 8, WQ, "s94", 1024 * 2048)
    base(a, 4, X, None, 2048 * 2048)
    if LAT_A1:
        a.e("s_add_u32 s59, s%d, s%d" % (SMT, SNT)); a.e("s_and_b32 s59, s59, 3")
        a.e("s_mov_b32 s48, s8"); a.e("s_mov_b32 s49, s9")
        lat_base(a, 8, 48, 0, 59, 4, 2 * 64 * 2048)
        lat_base(a, 4, X, 0, 59, 4, 256)
    a.e("s_cmp_eq_u32 s%d, 0" % SNT); a.e("s_cbranch_scc1 %s_aK" % name)
    a.e("s_cmp_eq_u32 s%d, 1" % SNT); a.e("s_cbranch_scc1 %s_aV" % name)
    gen_a1(a, name + "_n", None)
    a.e("s_branch %s_attn" % name)
    a.label("%s_aK" % name); a.reset_counts()
    base(a, 12, WK, None, 1024 * 64)
    if LAT_A1:
        a.e("s_mov_b32 s50, s12"); a.e("s_mov_b32 s51, s13")
        lat_base(a, 12, 50, 0, 59, 4, 2 * 64 * 64)
    gen_a1(a, name + "_k", "K")
    a.e("s_branch %s_attn" % name)
    a.label("%s_aV" % name); a.reset_counts()
    base(a, 12, WV, None, 1024 * 64)
    if LAT_A1:
        a.e("s_mov_b32 s50, s12"); a.e("s_mov_b32 s51, s13")
        lat_base(a, 12, 50, 0, 59, 4, 2 * 64 * 64)
    gen_a1(a, name + "_v", "V")
    a.label("%s_attn" % name)
    gen_attn(a, name)

BW = [8, 36]
BX = [64, 80]
HAC = 100
HB = 212
B_XD, B_WD, B_XR, B_BI, B_WR = 240, 241, 243, 245, 246
LB_X, LB_W = 0, 32768
def hacc(j, tb): return HAC + 16 * j + 4 * tb

def b1_setup(a):
    a.e("v_lshrrev_b32 v3, 3, v1"); a.e("v_and_b32 v4, 6, v3"); a.e("v_and_b32 v5, 7, v1"); a.e("v_xor_b32 v4, v4, v5")
    a.e("v_lshlrev_b32 v4, 4, v4"); a.e("v_lshl_add_u32 v%d, v3, 11, v4" % B_XD)
    a.e("s_lshl_b32 s91, s%d, 7" % SMT); a.e("s_lshl_b32 s92, s%d, 5" % SW); a.e("s_add_u32 s91, s91, s92"); a.e("s_lshl_b32 s91, s91, 11")
    for q in range(4): a.e("s_add_u32 s%d, s91, %d" % (28 + q, q * (8 * 2048 - 1024)))
    a.e("s_lshl_b32 s35, s%d, 12" % SW); a.e("s_add_u32 s36, s35, %d" % LB_W)
    a.e("s_add_u32 s35, s35, %d" % LB_X)

def b1_setup_w(a):
    a.e("v_lshrrev_b32 v3, 5, v1"); a.e("v_bfe_u32 v4, v1, 1, 4"); a.e("v_and_b32 v9, 1, v1"); a.e("v_lshlrev_b32 v9, 4, v9")
    a.e("s_and_b32 s91, s%d, 1" % SW); a.e("s_lshl_b32 s91, s91, 2")
    a.e("v_or_b32 v5, s91, v3")
    a.e("v_mul_u32_u24 v8, 7168, v3"); a.e("v_add_u32 v8, v8, v9")
    a.e("v_mov_b32 v10, 0x40000000")
    for par in range(2):
        a.e("v_xor_b32 v6, %d, v5" % (2 * par))
        a.e("v_xor_b32 v6, v6, v4")
        a.e("v_lshl_add_u32 v7, v6, 5, v8")
        a.e("v_cmp_le_u32 vcc, 14, v6")
        a.e("s_nop 1")
        a.e("v_cndmask_b32 v%d, v7, v10, vcc" % (B_WD + par))

def b1_reads_setup(a):
    a.e("v_and_b32 v5, 15, v1"); a.e("v_lshrrev_b32 v6, 4, v1"); a.e("v_bfe_u32 v7, v1, 2, 2"); a.e("v_and_b32 v8, 3, v1")
    a.e("s_and_b32 s37, s%d, 1" % SW); a.e("s_lshr_b32 s38, s%d, 1" % SW)
    a.e("v_and_b32 v3, 6, v5"); a.e("v_xor_b32 v3, v3, v6"); a.e("v_lshlrev_b32 v4, 4, v3"); a.e("v_lshl_add_u32 v4, v5, 7, v4")
    a.e("s_lshl_b32 s91, s37, 13"); a.e("v_add_u32 v%d, s91, v4" % B_XR); a.e("v_xor_b32 v%d, 64, v%d" % (B_XR + 1, B_XR))
    a.e("v_and_b32 v3, 1, v6"); a.e("v_lshl_or_b32 v3, v3, 2, v7")
    a.e("v_lshl_add_u32 v4, v6, 3, v7"); a.e("v_lshlrev_b32 v4, 9, v4"); a.e("v_lshl_add_u32 v4, v8, 3, v4"); a.e("v_add_u32 v4, %d, v4" % LB_W)
    a.e("s_mul_i32 s91, s38, 7")
    for j in range(7):
        a.e("s_add_u32 s94, s91, %d" % j)
        a.e("v_xor_b32 v9, s94, v3")
        a.e("v_lshl_add_u32 v%d, v9, 5, v4" % (B_WR + j))
    a.e("v_lshlrev_b32 v%d, 3, v6" % B_BI)
    a.e("s_mul_i32 s39, s%d, 448" % SNT); a.e("s_mul_i32 s91, s38, 224"); a.e("s_add_u32 s39, s39, s91")

def b1_x0(a, xid):
    a.set_m0(35, 0)
    for q in range(4):
        xid[0] = a.vm("buffer_load_dwordx4 v%d, s[4:7], s%d offen offset:%d lds" % (B_XD, 28 + q, q * 1024))
    if ROT_B1: rot_adv(a, 4, X, 57, 128, 2048)
    else: add64(a, 4, 128)

def gen_b1(a, name, after_loop, xid):
    NH = 32
    wid = {}
    def wdma1(h, i):
        a.set_m0(36, (h % 3) * 16384)
        wid[h] = a.vm("buffer_load_dwordx4 v%d, s[8:11], s%d offen offset:%d lds" % (B_WD + (i & 1), 48 + i, i * 1024))
        if i == 3:
            if LAT_B1 and (h + 1) % 4 == 0:
                if h + 1 < NH: lat_base(a, 8, 12, (h + 1) // 4, 59, 4, 4 * 32 * 7168)
            elif ROT_B1: rot_adv(a, 8, 12, 56, 32 * 7168, 1024 * 7168)
            else: add64(a, 8, 32 * 7168)
    def xdma1(s, q):
        a.set_m0(35, (s % 2) * 16384)
        xid[s] = a.vm("buffer_load_dwordx4 v%d, s[4:7], s%d offen offset:%d lds" % (B_XD, 28 + q, q * 1024))
        if q == 3:
            if LAT_B1 and (s + 1) % 2 == 0:
                if s + 1 < 16: lat_base(a, 4, X, (s + 1) // 2, 59, 4, 256)
            elif ROT_B1: rot_adv(a, 4, X, 57, 128, 2048)
            else: add64(a, 4, 128)
    def wdma(h):
        for i in range(4): wdma1(h, i)
    def xdma(s):
        for q in range(4): xdma1(s, q)
    wdma(0); wdma(1)
    b1_reads_setup(a)
    base(a, 24, B1P, None, 3584 * 2)
    bias = []
    for j in range(7):
        bias.append(a.vm("buffer_load_dwordx2 v[%d:%d], v%d, s[24:27], s39 offen offset:%d" % (HB + 4 * j, HB + 4 * j + 1, B_BI, 32 * j)))
    def pf(hh, wave):
        lab = "%s_pf%d" % (name, hh)
        a.e("s_cmp_lg_u32 s%d, %d" % (SW, wave)); a.e("s_cbranch_scc1 %s" % lab)
        a.e("buffer_load_dword v96, v97, s[16:19], s34 offen")
        a.label(lab)
        a.e("s_add_u32 s34, s34, %d" % (32 * 7168))
    def pfx(st, wave):
        lab = "%s_px%d" % (name, st)
        a.e("s_cmp_lg_u32 s%d, %d" % (SW, wave)); a.e("s_cbranch_scc1 %s" % lab)
        a.e("buffer_load_dword v96, v98, s[20:23], s39x offen".replace("s39x", "s58"))
        a.label(lab)
        a.e("s_add_u32 s58, s58, 128")
    if PF_BX:
        base(a, 20, X, None, 2048 * 2048)
        a.e("s_and_b32 s91, s%d, 7" % SNT); a.e("s_lshl_b32 s91, s91, 4"); a.e("s_lshl_b32 s94, s%d, 7" % SMT); a.e("s_add_u32 s91, s91, s94")
        a.e("v_add_u32 v3, s91, v1"); a.e("v_lshlrev_b32 v3, 11, v3"); a.e("v_mov_b32 v4, 0x40000000")
        a.e("v_cmp_le_u32 vcc, 16, v1"); a.e("s_nop 1"); a.e("v_cndmask_b32 v98, v3, v4, vcc")
        a.e("s_mov_b32 s58, %d" % (2 * 128))
    if PF_B1:
        a.e("s_mul_i32 s91, s%d, 448" % SNT); a.e("s_and_b32 s91, s91, 0xffffff80")
        base(a, 16, W1, "s91", 1024 * 7168)
        a.e("s_and_b32 s91, s%d, 3" % SMT); a.e("s_lshl_b32 s91, s91, 3")
        a.e("v_lshrrev_b32 v3, 2, v1"); a.e("v_add_u32 v3, s91, v3"); a.e("v_mul_u32_u24 v3, 7168, v3")
        a.e("v_and_b32 v4, 3, v1"); a.e("v_lshl_add_u32 v3, v4, 7, v3"); a.e("v_mov_b32 v4, 0x40000000")
        a.e("v_cmp_le_u32 vcc, 32, v1"); a.e("s_nop 1"); a.e("v_cndmask_b32 v97, v3, v4, vcc")
        a.e("s_mov_b32 s34, %d" % (3 * 32 * 7168))
    a.wait(vm=max(wid[0], xid[0])); a.e("s_barrier")
    a.stamp(1)
    if BPRO is not None: a.e("s_setprio %d" % PRIO["b1"])
    wdma(2); xdma(1)
    if BURST: burst(a)
    if PF_B1:
        for hh in range(3, PF_B1): pf(hh, hh & 3)
    if PF_BX:
        for st in range(2, PF_BX): pfx(st, st & 3)
    rd = {}
    def rlist(h):
        s, kk = h // 2, h % 2
        L = []
        for tb in range(4):
            r = BX[h % 2] + 4 * tb
            L.append("ds_read_b128 v[%d:%d], v%d offset:%d" % (r, r + 3, B_XR + kk, (s % 2) * 16384 + tb * 2048))
        for j in range(7):
            r = BW[h % 2] + 4 * j
            o = (h % 3) * 16384
            L.append("ds_read_b64_tr_b16 v[%d:%d], v%d offset:%d" % (r, r + 1, B_WR + j, o))
            L.append("ds_read_b64_tr_b16 v[%d:%d], v%d offset:%d" % (r + 2, r + 3, B_WR + j, o + 2048))
        return L
    for x in rlist(0): rd[0] = a.ds(x)
    a.wait(vm=bias[-1])
    for j in range(7):
        b = HB + 4 * j
        a.e("v_and_b32 v%d, 0xffff0000, v%d" % (b + 3, b + 1))
        a.e("v_lshlrev_b32 v%d, 16, v%d" % (b + 2, b + 1))
        a.e("v_and_b32 v%d, 0xffff0000, v%d" % (b + 1, b))
        a.e("v_lshlrev_b32 v%d, 16, v%d" % (b, b))
    for h in range(NH):
        s, kk = h // 2, h % 2
        need = None
        if h + 1 < NH:
            need = wid[h + 1]
            need = max(need, xid[(h + 1) // 2])
        a.wait(vm=need if "nowait" not in EXP else None, lg=rd[h])
        if "nobar" not in EXP: a.e("s_barrier")
        if DIAG == "b1" and h in (8, 16, 24): a.stamp(1 + h // 8, force=True)
        todo = rlist(h + 1) if h + 1 < NH else []
        if "nords" in EXP and todo: rd[h + 1] = a.lg_n - 1; todo = []
        dma = []
        if h + 3 < NH:
            if "now" in EXP: wid[h + 3] = a.vm_n - 1
            else: dma += [(wdma1, h + 3, i) for i in range(4)]
        if kk == 1 and s + 2 < 16:
            if "nox" in EXP: xid[s + 2] = a.vm_n - 1
            else: dma += [(xdma1, s + 2, q) for q in range(4)]
        if h == NH - 1: after_loop()
        if h == 16 and "noa" not in EXP: early_cleared(a, name + "_ec")
        n = 0
        for j in range(7):
            for tb in range(4):
                d = hacc(j, tb)
                c = "v[%d:%d]" % (HB + 4 * j, HB + 4 * j + 3) if h == 0 else "v[%d:%d]" % (d, d + 3)
                a.e("v_mfma_f32_16x16x32_bf16 v[%d:%d], v[%d:%d], v[%d:%d], %s" % (d, d + 3, BW[h % 2] + 4 * j, BW[h % 2] + 4 * j + 3, BX[h % 2] + 4 * tb, BX[h % 2] + 4 * tb + 3, c))
                n += 1
                if todo and n >= 1 and tb != 3:
                    rd[h + 1] = a.ds(todo.pop(0))
                if dma and (tb == 3 or (tb == 1 and j == 3)):
                    f, i0, i1 = dma.pop(0)
                    f(i0, i1)
                if tb == 3 and j == 4 and PF_B1 and h + PF_B1 < NH: pf(h + PF_B1, h & 3)
                if tb == 3 and j == 5 and PF_BX and kk == 0 and s + PF_BX < 16: pfx(s + PF_BX, s & 3)
        while todo: rd[h + 1] = a.ds(todo.pop(0))
        assert not dma
    a.stamp(5 if DIAG == "b1" else 2, force=True)
    if DIAG == "b1": a.nostamp = True

def b1_epilogue(a):
    a.e("s_mov_b32 s44, 0x%x" % f2u(LOG2E)); a.e("s_mov_b32 s45, s44")
    a.e("s_mov_b32 s46, 0x%x" % f2u(-2.0)); a.e("s_mov_b32 s47, s46")
    base(a, 20, WS, "0x%x" % WS_H, WS_H_BYTES)
    a.e("s_lshl_b32 s91, s%d, 2" % SMT); a.e("s_lshl_b32 s94, s37, 1"); a.e("s_add_u32 s91, s91, s94")
    a.e("s_mul_i32 s91, s91, 224"); a.e("s_mul_i32 s94, s%d, 14" % SNT); a.e("s_add_u32 s91, s91, s94")
    a.e("s_mul_i32 s94, s38, 7"); a.e("s_add_u32 s91, s91, s94"); a.e("s_lshl_b32 s56, s91, 10")
    a.e("s_add_u32 s57, s56, %d" % (224 * 1024))
    a.e("s_add_u32 s58, s56, 4096"); a.e("s_add_u32 s59, s57, 4096")
    a.e("s_nop 7")
    cnt = 0
    for j in range(7):
        for pair in range(2):
            Aa = hacc(j, 2 * pair)
            t = HB + 16 * (cnt % 2); q = t + 12; cnt += 1
            if PKMISH:
                for k in range(4): a.e("v_pk_mul_f32 v[%d:%d], v[%d:%d], s[44:45]" % (t + 2 * k, t + 2 * k + 1, Aa + 2 * k, Aa + 2 * k + 1))
                for k in range(8): a.e("v_exp_f32 v%d, v%d" % (t + k, t + k))
                for k in range(4): a.e("v_pk_add_f32 v[%d:%d], v[%d:%d], 2.0 op_sel_hi:[1,0]" % (t + 8 + 2 * k, t + 9 + 2 * k, t + 2 * k, t + 2 * k + 1))
                for k in range(4): a.e("v_pk_fma_f32 v[%d:%d], v[%d:%d], v[%d:%d], 2.0 op_sel_hi:[1,1,0]" % (t + 2 * k, t + 2 * k + 1, t + 2 * k, t + 2 * k + 1, t + 8 + 2 * k, t + 9 + 2 * k))
                for k in range(8): a.e("v_rcp_f32 v%d, v%d" % (t + k, t + k))
                for k in range(4): a.e("v_pk_fma_f32 v[%d:%d], v[%d:%d], s[46:47], 1.0 op_sel_hi:[1,1,0]" % (t + 2 * k, t + 2 * k + 1, t + 2 * k, t + 2 * k + 1))
                for k in range(4): a.e("v_pk_mul_f32 v[%d:%d], v[%d:%d], v[%d:%d]" % (t + 2 * k, t + 2 * k + 1, t + 2 * k, t + 2 * k + 1, Aa + 2 * k, Aa + 2 * k + 1))
            else:
                for k in range(8): a.e("v_mul_f32 v%d, s44, v%d" % (t + k, Aa + k))
                for k in range(8): a.e("v_exp_f32 v%d, v%d" % (t + k, t + k))
                for k in range(8): a.e("v_add_f32 v%d, 2.0, v%d" % (t + 8 + k, t + k))
                for k in range(8): a.e("v_fma_f32 v%d, v%d, v%d, 2.0" % (t + k, t + k, t + 8 + k))
                for k in range(8): a.e("v_rcp_f32 v%d, v%d" % (t + k, t + k))
                for k in range(8): a.e("v_fma_f32 v%d, v%d, -2.0, 1.0" % (t + k, t + k))
                for k in range(8): a.e("v_mul_f32 v%d, v%d, v%d" % (t + k, t + k, Aa + k))
            for k in range(4): a.e("v_cvt_pk_bf16_f32 v%d, v%d, v%d" % (q + k, t + 2 * k, t + 2 * k + 1))
            a.e("s_nop 1")
            a.e("v_permlane16_swap_b32 v%d, v%d" % (q, q + 2))
            a.e("v_permlane16_swap_b32 v%d, v%d" % (q + 1, q + 3))
            a.vm("buffer_store_dwordx4 v[%d:%d], v2, s[20:23], s%d offen offset:%d sc1" % (q, q + 3, (56 if j < 4 else 58) + pair, (j % 4) * 1024))

NHR = 20; NWU = 8
BH = 32; BA = 144; BAC = 168; AAC = 200
POLL_U = 55; OBURST = 4
BSW = None
def gen_role_b(a, name):
    a.e("s_setprio %d" % (BPRO if BPRO is not None else PRIO["b1"]))
    for e in EXP:
        if e.startswith("bdelay"):
            for k in range(int(e[6:])): a.e("s_sleep 32")
    b1_setup(a)
    a.e("s_waitcnt lgkmcnt(0)")
    base(a, 4, X, None, 2048 * 2048)
    if LAT_B1:
        a.e("s_add_u32 s59, s%d, s%d" % (SMT, SNT)); a.e("s_and_b32 s59, s59, 3")
        lat_base(a, 4, X, 0, 59, 4, 256)
    if ROT_B1:
        a.e("s_add_u32 s91, s%d, s%d" % (SMT, SNT)); a.e("s_and_b32 s91, s91, 3"); a.e("s_mul_i32 s91, s91, %d" % ROT_B1)
        a.e("s_lshl_b32 s57, s91, 6")
        a.e("s_mul_i32 s56, s91, %d" % (32 * 7168))
        a.e("s_add_u32 s4, s%d, s57" % X); a.e("s_addc_u32 s5, s%d, 0" % (X + 1))
    xid0 = {}
    b1_x0(a, xid0)
    b1_setup_w(a)
    a.e("s_mul_i32 s94, s%d, 448" % SNT)
    a.e("s_add_u32 s92, s%d, s94" % W1); a.e("s_addc_u32 s93, s%d, 0" % (W1 + 1))
    srd(a, 8, 92, 93, 1024 * 7168)
    if LAT_B1:
        a.e("s_mov_b32 s12, s92"); a.e("s_mov_b32 s13, s93")
        lat_base(a, 8, 12, 0, 59, 4, 4 * 32 * 7168)
    if ROT_B1:
        a.e("s_mov_b32 s12, s92"); a.e("s_mov_b32 s13, s93")
        a.e("s_add_u32 s8, s12, s56"); a.e("s_addc_u32 s9, s13, 0")
    a.e("s_mul_i32 s91, s%d, %d" % (SW, 8 * 7168))
    for i in range(4): a.e("s_add_u32 s%d, s91, %d" % (48 + i, i * (2 * 7168 - 1024)))
    NG = 288; NU = 72; GB = 224; UB = 56
    uid = {}; hid = {}
    st = dict(nu=0)
    def wdma(u):
        sb = 16 if u < UB else 40
        a.set_m0(35, (u % NWU) * 8192)
        a.vm("buffer_load_dwordx4 v10, s[%d:%d], s33 offen lds" % (sb, sb + 3))
        uid[u] = a.vm("buffer_load_dwordx4 v10, s[%d:%d], s32 offen offset:1024 lds" % (sb, sb + 3))
        if LAT_B and (u + 1) % 2 == 0:
            if u + 1 < UB: lat_base(a, 16, 12, (u + 1) // 2, 36, 4, 2 * 64 * 2048)
            elif UB < u + 1 < NU: lat_base(a, 40, 14, (u + 1 - UB) // 2, 36, 4, 2 * 64 * 2048)
        else: add64(a, sb, 64 * 2048)
    def after_loop():
        a.e("v_lshrrev_b32 v3, 3, v1"); a.e("v_bfe_u32 v4, v1, 4, 1"); a.e("v_lshlrev_b32 v4, 2, v4"); a.e("v_and_b32 v5, 7, v1")
        a.e("v_xor_b32 v4, v4, v5"); a.e("v_lshlrev_b32 v4, 4, v4"); a.e("v_lshl_add_u32 v10, v3, 11, v4")
        a.e("s_lshl_b32 s33, s%d, 15" % SW); a.e("s_add_u32 s32, s33, %d" % (8 * 2048 - 1024))
        a.e("s_lshl_b32 s35, s%d, 11" % SW)
        a.e("s_lshl_b32 s34, s%d, 7" % SNT)
        base(a, 16, W2, "s34", 3584 * 2048)
        base(a, 40, WO, "s34", 1024 * 2048)
        if LAT_B:
            a.e("s_add_u32 s36, s%d, s%d" % (SMT, SNT)); a.e("s_and_b32 s36, s36, 3")
            a.e("s_mov_b32 s12, s16"); a.e("s_mov_b32 s13, s17"); a.e("s_mov_b32 s14, s40"); a.e("s_mov_b32 s15, s41")
            lat_base(a, 16, 12, 0, 36, 4, 2 * 64 * 2048)
            lat_base(a, 40, 14, 0, 36, 4, 2 * 64 * 2048)
        a.cur_m0 = None
        for u in range(4): wdma(u)
        st["nu"] = 4
    gen_b1(a, name + "_b1", after_loop, xid0)
    if "b1only" in EXP:
        a.e("s_waitcnt vmcnt(0)")
        a.stamp_flush(WS, WS + 1, WS_PROF, SW, 4)
        a.e("s_endpgm")
        return
    if PRIO["mish"] != PRIO["b1"]: a.e("s_setprio %d" % PRIO["mish"])
    b1_epilogue(a)
    for u in range(4, NWU - 1): wdma(u)
    st["nu"] = NWU - 1
    a.e("s_waitcnt vmcnt(0)"); a.vm_done = a.vm_n
    a.e("s_barrier")
    a.e("s_cmp_lg_u32 s%d, 0" % SW); a.e("s_cbranch_scc1 %s_hw" % name)
    check_cleared(a, name + "_clrb")
    a.e("s_lshl_b32 s28, s%d, 8" % SMT); a.e("s_add_u32 s29, s28, %d" % F_H)
    a.e("s_lshl_b32 s91, s%d, 2" % SNT); a.e("s_add_u32 s28, s29, s91")
    set_flag(a, 28, nrep=1)
    a.stamp(3)
    if "nohwait" not in EXP: wait_flags(a, name + "_hp", 29, 15)
    a.label("%s_hw" % name)
    a.e("s_lshl_b32 s90, s%d, 2" % SMT); a.e("s_add_u32 s56, s90, s%d" % SW)
    a.e("s_mul_i32 s31, s56, %d" % (224 * 1024))
    a.e("s_lshl_b32 s38, s56, 16")
    if LAT_B:
        a.e("s_mov_b32 s57, s31"); a.e("s_mov_b32 s58, s38")
        lat_off(a, 31, 57, 0, 36, 4, 8192)
        lat_off(a, 38, 58, 0, 36, 4, 8192)
    base(a, 8, WS, "0x%x" % WS_H, WS_H_BYTES)
    base(a, 4, WS, "0x%x" % WS_O, 4 << 20)
    base(a, 20, WS, "0x%x" % WS_G, 256 * 128)
    base(a, 24, OUT, None, 2048 * 2048)
    a.e("v_lshrrev_b32 v3, 5, v1"); a.e("v_bfe_u32 v4, v1, 2, 2"); a.e("v_bfe_u32 v5, v1, 4, 1"); a.e("v_and_b32 v6, 3, v1")
    a.e("v_lshrrev_b32 v7, 1, v4"); a.e("v_lshlrev_b32 v7, 6, v7"); a.e("v_lshl_add_u32 v7, v5, 5, v7"); a.e("v_lshl_add_u32 v7, v6, 3, v7")
    a.e("v_lshl_add_u32 v8, v3, 3, v4"); a.e("v_lshl_add_u32 v12, v8, 7, v7"); a.e("v_xor_b32 v13, 64, v12")
    a.e("v_lshl_add_u32 v8, v3, 2, v4"); a.e("v_lshl_add_u32 v14, v8, 7, v7"); a.e("v_xor_b32 v15, 64, v14")
    a.e("v_and_b32 v4, 31, v1"); a.e("s_lshl_b32 s91, s56, 5"); a.e("v_add_u32 v4, s91, v4")
    a.e("v_lshrrev_b32 v5, 3, v4"); a.e("v_and_b32 v6, 7, v4"); a.e("v_lshlrev_b32 v6, 2, v6"); a.e("v_lshl_add_u32 v16, v5, 7, v6")
    a.e("v_lshlrev_b32 v17, 11, v4"); a.e("v_lshl_add_u32 v17, v3, 4, v17")
    a.e("s_lshl_b32 s37, s%d, 8" % SMT); a.e("s_add_u32 s37, s37, %d" % F_O)
    a.e("s_barrier")
    a.stamp(4)
    a.e("s_setprio %d" % PRIO["b"])
    def hload(g):
        r = BH + 4 * (g % NHR)
        if g < GB:
            hid[g] = a.vm("buffer_load_dwordx4 v[%d:%d], v2, s[8:11], s31 offen offset:%d sc1" % (r, r + 3, (g % 4) * 1024))
            if g % 4 == 3:
                if LAT_B and (g + 1) % 8 == 0:
                    if g + 1 < GB: lat_off(a, 31, 57, (g + 1) // 8, 36, 4, 8192)
                else: a.e("s_add_u32 s31, s31, 4096")
        else:
            hid[g] = a.vm("buffer_load_dwordx4 v[%d:%d], v2, s[4:7], s38 offen offset:%d sc1" % (r, r + 3, (g % 4) * 1024))
            if g % 4 == 3:
                if LAT_B and (g + 1) % 8 == 0:
                    if g + 1 < NG: lat_off(a, 38, 58, (g + 1 - GB) // 8, 36, 4, 8192)
                else: a.e("s_add_u32 s38, s38, 4096")
    dbg_mark(a, name + "_m3", 7)
    for g in range(8): hload(g)
    nh = 8
    fr = {}
    def reads(g):
        u, kk = g // 4, g % 4
        so = (u % NWU) * 8192 + kk * 2048
        f = g % 3
        va, d = (12, 512) if g < GB else (14, 1024)
        for ng in range(2):
            a.ds("ds_read_b64_tr_b16 v[%d:%d], v%d offset:%d" % (BA + 8 * f + 4 * ng, BA + 8 * f + 4 * ng + 1, va + ng, so))
            fr[g] = a.ds("ds_read_b64_tr_b16 v[%d:%d], v%d offset:%d" % (BA + 8 * f + 4 * ng + 2, BA + 8 * f + 4 * ng + 3, va + ng, so + d))
    reads(0); reads(1)
    polled = False
    nu = st["nu"]
    for g in range(NG):
        u, kk = g // 4, g % 4
        f = g % 3
        if kk == 2 and u + 1 < NU:
            assert u + 1 in uid
            if u == POLL_U:
                a.e("s_cmp_lg_u32 s%d, 0" % SW)
                a.e("s_cbranch_scc1 %s_polled" % name)
                if "noowait" not in EXP: wait_flags(a, name + "_op", 37, 15)
                a.label("%s_polled" % name)
                polled = True
            a.wait(vm=uid[u + 1]); a.e("s_barrier")
            if u == POLL_U:
                gid = a.vm("buffer_load_dword v22, v16, s[20:23], 0 offen sc1")
                a.stamp(5)
        if BSW and g == BSW[0]: a.e("s_setprio %d" % BSW[1])
        if g + 2 < NG: reads(g + 2)
        assert g in hid
        a.wait(vm=hid[g], lg=fr[g])
        hb = BH + 4 * (g % NHR)
        acc = BAC if g < GB else AAC
        for ng in range(2):
            M32(a, acc + 16 * ng, BA + 8 * f + 4 * ng, hb, "0" if g in (0, GB) else acc + 16 * ng)
        cnt = 0
        while nh < min(g + 1 + NHR, NG) and cnt < (OBURST if polled else 2) and (nh < GB or polled):
            hload(nh); nh += 1; cnt += 1
        if nu < NU and (nu < NWU or (u, kk) >= (nu - NWU + 1, 2)):
            wdma(nu); nu += 1
    a.stamp(6)
    a.wait(vm=gid)
    a.e("v_sub_f32 v23, 1.0, v22")
    for k in range(32): a.e("v_mul_f32 v%d, v%d, v23" % (BAC + k, BAC + k))
    for k in range(32): a.e("v_fmac_f32 v%d, v%d, v22" % (BAC + k, AAC + k))
    for k in range(16): a.e("v_cvt_pk_bf16_f32 v%d, v%d, v%d" % (BH + k, BAC + 2 * k, BAC + 2 * k + 1))
    a.e("s_nop 1")
    for q in range(4):
        b = BH + 4 * q
        a.e("v_permlane32_swap_b32 v%d, v%d" % (b, b + 2))
        a.e("v_permlane32_swap_b32 v%d, v%d" % (b + 1, b + 3))
    for q in range(4):
        b = BH + 4 * q
        a.vm("buffer_store_dwordx4 v[%d:%d], v17, s[24:27], s34 offen offset:%d" % (b, b + 3, 32 * q))
    if a.prof or DBGT: a.e("s_waitcnt vmcnt(0)")
    dbg_mark(a, name + "_m4", 8)
    a.stamp(7)
    a.stamp_flush(WS, WS + 1, WS_PROF, SW, 4)
    a.e("s_endpgm")

def gen_kernel(name, prof=False):
    a = Asm(); a.prof = prof; a.PROF_V = 254
    a.raw(kernel_header(name))
    a.e("s_cmp_ge_u32 s2, 512")
    a.e("s_cbranch_scc1 %s_exit" % name)
    if prof: a.e("v_mov_b32 v254, 0")
    a.stamp(0)
    a.e("s_load_dwordx8 s[60:67], s[0:1], 0")
    a.e("s_load_dwordx8 s[72:79], s[0:1], 48")
    a.e("s_load_dwordx2 s[68:69], s[0:1], 32")
    a.e("s_load_dwordx4 s[80:83], s[0:1], 80")
    a.e("s_load_dwordx2 s[84:85], s[0:1], 96")
    a.e("v_and_b32 v1, 63, v0")
    a.e("v_lshrrev_b32 v3, 6, v0")
    a.e("v_lshlrev_b32 v2, 4, v1")
    a.e("v_readfirstlane_b32 s%d, v3" % SW)
    a.e("s_and_b32 s%d, s2, 255" % SID)
    a.e("s_and_b32 s90, s%d, 7" % SID); a.e("s_lshr_b32 s91, s%d, 3" % SID)
    a.e("s_lshr_b32 s92, s90, 1"); a.e("s_lshl_b32 s92, s92, 2"); a.e("s_lshr_b32 s93, s91, 3"); a.e("s_add_u32 s%d, s92, s93" % SMT)
    a.e("s_and_b32 s92, s90, 1"); a.e("s_lshl_b32 s92, s92, 3"); a.e("s_and_b32 s93, s91, 7"); a.e("s_add_u32 s%d, s92, s93" % SNT)
    if DBGT:
        a.e("s_waitcnt lgkmcnt(0)")
        dbg_mark(a, name + "_m0", 4, neg=True)
    a.e("s_cmp_ge_u32 s2, 256")
    a.e("s_cbranch_scc1 %s_roleb" % name)
    if "noa" in EXP: a.e("s_endpgm")
    else: gen_role_a(a, name)
    a.label("%s_roleb" % name)
    a.nostamp = False
    a.reset_counts()
    gen_role_b(a, name)
    a.label("%s_exit" % name)
    a.e("s_endpgm")
    return a.text()
```

```python
from asmlib import *
import struct
def f2u(x): return struct.unpack("<I", struct.pack("<f", x))[0]
import attn64 as A
from attn64 import VQ, VK, VV, VS, VP, VO, VL, VSEL, VNM, VT

WS_H = 4 << 20; WS_H_BYTES = 64 * 224 * 1024
WS_KV = 20 << 20; WS_O = 21 << 20; WS_G = 25 << 20; WS_F = 27 << 20; WS_PROF = 48 << 20
F_KV = 0; F_H = 8192; F_O = 12288; F_BYTES = 16384
KVREP = 32; SLEEP = 6
QSCALE = 0.25503486322159136
LOG2E = 1.4426950408889634
X, WQ, WK, WV, WO, W1, B1P, W2, GW, OUT, DBG, WS = 60, 62, 64, 66, 68, 72, 74, 76, 78, 80, 82, 84
SW, SMT, SNT, SID = 86, 87, 88, 89
FLAG = 65536; GATE = 180
PRIO = dict(a1=2, attn=0, b1=2, b=0, mish=3)
SPIN = 0x40000
PF_W1 = False
PF_B1 = 0
PF_BX = 0
PF_A1 = 0
DIAG = None
OUT_FLAGS = ''
ASW = None
B1SW = None
LATN = 4; LATC = 2
LBN = 4; LBC = 2
DBGT = False
LAT_A1 = True
LAT_B = True
LAT_B1 = True
PKMISH = True
BPRO = None
BURST = False
ROT_B1 = 0
EXP = set()
PF_W2 = True

def M32(a, d, x, y, c): A.M32(a.e, d, x, y, c)
def M16(a, d, x, y, c): A.M16(a.e, d, x, y, c)
def base(a, d, ptr, add, nbytes):
    if add is None:
        srd(a, d, ptr, ptr + 1, nbytes)
    else:
        a.e("s_add_u32 s92, s%d, %s" % (ptr, add)); a.e("s_addc_u32 s93, s%d, 0" % (ptr + 1))
        srd(a, d, 92, 93, nbytes)

def rot_adv(a, sb, blo, sk, step, total):
    a.e("s_add_u32 s%d, s%d, %d" % (sk, sk, step))
    a.e("s_cmp_eq_u32 s%d, %d" % (sk, total))
    a.e("s_cselect_b32 s%d, 0, s%d" % (sk, sk))
    a.e("s_add_u32 s%d, s%d, s%d" % (sb, blo, sk)); a.e("s_addc_u32 s%d, s%d, 0" % (sb + 1, blo + 1))

def burst(a, va=98, vd=99):
    a.e("s_lshl_b32 s96, s2, 2"); a.e("s_add_u32 s96, s96, s%d" % SW)
    a.e("v_lshlrev_b32 v3, 7, v1"); a.e("v_mov_b32 v4, 0x40000000")
    for ptr, nbytes, nl in ((W1, 1024 * 7168, 28), (X, 2048 * 2048, 16), (WQ, 1024 * 2048, 8)):
        base(a, 40, ptr, None, nbytes)
        a.e("s_mul_i32 s95, s96, %d" % (nl * 128))
        a.e("v_cmp_le_u32 vcc, %d, v1" % nl); a.e("s_nop 1")
        a.e("v_cndmask_b32 v%d, v3, v4, vcc" % va)
        a.e("buffer_load_dword v%d, v%d, s[40:43], s95 offen" % (vd, va))

def lat_r(a, reg, n):
    a.e("s_mul_i32 s94, s%d, %d" % (SMT, max(1, n // 4))); a.e("s_add_u32 s%d, s94, s%d" % (reg, SNT)); a.e("s_and_b32 s%d, s%d, %d" % (reg, reg, n - 1))

def lat_base(a, sb, blo, q, rreg, nslots, step):
    a.e("s_add_u32 s94, s%d, %d" % (rreg, q % nslots)); a.e("s_and_b32 s94, s94, %d" % (nslots - 1))
    if q // nslots: a.e("s_add_u32 s94, s94, %d" % (nslots * (q // nslots)))
    a.e("s_mul_i32 s94, s94, %d" % step)
    a.e("s_add_u32 s%d, s%d, s94" % (sb, blo)); a.e("s_addc_u32 s%d, s%d, 0" % (sb + 1, blo + 1))

def lat_off(a, sd, sbase, q, rreg, nslots, step):
    a.e("s_add_u32 s94, s%d, %d" % (rreg, q % nslots)); a.e("s_and_b32 s94, s94, %d" % (nslots - 1))
    if q // nslots: a.e("s_add_u32 s94, s94, %d" % (nslots * (q // nslots)))
    a.e("s_mul_i32 s94, s94, %d" % step)
    a.e("s_add_u32 s%d, s%d, s94" % (sd, sbase))

def dbg_mark(a, tag, word, neg=False):
    if not DBGT: return
    a.e("s_cmp_lg_u32 s%d, 0" % SW); a.e("s_cbranch_scc1 %s" % tag)
    a.e("s_memrealtime s[98:99]"); a.e("s_waitcnt lgkmcnt(0)"); a.lg_done = a.lg_n
    if neg: a.e("s_not_b32 s98, s98")
    a.e("s_mov_b32 s52, s%d" % DBG); a.e("s_mov_b32 s53, s%d" % (DBG + 1)); a.e("s_mov_b32 s54, 256"); a.e("s_mov_b32 s55, 0x00020000")
    a.e("v_mov_b32 v4, s98"); a.e("v_mov_b32 v5, %d" % (word * 4))
    a.e("v_cmp_eq_u32 vcc, 0, v1"); a.e("s_nop 1"); a.e("s_and_saveexec_b64 s[90:91], vcc")
    a.e("buffer_atomic_umax v4, v5, s[52:55], 0 offen")
    a.e("s_mov_b64 exec, s[90:91]")
    a.label(tag)

def poll(a, tag, srd4, voff, soff, nlanes_mask_exec=None):
    a.e("s_mov_b32 s96, 0x%x" % SPIN)
    a.label(tag)
    a.e("buffer_load_dword v5, %s, s[%d:%d], %s offen sc1" % (voff, srd4, srd4 + 3, soff))
    a.e("s_waitcnt vmcnt(0)")
    a.e("v_cmp_eq_u32 vcc, 1, v5")
    a.e("s_nop 3")
    a.e("s_cmp_eq_u64 vcc, exec")
    a.e("s_cbranch_scc1 %s_ok" % tag)
    a.e("s_sleep %d" % SLEEP)
    a.e("s_sub_u32 s96, s96, 1")
    a.e("s_cmp_lg_u32 s96, 0")
    a.e("s_cbranch_scc1 %s" % tag)
    a.label("%s_ok" % tag)

CLR = 253
def early_cleared(a, tag):
    a.e("s_cmp_lg_u32 s%d, 0" % SW); a.e("s_cbranch_scc1 %s" % tag)
    base(a, 52, DBG, None, 256)
    a.e("s_and_b32 s97, s2, 1"); a.e("s_lshl_b32 s97, s97, 7")
    a.e("v_mov_b32 v4, s97")
    a.e("buffer_load_dword v%d, v4, s[52:55], 0 offen sc1" % CLR)
    a.label(tag)

def check_cleared(a, tag):
    a.e("v_readfirstlane_b32 s97, v%d" % CLR)
    a.e("s_nop 3")
    a.e("s_cmp_eq_u32 s97, 1"); a.e("s_cbranch_scc1 %s_ok" % tag)
    base(a, 52, DBG, None, 256)
    a.e("s_and_b32 s97, s2, 1"); a.e("s_lshl_b32 s97, s97, 7")
    a.e("v_mov_b32 v4, s97")
    poll(a, tag, 52, "v4", "0")

def set_flag(a, soff_reg, nrep=1):
    base(a, 52, WS, "0x%x" % WS_F, F_BYTES)
    a.e("v_lshlrev_b32 v6, 8, v1"); a.e("v_add_u32 v6, s%d, v6" % soff_reg)
    a.e("v_mov_b32 v4, 1")
    a.e("v_cmp_gt_u32 vcc, %d, v1" % nrep)
    a.e("s_nop 1")
    a.e("s_and_saveexec_b64 s[90:91], vcc")
    a.e("buffer_store_dword v4, v6, s[52:55], 0 offen sc1")
    a.e("s_mov_b64 exec, s[90:91]")

def wait_flags(a, tag, soff_reg, mask):
    base(a, 52, WS, "0x%x" % WS_F, F_BYTES)
    a.e("v_and_b32 v4, %d, v1" % mask); a.e("v_lshlrev_b32 v4, 2, v4")
    poll(a, tag, 52, "v4", "s%d" % soff_reg)

AX = 32
AA = 64
AQ = 100
A_XD0, A_XD1, A_WD, A_KD = 204, 205, 206, 207
A_XR, A_WR, A_KR = 208, 212, 214
LA_W, LA_KV, LA_X = 0, 32768, 49152

def a1_setup(a):
    a.e("v_lshrrev_b32 v3, 3, v1")
    a.e("v_lshrrev_b32 v4, 4, v1")
    a.e("v_and_b32 v5, 7, v1")
    a.e("v_xor_b32 v4, v4, v5")
    a.e("v_lshlrev_b32 v4, 4, v4")
    a.e("v_lshl_add_u32 v%d, v3, 11, v4" % A_XD0)
    a.e("v_xor_b32 v%d, 64, v%d" % (A_XD1, A_XD0))
    a.e("v_bfe_u32 v4, v1, 4, 1"); a.e("v_lshlrev_b32 v4, 2, v4"); a.e("v_xor_b32 v4, v4, v5"); a.e("v_lshlrev_b32 v4, 4, v4")
    a.e("v_lshl_add_u32 v%d, v3, 11, v4" % A_WD)
    a.e("v_lshrrev_b32 v3, 2, v1"); a.e("v_and_b32 v4, 3, v1"); a.e("v_lshlrev_b32 v4, 4, v4")
    a.e("v_lshl_add_u32 v%d, v3, 6, v4" % A_KD)
    a.e("s_lshl_b32 s91, s%d, 7" % SMT); a.e("s_lshl_b32 s92, s%d, 5" % SW); a.e("s_add_u32 s91, s91, s92"); a.e("s_lshl_b32 s91, s91, 11")
    for q in range(4): a.e("s_add_u32 s%d, s91, %d" % (28 + q, q * (8 * 2048 - 1024)))
    a.e("s_lshl_b32 s33, s%d, 15" % SW); a.e("s_add_u32 s32, s33, %d" % (8 * 2048 - 1024))
    a.e("s_lshl_b32 s34, s%d, 10" % SW)
    a.e("s_lshl_b32 s35, s%d, 11" % SW)
    a.e("s_lshl_b32 s36, s%d, 10" % SW); a.e("s_add_u32 s36, s36, %d" % LA_KV)
    a.e("s_lshl_b32 s37, s%d, 13" % SW); a.e("s_add_u32 s37, s37, %d" % LA_X)

def a1_reads_setup(a):
    a.e("v_and_b32 v3, 31, v1"); a.e("v_lshrrev_b32 v4, 5, v1")
    a.e("v_bfe_u32 v5, v3, 1, 3"); a.e("v_xor_b32 v5, v5, v4"); a.e("v_lshlrev_b32 v5, 4, v5")
    a.e("v_lshl_add_u32 v5, v3, 7, v5"); a.e("v_add_u32 v5, s37, v5")
    for kk in range(4): a.e("v_xor_b32 v%d, %d, v5" % (A_XR + kk, kk * 32))
    a.e("v_bfe_u32 v6, v1, 2, 2"); a.e("v_bfe_u32 v5, v1, 4, 1"); a.e("v_and_b32 v7, 3, v1")
    a.e("v_lshlrev_b32 v3, 5, v5"); a.e("v_lshl_add_u32 v3, v7, 3, v3")
    a.e("v_lshl_add_u32 v4, v4, 3, v6")
    a.e("v_lshrrev_b32 v5, 1, v6"); a.e("v_lshl_add_u32 v5, v5, 6, v3")
    a.e("v_lshl_add_u32 v%d, v4, 7, v5" % A_WR); a.e("v_xor_b32 v%d, 64, v%d" % (A_WR + 1, A_WR))
    a.e("v_lshl_add_u32 v%d, v4, 6, v3" % A_KR); a.e("v_add_u32 v%d, %d, v%d" % (A_KR, LA_KV, A_KR))

def burst_a(a):
    burst(a, 220, 221)

def gen_a1(a, name, kind):
    NU = 16
    uid = {}; xid = {}
    def wdma1(u, p):
        if p == 0:
            a.set_m0(35, LA_W + (u % 4) * 8192)
            uid[u] = a.vm("buffer_load_dwordx4 v%d, s[8:11], s33 offen lds" % A_WD)
        elif p == 1:
            a.set_m0(35, LA_W + (u % 4) * 8192)
            uid[u] = a.vm("buffer_load_dwordx4 v%d, s[8:11], s32 offen offset:1024 lds" % A_WD)
            if LAT_A1 and (u + 1) % LATC == 0:
                if u + 1 < NU: lat_base(a, 8, 48, (u + 1) // LATC, 59, LATN, LATC * 64 * 2048)
            else: add64(a, 8, 64 * 2048)
        else:
            a.set_m0(36, (u % 4) * 4096)
            uid[u] = a.vm("buffer_load_dwordx4 v%d, s[12:15], s34 offen lds" % A_KD)
            if LAT_A1 and (u + 1) % LATC == 0:
                if u + 1 < NU: lat_base(a, 12, 50, (u + 1) // LATC, 59, LATN, LATC * 64 * 64)
            else: add64(a, 12, 64 * 64)
    NWP = 3 if kind else 2
    def wdma(u):
        for p in range(NWP): wdma1(u, p)
    def xdma1(u, q):
        a.set_m0(37, (u % 2) * 4096)
        xid[u] = a.vm("buffer_load_dwordx4 v%d, s[4:7], s%d offen offset:%d lds" % (A_XD0 + (q & 1), 28 + q, q * 1024))
        if q == 3:
            if LAT_A1 and (u + 1) % LATC == 0:
                if u + 1 < NU: lat_base(a, 4, X, (u + 1) // LATC, 59, LATN, LATC * 128)
            else: add64(a, 4, 128)
    def xdma(u):
        for q in range(4): xdma1(u, q)
    wdma(0); xdma(0); xdma(1); wdma(1)
    a1_reads_setup(a)
    if PF_W1:
        a.e("s_mul_i32 s91, s%d, 448" % SNT); a.e("s_and_b32 s91, s91, 0xffffff80")
        base(a, 16, W1, "s91", 1024 * 7168)
        a.e("s_and_b32 s91, s%d, 3" % SMT); a.e("s_lshl_b32 s91, s91, 4")
        a.e("v_lshrrev_b32 v3, 2, v1"); a.e("v_add_u32 v3, s91, v3"); a.e("s_movk_i32 s91, 7168"); a.e("v_mul_lo_u32 v3, v3, s91")
        a.e("v_and_b32 v4, 3, v1"); a.e("v_lshl_add_u32 v215, v4, 7, v3")
        a.e("s_mov_b32 s38, %d" % (2 * 64 * 7168))
    def pfa(uu, wave):
        lab = "%s_pa%d" % (name, uu)
        a.e("s_cmp_lg_u32 s%d, %d" % (SW, wave)); a.e("s_cbranch_scc1 %s" % lab)
        a.e("buffer_load_dword v217, v218, s[20:23], s39 offen")
        a.e("buffer_load_dword v217, v219, s[24:27], s38 offen")
        a.label(lab)
        a.e("s_add_u32 s39, s39, %d" % (64 * 2048)); a.e("s_add_u32 s38, s38, 128")
    if PF_A1:
        a.e("s_lshl_b32 s91, s%d, 7" % SNT)
        base(a, 20, WQ, "s91", 1024 * 2048)
        base(a, 24, X, None, 2048 * 2048)
        a.e("v_mov_b32 v4, 0x40000000"); a.e("v_cmp_le_u32 vcc, 16, v1")
        a.e("s_and_b32 s91, s%d, 3" % SMT); a.e("s_lshl_b32 s91, s91, 4"); a.e("v_add_u32 v3, s91, v1"); a.e("v_lshlrev_b32 v3, 11, v3")
        a.e("v_cndmask_b32 v218, v3, v4, vcc")
        a.e("s_and_b32 s91, s%d, 7" % SNT); a.e("s_lshl_b32 s91, s91, 4"); a.e("s_lshl_b32 s94, s%d, 7" % SMT); a.e("s_add_u32 s91, s91, s94")
        a.e("v_add_u32 v3, s91, v1"); a.e("v_lshlrev_b32 v3, 11, v3")
        a.e("v_cndmask_b32 v219, v3, v4, vcc")
        a.e("s_mov_b32 s39, %d" % (3 * 64 * 2048)); a.e("s_mov_b32 s38, %d" % (3 * 128))
    a.wait(vm=max(uid[0], xid[0])); a.e("s_barrier")
    a.stamp(1)
    wdma(2)
    if BURST: burst_a(a)
    if PF_A1:
        for uu in range(3, PF_A1): pfa(uu, uu & 3)
    a.e("s_cmp_lg_u32 s2, 0"); a.e("s_cbranch_scc1 %s_nopub" % name)
    a.e("s_cmp_lg_u32 s%d, 0" % SW); a.e("s_cbranch_scc1 %s_nopub" % name)
    base(a, 52, DBG, None, 256)
    a.e("v_lshlrev_b32 v6, 7, v1"); a.e("v_mov_b32 v4, 1")
    a.e("v_cmp_gt_u32 vcc, 2, v1"); a.e("s_nop 1")
    a.e("s_and_saveexec_b64 s[90:91], vcc")
    a.e("buffer_store_dword v4, v6, s[52:55], 0 offen sc1")
    a.e("s_mov_b64 exec, s[90:91]")
    a.label("%s_nopub" % name)
    xfr = {}; fr = {}
    def xread(u, kk):
        r = AX + 16 * (u % 2) + 4 * kk
        xfr[(u, kk)] = a.ds("ds_read_b128 v[%d:%d], v%d offset:%d" % (r, r + 3, A_XR + kk, (u % 2) * 4096))
    def reads(g):
        u, kk = g // 4, g % 4
        f = g % 3; b = AA + 12 * f
        so = LA_W + (u % 4) * 8192 + kk * 2048
        for ng in range(2):
            a.ds("ds_read_b64_tr_b16 v[%d:%d], v%d offset:%d" % (b + 4 * ng, b + 4 * ng + 1, A_WR + ng, so))
            fr[g] = a.ds("ds_read_b64_tr_b16 v[%d:%d], v%d offset:%d" % (b + 4 * ng + 2, b + 4 * ng + 3, A_WR + ng, so + 512))
        if kind:
            so = (u % 4) * 4096 + kk * 1024
            a.ds("ds_read_b64_tr_b16 v[%d:%d], v%d offset:%d" % (b + 8, b + 9, A_KR, so))
            fr[g] = a.ds("ds_read_b64_tr_b16 v[%d:%d], v%d offset:%d" % (b + 10, b + 11, A_KR, so + 256))
    for kk in range(4): xread(0, kk)
    reads(0); reads(1)
    pend = []
    for g in range(NU * 4):
        u, kk = g // 4, g % 4
        f = g % 3; b = AA + 12 * f
        if kk == 0 and u + 2 < NU and u >= 0 and (u + 2) not in xid:
            pass
        if ASW and kk == 0 and u == ASW[0]: a.e("s_setprio %d" % ASW[1])
        if kk == 2 and u + 1 < NU:
            a.wait(vm=uid[u + 1]); a.e("s_barrier")
        if g + 2 < NU * 4: reads(g + 2)
        if kk >= 2 and u + 1 < NU:
            a.wait(vm=xid[u + 1])
            xread(u + 1, 2 * (kk - 2)); xread(u + 1, 2 * (kk - 2) + 1)
        a.wait(lg=max(fr[g], xfr[(u, kk)]))
        xb = AX + 16 * (u % 2) + 4 * kk
        def pop():
            if pend:
                f, i0, i1 = pend.pop(0); f(i0, i1)
        if kk == 0 and u + 2 < NU:
            a.wait(lg=xfr[(u, 3)])
            pend += [(xdma1, u + 2, q) for q in range(4)]
        if kk == 2 and u + 3 < NU:
            pend += [(wdma1, u + 3, p) for p in range(NWP)]
        M32(a, AQ, b, xb, "0" if g == 0 else AQ)
        pop()
        M32(a, AQ + 16, b + 4, xb, "0" if g == 0 else AQ + 16)
        pop()
        if kind == "K": M32(a, AQ + 32, b + 8, xb, "0" if g == 0 else AQ + 32)
        if kind == "V": M32(a, AQ + 32, xb, b + 8, "0" if g == 0 else AQ + 32)
        if kk == 3:
            while pend: pop()
        if kk == 1 and PF_W1 and u + 2 < NU:
            lab = "%s_pf%d" % (name, u)
            a.e("s_cmp_lg_u32 s%d, %d" % (SW, u & 3)); a.e("s_cbranch_scc1 %s" % lab)
            a.e("buffer_load_dword v216, v215, s[16:19], s38 offen")
            a.label(lab)
            a.e("s_add_u32 s38, s38, %d" % (64 * 7168))
        if kk == 2 and PF_A1 and u + PF_A1 < NU: pfa(u + PF_A1, u & 3)
        if kk == 3 and u == 9: early_cleared(a, name + "_ec")
    a.stamp(2)
    a.e("s_nop 15")
    for c in range(2):
        for k in range(8):
            r = AQ + 16 * c + 2 * k
            a.e("v_pk_mul_f32 v[%d:%d], v[%d:%d], s[44:45]" % (r, r + 1, r, r + 1))
        for k in range(8):
            r = AQ + 16 * c + 2 * k
            a.e("v_cvt_pk_bf16_f32 v%d, v%d, v%d" % (VQ[c] + k, r, r + 1))
    if kind:
        for k in range(8): a.e("v_cvt_pk_bf16_f32 v%d, v%d, v%d" % (AX + k, AQ + 32 + 2 * k, AQ + 33 + 2 * k))
        base(a, 8, WS, "0x%x" % WS_KV, 64 * 4096)
        a.e("s_lshl_b32 s91, s%d, 2" % SMT); a.e("s_add_u32 s91, s91, s%d" % SW); a.e("s_lshl_b32 s91, s91, 12")
        o = 0 if kind == "K" else 2048
        a.e("buffer_store_dwordx4 v[%d:%d], v2, s[8:11], s91 offen offset:%d sc1" % (AX, AX + 3, o))
        a.e("buffer_store_dwordx4 v[%d:%d], v2, s[8:11], s91 offen offset:%d sc1" % (AX + 4, AX + 7, o + 1024))
    a.e("s_waitcnt vmcnt(0) lgkmcnt(0)")
    if DIAG == "kv": a.stamp(3, force=True)
    a.e("s_barrier")
    a.reset_counts()

def koff(t): return ((t // 4) % 4) * 16384 + (t % 4) * 4096
def kv_dma(a, slot):
    a.e("s_add_u32 m0, s30, %d" % (slot * 16384))
    a.e("s_add_u32 s31, s31, 16384")
    for q in range(4):
        a.e("buffer_load_dwordx4 v2, s[8:11], s31 offen offset:%d sc1 lds" % (q * 1024))
def rowmax(a, c):
    S = VS[c]
    a.e("v_max3_f32 v4, v%d, v%d, v%d" % (S, S + 1, S + 2))
    for k in range(3, 15, 2): a.e("v_max3_f32 v4, v4, v%d, v%d" % (S + k, S + k + 1))
    a.e("v_max_f32 v4, v4, v%d" % (S + 15))
def set_negm(a, c, src):
    a.e("v_mov_b32 v5, v%d" % src); a.e("v_mov_b32 v6, v%d" % src)
    a.e("s_nop 1"); a.e("v_permlane32_swap_b32 v5, v6"); a.e("s_nop 1")
    a.e("v_max_f32 v5, v5, v6"); a.e("v_sub_f32 v5, 0, v5")
    for k in range(16): a.e("v_mov_b32 v%d, v5" % (VNM[c] + k))

def gen_gate(a):
    G = GATE
    a.e("v_mov_b32 v4, 0"); a.e("v_mov_b32 v5, 0"); a.e("s_nop 0")
    for k in range(8):
        a.e("v_dot2c_f32_bf16 v4, v%d, v%d" % (G + 8 + k, G + k))
        a.e("v_dot2c_f32_bf16 v5, v%d, v%d" % (G + 16 + k, G + k))
    a.e("s_nop 2")
    for sh in (1, 2, 4, 8):
        for r in (4, 5): a.e("v_add_f32_dpp v%d, v%d, v%d row_shr:%d row_mask:0xf bank_mask:0xf bound_ctrl:0" % (r, r, r, sh))
        a.e("s_nop 0")
    for r in (4, 5): a.e("v_add_f32_dpp v%d, v%d, v%d row_bcast:15 row_mask:0xa bank_mask:0xf" % (r, r, r))
    a.e("s_nop 0")
    for r in (4, 5): a.e("v_add_f32_dpp v%d, v%d, v%d row_bcast:31 row_mask:0xc bank_mask:0xf" % (r, r, r))
    a.e("s_nop 0")
    for r in (4, 5): a.e("v_mul_f32 v%d, 0x%x, v%d" % (r, f2u(-LOG2E), r))
    for r in (4, 5): a.e("v_exp_f32 v%d, v%d" % (r, r))
    a.e("s_nop 0")
    for r in (4, 5): a.e("v_add_f32 v%d, 1.0, v%d" % (r, r))
    for r in (4, 5): a.e("v_rcp_f32 v%d, v%d" % (r, r))
    base(a, 24, WS, "0x%x" % WS_G, 256 * 128)
    a.e("s_lshl_b32 s91, s%d, 4" % SMT); a.e("s_add_u32 s91, s91, s%d" % SNT); a.e("s_lshl_b32 s91, s91, 7")
    a.e("s_lshl_b32 s94, s%d, 3" % SW); a.e("s_add_u32 s91, s91, s94")
    a.e("v_mov_b32 v6, s91")
    a.e("v_cmp_eq_u32 vcc, 63, v1"); a.e("s_nop 1")
    a.e("s_and_saveexec_b64 s[90:91], vcc")
    a.e("buffer_store_dwordx2 v[4:5], v6, s[24:27], 0 offen sc1")
    a.e("s_mov_b64 exec, s[90:91]")

def gen_attn(a, name):
    a.e("s_cmp_lg_u32 s%d, 0" % SW); a.e("s_cbranch_scc1 %s_kvw" % name)
    check_cleared(a, name + "_clr")
    a.e("s_cmp_ge_u32 s%d, 2" % SNT); a.e("s_cbranch_scc1 %s_nokvsig" % name)
    a.e("s_lshl_b32 s28, s%d, 1" % SMT); a.e("s_add_u32 s28, s28, s%d" % SNT); a.e("s_lshl_b32 s28, s28, 2"); a.e("s_add_u32 s28, s28, %d" % F_KV)
    set_flag(a, 28, nrep=KVREP)
    a.label("%s_nokvsig" % name)
    if DIAG == "kv": a.stamp(4, force=True)
    a.e("s_and_b32 s28, s2, %d" % (KVREP - 1)); a.e("s_lshl_b32 s28, s28, 8"); a.e("s_add_u32 s28, s28, %d" % F_KV)
    if "nokvwait" not in EXP: wait_flags(a, name + "_kvp", 28, 31)
    if DIAG == "kv": a.stamp(5, force=True)
    a.label("%s_kvw" % name)
    a.e("s_barrier")
    a.e("s_setprio %d" % PRIO["attn"])
    a.e("s_lshl_b32 s38, s%d, 2" % SMT); a.e("s_add_u32 s38, s38, s%d" % SW); a.e("s_lshl_b32 s38, s38, 6")
    a.e("s_lshl_b32 s91, s%d, 2" % SNT); a.e("s_add_u32 s38, s38, s91"); a.e("s_lshl_b32 s38, s38, 10")
    a.e("s_lshl_b32 s30, s%d, 12" % SW)
    a.e("s_mov_b32 s39, 0")
    base(a, 8, WS, "0x%x" % WS_KV, 64 * 4096)
    base(a, 12, WS, "0x%x" % WS_O, 4 << 20)
    a.label("%s_pass" % name)
    a.e("s_sub_u32 s31, s30, 16384")
    kv_dma(a, 0)
    a.e("v_mov_b32 v4, 0x%x" % FLAG); a.e("v_mov_b32 v5, 0")
    a.e("ds_write_b32 v4, v5")
    a.e("v_bfe_u32 v4, v1, 2, 1"); a.e("v_bfe_u32 v5, v1, 4, 1")
    a.e("v_cmp_eq_u32 vcc, v4, v5")
    a.e("v_mov_b32 v6, 0x3f803f80"); a.e("v_mov_b32 v7, 0")
    for k in range(4): a.e("v_cndmask_b32 v%d, v7, v6, vcc" % (VSEL + k))
    for c in range(2):
        for k in range(16): a.e("v_mov_b32 v%d, 0" % (VO[c] + k))
        for k in range(4): a.e("v_mov_b32 v%d, 0" % (VL[c] + k))
    for k in range(4): a.e("v_mov_b32 v%d, 0" % (VP[1] + 4 + k))
    for k in range(4): a.e("v_mov_b32 v%d, 0" % (VV + 4 + k))
    a.e("s_waitcnt vmcnt(0) lgkmcnt(0)")
    a.e("s_barrier")
    if DIAG == "kv": a.stamp(6, force=True); a.nostamp = True
    a.stamp(3)
    a.e("ds_read_b128 v[%d:%d], v2 offset:0" % (VK, VK + 3))
    a.e("ds_read_b128 v[%d:%d], v2 offset:1024" % (VK + 4, VK + 7))
    kv_dma(a, 1); kv_dma(a, 2)
    a.e("s_cmp_lg_u32 s39, 0")
    a.e("s_cbranch_scc1 %s_havemax" % name)
    base(a, 20, X, None, 2048 * 2048)
    base(a, 24, GW, None, 2048)
    a.e("s_lshl_b32 s91, s%d, 4" % SMT); a.e("s_add_u32 s91, s91, s%d" % SNT); a.e("s_lshl_b32 s91, s91, 2"); a.e("s_add_u32 s91, s91, s%d" % SW)
    a.e("s_lshl_b32 s28, s91, 12")
    a.e("v_lshlrev_b32 v3, 5, v1")
    G = GATE
    a.e("buffer_load_dwordx4 v[%d:%d], v3, s[24:27], 0 offen" % (G, G + 3))
    a.e("buffer_load_dwordx4 v[%d:%d], v3, s[24:27], 0 offen offset:16" % (G + 4, G + 7))
    a.e("buffer_load_dwordx4 v[%d:%d], v3, s[20:23], s28 offen" % (G + 8, G + 11))
    a.e("buffer_load_dwordx4 v[%d:%d], v3, s[20:23], s28 offen offset:16" % (G + 12, G + 15))
    a.e("buffer_load_dwordx4 v[%d:%d], v3, s[20:23], s28 offen offset:2048" % (G + 16, G + 19))
    a.e("buffer_load_dwordx4 v[%d:%d], v3, s[20:23], s28 offen offset:2064" % (G + 20, G + 23))
    a.e("s_waitcnt lgkmcnt(0)")
    for c in range(2):
        M32(a, VS[c], VK, VQ[c], "0")
        M32(a, VS[c], VK + 4, VQ[c] + 4, VS[c])
    a.e("s_nop 15")
    for c in range(2):
        rowmax(a, c); set_negm(a, c, 4)
    a.label("%s_havemax" % name)
    a.e("s_waitcnt lgkmcnt(0)")
    a.e("s_nop 0")
    M32(a, VS[0], VK, VQ[0], VNM[0])
    M32(a, VS[0], VK + 4, VQ[0] + 4, VS[0])
    a.e("ds_read_b128 v[%d:%d], v2 offset:%d" % (VV, VV + 3, 2048))
    a.e("s_nop 15")
    if PF_W2:
        a.e("s_lshl_b32 s91, s%d, 7" % SNT)
        base(a, 16, W2, "s91", 3584 * 2048)
        base(a, 40, WO, "s91", 1024 * 2048)
        a.e("s_and_b32 s91, s%d, 3" % SMT); a.e("s_lshl_b32 s91, s91, 4")
        a.e("v_lshrrev_b32 v3, 4, v1"); a.e("v_lshlrev_b32 v3, 6, v3"); a.e("v_and_b32 v4, 15, v1"); a.e("v_add_u32 v3, v3, v4"); a.e("v_add_u32 v3, s91, v3")
        a.e("v_lshlrev_b32 v215, 11, v3")
        a.e("s_mov_b32 s29, 0"); a.e("s_mov_b32 s32, 0")
    dbg_mark(a, name + "_m1", 5)
    a.e("s_mov_b32 s33, 4")
    a.label("%s_loop" % name)
    for i in range(16):
        ex = None
        if i % 4 == 3:
            a.e("s_waitcnt vmcnt(4)")
            a.e("s_barrier")
            slot = (i // 4 + 3) % 4
            ex = [["s_add_u32 m0, s30, %d" % (slot * 16384), "s_add_u32 s31, s31, 16384", "buffer_load_dwordx4 v2, s[8:11], s31 offen sc1 lds"]]
            ex += [["buffer_load_dwordx4 v2, s[8:11], s31 offen offset:%d sc1 lds" % (q * 1024)] for q in range(1, 4)]
        A.phase(a.e, 0, i, koff, extra=ex)
        if i % 4 == 0 and PF_W2:
            lab = "%s_pf2_%d" % (name, i)
            a.e("s_cmp_lg_u32 s%d, %d" % (SW, i // 4)); a.e("s_cbranch_scc1 %s" % lab)
            a.e("buffer_load_dword v216, v215, s[16:19], s29 offen")
            a.e("s_cmp_lg_u32 s33, 1"); a.e("s_cbranch_scc1 %s" % lab)
            a.e("buffer_load_dword v217, v215, s[40:43], s32 offen")
            a.label(lab)
            a.e("s_add_u32 s29, s29, %d" % (4 * 64 * 2048))
            a.e("s_cmp_lg_u32 s33, 1"); a.e("s_cbranch_scc1 %s_n" % lab)
            a.e("s_add_u32 s32, s32, %d" % (4 * 64 * 2048))
            a.label("%s_n" % lab)
        A.phase(a.e, 1, i, koff)
    a.e("s_cmp_lg_u32 s33, 4")
    a.e("s_cbranch_scc1 %s_nog2" % name)
    a.e("s_cmp_lg_u32 s39, 0")
    a.e("s_cbranch_scc1 %s_nog2" % name)
    gen_gate(a)
    a.label("%s_nog2" % name)
    a.e("s_sub_u32 s33, s33, 1")
    a.e("s_cmp_lg_u32 s33, 0")
    a.e("s_cbranch_scc1 %s_loop" % name)
    a.e("s_waitcnt vmcnt(0) lgkmcnt(0)")
    M32(a, VO[1], VV + 4, VP[1] + 4, VO[1])
    M16(a, VL[1], VSEL, VP[1] + 4, VL[1])
    a.stamp(4)
    a.e("s_nop 15")
    a.e("v_mov_b32 v5, 0x%x" % f2u(2.0 ** 30))
    a.e("v_mov_b32 v7, 0")
    a.e("s_mov_b64 s[34:35], 0")
    for c in range(2):
        a.e("v_rcp_f32 v4, v%d" % VL[c])
        a.e("v_cmp_nle_f32 vcc, v%d, v5" % VL[c])
        a.e("s_or_b64 s[34:35], s[34:35], vcc")
        for k in range(16): a.e("v_mul_f32 v%d, v%d, v4" % (VO[c] + k, VO[c] + k))
        for k in range(16): a.e("v_fma_f32 v7, v%d, 0, v7" % (VO[c] + k))
    a.e("v_cmp_u_f32 vcc, v7, v7")
    a.e("s_or_b64 s[34:35], s[34:35], vcc")
    for c in range(2):
        for k in range(8): a.e("v_cvt_pk_bf16_f32 v%d, v%d, v%d" % (VT + 8 * c + k, VO[c] + 2 * k, VO[c] + 2 * k + 1))
    for c in range(2):
        for m in range(2):
            a.e("buffer_store_dwordx4 v[%d:%d], v2, s[12:15], s38 offen offset:%d sc1" % (VT + 8 * c + 4 * m, VT + 8 * c + 4 * m + 3, c * 2048 + m * 1024))
    a.e("s_cmp_lg_u32 s39, 0")
    a.e("s_cbranch_scc1 %s_ok" % name)
    a.e("s_cmp_eq_u64 s[34:35], 0")
    a.e("s_cbranch_scc1 %s_ok" % name)
    a.e("v_mov_b32 v4, 0x%x" % FLAG); a.e("v_mov_b32 v5, 1")
    a.e("ds_write_b32 v4, v5")
    a.label("%s_ok" % name)
    a.e("s_waitcnt vmcnt(0) lgkmcnt(0)")
    a.e("s_barrier")
    a.e("v_mov_b32 v4, 0x%x" % FLAG)
    a.e("ds_read_b32 v5, v4")
    a.e("s_waitcnt lgkmcnt(0)")
    a.e("v_readfirstlane_b32 s36, v5")
    a.e("s_nop 3")
    a.e("s_cmp_eq_u32 s36, 0")
    a.e("s_cbranch_scc1 %s_store" % name)
    a.e("s_cmp_lg_u32 s39, 0")
    a.e("s_cbranch_scc1 %s_store" % name)
    a.e("s_barrier")
    a.e("s_mov_b32 s39, 1")
    a.e("v_mov_b32 v%d, 0xff800000" % VT)
    a.e("v_mov_b32 v%d, 0xff800000" % (VT + 1))
    a.e("s_mov_b32 s37, 0")
    a.label("%s_mx" % name)
    a.e("buffer_load_dwordx4 v[%d:%d], v2, s[8:11], s37 offen sc1" % (VK, VK + 3))
    a.e("buffer_load_dwordx4 v[%d:%d], v2, s[8:11], s37 offen offset:1024 sc1" % (VK + 4, VK + 7))
    a.e("s_waitcnt vmcnt(0)")
    for c in range(2):
        M32(a, VS[c], VK, VQ[c], "0")
        M32(a, VS[c], VK + 4, VQ[c] + 4, VS[c])
    a.e("s_nop 15")
    for c in range(2):
        for k in range(0, 16, 2): a.e("v_max3_f32 v%d, v%d, v%d, v%d" % (VT + c, VT + c, VS[c] + k, VS[c] + k + 1))
    a.e("s_add_u32 s37, s37, 4096")
    a.e("s_cmp_lt_u32 s37, %d" % (64 * 4096))
    a.e("s_cbranch_scc1 %s_mx" % name)
    for c in range(2): set_negm(a, c, VT + c)
    a.e("s_branch %s_pass" % name)
    a.label("%s_store" % name)
    a.e("s_cmp_lg_u32 s%d, 0" % SW)
    a.e("s_cbranch_scc1 %s_nosig" % name)
    a.e("s_lshl_b32 s28, s%d, 8" % SMT); a.e("s_lshl_b32 s91, s%d, 2" % SNT); a.e("s_add_u32 s28, s28, s91"); a.e("s_add_u32 s28, s28, %d" % F_O)
    set_flag(a, 28, nrep=1)
    a.label("%s_nosig" % name)
    dbg_mark(a, name + "_m2", 6)
    a.stamp(5)
    a.stamp_flush(WS, WS + 1, WS_PROF, SW, 4)
    a.e("s_endpgm")

def gen_role_a(a, name):
    if PRIO["a1"]: a.e("s_setprio %d" % PRIO["a1"])
    a1_setup(a)
    a.e("s_mov_b32 s44, 0x%x" % f2u(QSCALE)); a.e("s_mov_b32 s45, s44")
    a.e("s_lshl_b32 s94, s%d, 7" % SNT)
    a.e("s_waitcnt lgkmcnt(0)")
    a.e("s_cmp_lg_u32 s2, 0"); a.e("s_cbranch_scc1 %s_noclr" % name)
    base(a, 52, WS, "0x%x" % WS_F, F_BYTES)
    a.e("s_lshl_b32 s91, s%d, 12" % SW)
    for k in range(4): a.e("v_mov_b32 v%d, 0" % (8 + k))
    for k in range(4): a.e("buffer_store_dwordx4 v[8:11], v2, s[52:55], s91 offen offset:%d sc1" % (k * 1024))
    a.label("%s_noclr" % name)
    base(a, 8, WQ, "s94", 1024 * 2048)
    base(a, 4, X, None, 2048 * 2048)
    if LAT_A1:
        lat_r(a, 59, LATN)
        a.e("s_mov_b32 s48, s8"); a.e("s_mov_b32 s49, s9")
        lat_base(a, 8, 48, 0, 59, LATN, LATC * 64 * 2048)
        lat_base(a, 4, X, 0, 59, LATN, LATC * 128)
    a.e("s_cmp_eq_u32 s%d, 0" % SNT); a.e("s_cbranch_scc1 %s_aK" % name)
    a.e("s_cmp_eq_u32 s%d, 1" % SNT); a.e("s_cbranch_scc1 %s_aV" % name)
    gen_a1(a, name + "_n", None)
    a.e("s_branch %s_attn" % name)
    a.label("%s_aK" % name); a.reset_counts()
    base(a, 12, WK, None, 1024 * 64)
    if LAT_A1:
        a.e("s_mov_b32 s50, s12"); a.e("s_mov_b32 s51, s13")
        lat_base(a, 12, 50, 0, 59, LATN, LATC * 64 * 64)
    gen_a1(a, name + "_k", "K")
    a.e("s_branch %s_attn" % name)
    a.label("%s_aV" % name); a.reset_counts()
    base(a, 12, WV, None, 1024 * 64)
    if LAT_A1:
        a.e("s_mov_b32 s50, s12"); a.e("s_mov_b32 s51, s13")
        lat_base(a, 12, 50, 0, 59, LATN, LATC * 64 * 64)
    gen_a1(a, name + "_v", "V")
    a.label("%s_attn" % name)
    gen_attn(a, name)

BW = [8, 36]
BX = [64, 80]
HAC = 100
HB = 212
B_XD, B_WD, B_XR, B_BI, B_WR = 240, 241, 243, 245, 246
LB_X, LB_W = 0, 32768
def hacc(j, tb): return HAC + 16 * j + 4 * tb

def b1_setup(a):
    a.e("v_lshrrev_b32 v3, 3, v1"); a.e("v_and_b32 v4, 6, v3"); a.e("v_and_b32 v5, 7, v1"); a.e("v_xor_b32 v4, v4, v5")
    a.e("v_lshlrev_b32 v4, 4, v4"); a.e("v_lshl_add_u32 v%d, v3, 11, v4" % B_XD)
    a.e("s_lshl_b32 s91, s%d, 7" % SMT); a.e("s_lshl_b32 s92, s%d, 5" % SW); a.e("s_add_u32 s91, s91, s92"); a.e("s_lshl_b32 s91, s91, 11")
    for q in range(4): a.e("s_add_u32 s%d, s91, %d" % (28 + q, q * (8 * 2048 - 1024)))
    a.e("s_lshl_b32 s35, s%d, 12" % SW); a.e("s_add_u32 s36, s35, %d" % LB_W)
    a.e("s_add_u32 s35, s35, %d" % LB_X)

def b1_setup_w(a):
    a.e("v_lshrrev_b32 v3, 5, v1"); a.e("v_bfe_u32 v4, v1, 1, 4"); a.e("v_and_b32 v9, 1, v1"); a.e("v_lshlrev_b32 v9, 4, v9")
    a.e("s_and_b32 s91, s%d, 1" % SW); a.e("s_lshl_b32 s91, s91, 2")
    a.e("v_or_b32 v5, s91, v3")
    a.e("v_mul_u32_u24 v8, 7168, v3"); a.e("v_add_u32 v8, v8, v9")
    a.e("v_mov_b32 v10, 0x40000000")
    for par in range(2):
        a.e("v_xor_b32 v6, %d, v5" % (2 * par))
        a.e("v_xor_b32 v6, v6, v4")
        a.e("v_lshl_add_u32 v7, v6, 5, v8")
        a.e("v_cmp_le_u32 vcc, 14, v6")
        a.e("s_nop 1")
        a.e("v_cndmask_b32 v%d, v7, v10, vcc" % (B_WD + par))

def b1_reads_setup(a):
    a.e("v_and_b32 v5, 15, v1"); a.e("v_lshrrev_b32 v6, 4, v1"); a.e("v_bfe_u32 v7, v1, 2, 2"); a.e("v_and_b32 v8, 3, v1")
    a.e("s_and_b32 s37, s%d, 1" % SW); a.e("s_lshr_b32 s38, s%d, 1" % SW)
    a.e("v_and_b32 v3, 6, v5"); a.e("v_xor_b32 v3, v3, v6"); a.e("v_lshlrev_b32 v4, 4, v3"); a.e("v_lshl_add_u32 v4, v5, 7, v4")
    a.e("s_lshl_b32 s91, s37, 13"); a.e("v_add_u32 v%d, s91, v4" % B_XR); a.e("v_xor_b32 v%d, 64, v%d" % (B_XR + 1, B_XR))
    a.e("v_and_b32 v3, 1, v6"); a.e("v_lshl_or_b32 v3, v3, 2, v7")
    a.e("v_lshl_add_u32 v4, v6, 3, v7"); a.e("v_lshlrev_b32 v4, 9, v4"); a.e("v_lshl_add_u32 v4, v8, 3, v4"); a.e("v_add_u32 v4, %d, v4" % LB_W)
    a.e("s_mul_i32 s91, s38, 7")
    for j in range(7):
        a.e("s_add_u32 s94, s91, %d" % j)
        a.e("v_xor_b32 v9, s94, v3")
        a.e("v_lshl_add_u32 v%d, v9, 5, v4" % (B_WR + j))
    a.e("v_lshlrev_b32 v%d, 3, v6" % B_BI)
    a.e("s_mul_i32 s39, s%d, 448" % SNT); a.e("s_mul_i32 s91, s38, 224"); a.e("s_add_u32 s39, s39, s91")

def b1_x0(a, xid):
    a.set_m0(35, 0)
    for q in range(4):
        xid[0] = a.vm("buffer_load_dwordx4 v%d, s[4:7], s%d offen offset:%d lds" % (B_XD, 28 + q, q * 1024))
    if LAT_B1 and LATC == 1: lat_base(a, 4, X, 1, 59, LATN, 128)
    elif ROT_B1: rot_adv(a, 4, X, 57, 128, 2048)
    else: add64(a, 4, 128)

def gen_b1(a, name, after_loop, xid):
    NH = 32
    wid = {}
    def wdma1(h, i):
        a.set_m0(36, (h % 3) * 16384)
        wid[h] = a.vm("buffer_load_dwordx4 v%d, s[8:11], s%d offen offset:%d lds" % (B_WD + (i & 1), 48 + i, i * 1024))
        if i == 3:
            if LAT_B1 and (h + 1) % (2 * LATC) == 0:
                if h + 1 < NH: lat_base(a, 8, 12, (h + 1) // (2 * LATC), 59, LATN, 2 * LATC * 32 * 7168)
            elif ROT_B1: rot_adv(a, 8, 12, 56, 32 * 7168, 1024 * 7168)
            else: add64(a, 8, 32 * 7168)
    def xdma1(s, q):
        a.set_m0(35, (s % 2) * 16384)
        xid[s] = a.vm("buffer_load_dwordx4 v%d, s[4:7], s%d offen offset:%d lds" % (B_XD, 28 + q, q * 1024))
        if q == 3:
            if LAT_B1 and (s + 1) % LATC == 0:
                if s + 1 < 16: lat_base(a, 4, X, (s + 1) // LATC, 59, LATN, LATC * 128)
            elif ROT_B1: rot_adv(a, 4, X, 57, 128, 2048)
            else: add64(a, 4, 128)
    def wdma(h):
        for i in range(4): wdma1(h, i)
    def xdma(s):
        for q in range(4): xdma1(s, q)
    wdma(0); wdma(1)
    b1_reads_setup(a)
    base(a, 24, B1P, None, 3584 * 2)
    bias = []
    for j in range(7):
        bias.append(a.vm("buffer_load_dwordx2 v[%d:%d], v%d, s[24:27], s39 offen offset:%d" % (HB + 4 * j, HB + 4 * j + 1, B_BI, 32 * j)))
    def pf(hh, wave):
        lab = "%s_pf%d" % (name, hh)
        a.e("s_cmp_lg_u32 s%d, %d" % (SW, wave)); a.e("s_cbranch_scc1 %s" % lab)
        a.e("buffer_load_dword v96, v97, s[16:19], s34 offen")
        a.label(lab)
        a.e("s_add_u32 s34, s34, %d" % (32 * 7168))
    def pfx(st, wave):
        lab = "%s_px%d" % (name, st)
        a.e("s_cmp_lg_u32 s%d, %d" % (SW, wave)); a.e("s_cbranch_scc1 %s" % lab)
        a.e("buffer_load_dword v96, v98, s[20:23], s39x offen".replace("s39x", "s58"))
        a.label(lab)
        a.e("s_add_u32 s58, s58, 128")
    if PF_BX:
        base(a, 20, X, None, 2048 * 2048)
        a.e("s_and_b32 s91, s%d, 7" % SNT); a.e("s_lshl_b32 s91, s91, 4"); a.e("s_lshl_b32 s94, s%d, 7" % SMT); a.e("s_add_u32 s91, s91, s94")
        a.e("v_add_u32 v3, s91, v1"); a.e("v_lshlrev_b32 v3, 11, v3"); a.e("v_mov_b32 v4, 0x40000000")
        a.e("v_cmp_le_u32 vcc, 16, v1"); a.e("s_nop 1"); a.e("v_cndmask_b32 v98, v3, v4, vcc")
        a.e("s_mov_b32 s58, %d" % (2 * 128))
    if PF_B1:
        a.e("s_mul_i32 s91, s%d, 448" % SNT); a.e("s_and_b32 s91, s91, 0xffffff80")
        base(a, 16, W1, "s91", 1024 * 7168)
        a.e("s_and_b32 s91, s%d, 3" % SMT); a.e("s_lshl_b32 s91, s91, 3")
        a.e("v_lshrrev_b32 v3, 2, v1"); a.e("v_add_u32 v3, s91, v3"); a.e("v_mul_u32_u24 v3, 7168, v3")
        a.e("v_and_b32 v4, 3, v1"); a.e("v_lshl_add_u32 v3, v4, 7, v3"); a.e("v_mov_b32 v4, 0x40000000")
        a.e("v_cmp_le_u32 vcc, 32, v1"); a.e("s_nop 1"); a.e("v_cndmask_b32 v97, v3, v4, vcc")
        a.e("s_mov_b32 s34, %d" % (3 * 32 * 7168))
    a.wait(vm=max(wid[0], xid[0])); a.e("s_barrier")
    a.stamp(1)
    if BPRO is not None: a.e("s_setprio %d" % PRIO["b1"])
    wdma(2); xdma(1)
    if BURST: burst(a)
    if PF_B1:
        for hh in range(3, PF_B1): pf(hh, hh & 3)
    if PF_BX:
        for st in range(2, PF_BX): pfx(st, st & 3)
    rd = {}
    def rlist(h):
        s, kk = h // 2, h % 2
        L = []
        for tb in range(4):
            r = BX[h % 2] + 4 * tb
            L.append("ds_read_b128 v[%d:%d], v%d offset:%d" % (r, r + 3, B_XR + kk, (s % 2) * 16384 + tb * 2048))
        for j in range(7):
            r = BW[h % 2] + 4 * j
            o = (h % 3) * 16384
            L.append("ds_read_b64_tr_b16 v[%d:%d], v%d offset:%d" % (r, r + 1, B_WR + j, o))
            L.append("ds_read_b64_tr_b16 v[%d:%d], v%d offset:%d" % (r + 2, r + 3, B_WR + j, o + 2048))
        return L
    for x in rlist(0): rd[0] = a.ds(x)
    a.wait(vm=bias[-1])
    for j in range(7):
        b = HB + 4 * j
        a.e("v_and_b32 v%d, 0xffff0000, v%d" % (b + 3, b + 1))
        a.e("v_lshlrev_b32 v%d, 16, v%d" % (b + 2, b + 1))
        a.e("v_and_b32 v%d, 0xffff0000, v%d" % (b + 1, b))
        a.e("v_lshlrev_b32 v%d, 16, v%d" % (b, b))
    for h in range(NH):
        s, kk = h // 2, h % 2
        need = None
        if h + 1 < NH:
            need = wid[h + 1]
            need = max(need, xid[(h + 1) // 2])
        a.wait(vm=need if "nowait" not in EXP else None, lg=rd[h])
        if "nobar" not in EXP: a.e("s_barrier")
        if DIAG == "b1" and h in (8, 16, 24): a.stamp(1 + h // 8, force=True)
        if B1SW and h == B1SW[0]: a.e("s_setprio %d" % B1SW[1])
        todo = rlist(h + 1) if h + 1 < NH else []
        if "nords" in EXP and todo: rd[h + 1] = a.lg_n - 1; todo = []
        dma = []
        if h + 3 < NH:
            if "now" in EXP: wid[h + 3] = a.vm_n - 1
            else: dma += [(wdma1, h + 3, i) for i in range(4)]
        if kk == 1 and s + 2 < 16:
            if "nox" in EXP: xid[s + 2] = a.vm_n - 1
            else: dma += [(xdma1, s + 2, q) for q in range(4)]
        if h == NH - 1: after_loop()
        if h == 16 and "noa" not in EXP: early_cleared(a, name + "_ec")
        n = 0
        for j in range(7):
            for tb in range(4):
                d = hacc(j, tb)
                c = "v[%d:%d]" % (HB + 4 * j, HB + 4 * j + 3) if h == 0 else "v[%d:%d]" % (d, d + 3)
                a.e("v_mfma_f32_16x16x32_bf16 v[%d:%d], v[%d:%d], v[%d:%d], %s" % (d, d + 3, BW[h % 2] + 4 * j, BW[h % 2] + 4 * j + 3, BX[h % 2] + 4 * tb, BX[h % 2] + 4 * tb + 3, c))
                n += 1
                if todo and n >= 1 and tb != 3:
                    rd[h + 1] = a.ds(todo.pop(0))
                if dma and (tb == 3 or (tb == 1 and j == 3)):
                    f, i0, i1 = dma.pop(0)
                    f(i0, i1)
                if tb == 3 and j == 4 and PF_B1 and h + PF_B1 < NH: pf(h + PF_B1, h & 3)
                if tb == 3 and j == 5 and PF_BX and kk == 0 and s + PF_BX < 16: pfx(s + PF_BX, s & 3)
        while todo: rd[h + 1] = a.ds(todo.pop(0))
        assert not dma
    a.stamp(5 if DIAG == "b1" else 2, force=True)
    if DIAG == "b1": a.nostamp = True

def b1_epilogue(a):
    a.e("s_mov_b32 s44, 0x%x" % f2u(LOG2E)); a.e("s_mov_b32 s45, s44")
    a.e("s_mov_b32 s46, 0x%x" % f2u(-2.0)); a.e("s_mov_b32 s47, s46")
    base(a, 20, WS, "0x%x" % WS_H, WS_H_BYTES)
    a.e("s_lshl_b32 s91, s%d, 2" % SMT); a.e("s_lshl_b32 s94, s37, 1"); a.e("s_add_u32 s91, s91, s94")
    a.e("s_mul_i32 s91, s91, 224"); a.e("s_mul_i32 s94, s%d, 14" % SNT); a.e("s_add_u32 s91, s91, s94")
    a.e("s_mul_i32 s94, s38, 7"); a.e("s_add_u32 s91, s91, s94"); a.e("s_lshl_b32 s56, s91, 10")
    a.e("s_add_u32 s57, s56, %d" % (224 * 1024))
    a.e("s_add_u32 s58, s56, 4096"); a.e("s_add_u32 s59, s57, 4096")
    a.e("s_nop 7")
    cnt = 0
    for j in range(7):
        for pair in range(2):
            Aa = hacc(j, 2 * pair)
            t = HB + 16 * (cnt % 2); q = t + 12; cnt += 1
            if PKMISH:
                for k in range(4): a.e("v_pk_mul_f32 v[%d:%d], v[%d:%d], s[44:45]" % (t + 2 * k, t + 2 * k + 1, Aa + 2 * k, Aa + 2 * k + 1))
                for k in range(8): a.e("v_exp_f32 v%d, v%d" % (t + k, t + k))
                for k in range(4): a.e("v_pk_add_f32 v[%d:%d], v[%d:%d], 2.0 op_sel_hi:[1,0]" % (t + 8 + 2 * k, t + 9 + 2 * k, t + 2 * k, t + 2 * k + 1))
                for k in range(4): a.e("v_pk_fma_f32 v[%d:%d], v[%d:%d], v[%d:%d], 2.0 op_sel_hi:[1,1,0]" % (t + 2 * k, t + 2 * k + 1, t + 2 * k, t + 2 * k + 1, t + 8 + 2 * k, t + 9 + 2 * k))
                for k in range(8): a.e("v_rcp_f32 v%d, v%d" % (t + k, t + k))
                for k in range(4): a.e("v_pk_fma_f32 v[%d:%d], v[%d:%d], s[46:47], 1.0 op_sel_hi:[1,1,0]" % (t + 2 * k, t + 2 * k + 1, t + 2 * k, t + 2 * k + 1))
                for k in range(4): a.e("v_pk_mul_f32 v[%d:%d], v[%d:%d], v[%d:%d]" % (t + 2 * k, t + 2 * k + 1, t + 2 * k, t + 2 * k + 1, Aa + 2 * k, Aa + 2 * k + 1))
            else:
                for k in range(8): a.e("v_mul_f32 v%d, s44, v%d" % (t + k, Aa + k))
                for k in range(8): a.e("v_exp_f32 v%d, v%d" % (t + k, t + k))
                for k in range(8): a.e("v_add_f32 v%d, 2.0, v%d" % (t + 8 + k, t + k))
                for k in range(8): a.e("v_fma_f32 v%d, v%d, v%d, 2.0" % (t + k, t + k, t + 8 + k))
                for k in range(8): a.e("v_rcp_f32 v%d, v%d" % (t + k, t + k))
                for k in range(8): a.e("v_fma_f32 v%d, v%d, -2.0, 1.0" % (t + k, t + k))
                for k in range(8): a.e("v_mul_f32 v%d, v%d, v%d" % (t + k, t + k, Aa + k))
            for k in range(4): a.e("v_cvt_pk_bf16_f32 v%d, v%d, v%d" % (q + k, t + 2 * k, t + 2 * k + 1))
            a.e("s_nop 1")
            a.e("v_permlane16_swap_b32 v%d, v%d" % (q, q + 2))
            a.e("v_permlane16_swap_b32 v%d, v%d" % (q + 1, q + 3))
            a.vm("buffer_store_dwordx4 v[%d:%d], v2, s[20:23], s%d offen offset:%d sc1" % (q, q + 3, (56 if j < 4 else 58) + pair, (j % 4) * 1024))

NHR = 20; NWU = 8
BH = 32; BA = 144; BAC = 168; AAC = 200
POLL_U = 55; OBURST = 4
BSW = None
def gen_role_b(a, name):
    a.e("s_setprio %d" % (BPRO if BPRO is not None else PRIO["b1"]))
    for e in EXP:
        if e.startswith("bdelay"):
            for k in range(int(e[6:])): a.e("s_sleep 32")
    b1_setup(a)
    a.e("s_waitcnt lgkmcnt(0)")
    base(a, 4, X, None, 2048 * 2048)
    if LAT_B1:
        lat_r(a, 59, LATN)
        lat_base(a, 4, X, 0, 59, LATN, LATC * 128)
    if ROT_B1:
        a.e("s_add_u32 s91, s%d, s%d" % (SMT, SNT)); a.e("s_and_b32 s91, s91, 3"); a.e("s_mul_i32 s91, s91, %d" % ROT_B1)
        a.e("s_lshl_b32 s57, s91, 6")
        a.e("s_mul_i32 s56, s91, %d" % (32 * 7168))
        a.e("s_add_u32 s4, s%d, s57" % X); a.e("s_addc_u32 s5, s%d, 0" % (X + 1))
    xid0 = {}
    b1_x0(a, xid0)
    b1_setup_w(a)
    a.e("s_mul_i32 s94, s%d, 448" % SNT)
    a.e("s_add_u32 s92, s%d, s94" % W1); a.e("s_addc_u32 s93, s%d, 0" % (W1 + 1))
    srd(a, 8, 92, 93, 1024 * 7168)
    if LAT_B1:
        a.e("s_mov_b32 s12, s92"); a.e("s_mov_b32 s13, s93")
        lat_base(a, 8, 12, 0, 59, LATN, 2 * LATC * 32 * 7168)
    if ROT_B1:
        a.e("s_mov_b32 s12, s92"); a.e("s_mov_b32 s13, s93")
        a.e("s_add_u32 s8, s12, s56"); a.e("s_addc_u32 s9, s13, 0")
    a.e("s_mul_i32 s91, s%d, %d" % (SW, 8 * 7168))
    for i in range(4): a.e("s_add_u32 s%d, s91, %d" % (48 + i, i * (2 * 7168 - 1024)))
    NG = 288; NU = 72; GB = 224; UB = 56
    uid = {}; hid = {}
    st = dict(nu=0)
    def wdma(u):
        if "nobw" in EXP and 8 <= u < UB:
            uid[u] = a.vm_n - 1
            return
        sb = 16 if u < UB else 40
        a.set_m0(35, (u % NWU) * 8192)
        a.vm("buffer_load_dwordx4 v10, s[%d:%d], s33 offen lds" % (sb, sb + 3))
        uid[u] = a.vm("buffer_load_dwordx4 v10, s[%d:%d], s32 offen offset:1024 lds" % (sb, sb + 3))
        if LAT_B and (u + 1) % LBC == 0:
            if u + 1 < UB: lat_base(a, 16, 12, (u + 1) // LBC, 36, LBN, LBC * 64 * 2048)
            elif UB < u + 1 < NU: lat_base(a, 40, 14, (u + 1 - UB) // LBC, 36, LBN, LBC * 64 * 2048)
        else: add64(a, sb, 64 * 2048)
    def after_loop():
        a.e("v_lshrrev_b32 v3, 3, v1"); a.e("v_bfe_u32 v4, v1, 4, 1"); a.e("v_lshlrev_b32 v4, 2, v4"); a.e("v_and_b32 v5, 7, v1")
        a.e("v_xor_b32 v4, v4, v5"); a.e("v_lshlrev_b32 v4, 4, v4"); a.e("v_lshl_add_u32 v10, v3, 11, v4")
        a.e("s_lshl_b32 s33, s%d, 15" % SW); a.e("s_add_u32 s32, s33, %d" % (8 * 2048 - 1024))
        a.e("s_lshl_b32 s35, s%d, 11" % SW)
        a.e("s_lshl_b32 s34, s%d, 7" % SNT)
        base(a, 16, W2, "s34", 3584 * 2048)
        base(a, 40, WO, "s34", 1024 * 2048)
        if LAT_B:
            lat_r(a, 36, LBN)
            a.e("s_mov_b32 s12, s16"); a.e("s_mov_b32 s13, s17"); a.e("s_mov_b32 s14, s40"); a.e("s_mov_b32 s15, s41")
            lat_base(a, 16, 12, 0, 36, LBN, LBC * 64 * 2048)
            lat_base(a, 40, 14, 0, 36, LBN, LBC * 64 * 2048)
        a.cur_m0 = None
        for u in range(4): wdma(u)
        st["nu"] = 4
    gen_b1(a, name + "_b1", after_loop, xid0)
    if "b1only" in EXP:
        a.e("s_waitcnt vmcnt(0)")
        a.stamp_flush(WS, WS + 1, WS_PROF, SW, 4)
        a.e("s_endpgm")
        return
    if PRIO["mish"] != PRIO["b1"]: a.e("s_setprio %d" % PRIO["mish"])
    b1_epilogue(a)
    for u in range(4, NWU - 1): wdma(u)
    st["nu"] = NWU - 1
    a.e("s_waitcnt vmcnt(0)"); a.vm_done = a.vm_n
    a.e("s_barrier")
    a.e("s_cmp_lg_u32 s%d, 0" % SW); a.e("s_cbranch_scc1 %s_hw" % name)
    check_cleared(a, name + "_clrb")
    a.e("s_lshl_b32 s28, s%d, 8" % SMT); a.e("s_add_u32 s29, s28, %d" % F_H)
    a.e("s_lshl_b32 s91, s%d, 2" % SNT); a.e("s_add_u32 s28, s29, s91")
    set_flag(a, 28, nrep=1)
    a.stamp(3)
    if "nohwait" not in EXP: wait_flags(a, name + "_hp", 29, 15)
    a.label("%s_hw" % name)
    a.e("s_lshl_b32 s90, s%d, 2" % SMT); a.e("s_add_u32 s56, s90, s%d" % SW)
    a.e("s_mul_i32 s31, s56, %d" % (224 * 1024))
    a.e("s_lshl_b32 s38, s56, 16")
    if LAT_B:
        a.e("s_mov_b32 s57, s31"); a.e("s_mov_b32 s58, s38")
        lat_off(a, 31, 57, 0, 36, LBN, LBC * 4096)
        lat_off(a, 38, 58, 0, 36, LBN, LBC * 4096)
    base(a, 8, WS, "0x%x" % WS_H, WS_H_BYTES)
    base(a, 4, WS, "0x%x" % WS_O, 4 << 20)
    base(a, 20, WS, "0x%x" % WS_G, 256 * 128)
    base(a, 24, OUT, None, 2048 * 2048)
    a.e("v_lshrrev_b32 v3, 5, v1"); a.e("v_bfe_u32 v4, v1, 2, 2"); a.e("v_bfe_u32 v5, v1, 4, 1"); a.e("v_and_b32 v6, 3, v1")
    a.e("v_lshrrev_b32 v7, 1, v4"); a.e("v_lshlrev_b32 v7, 6, v7"); a.e("v_lshl_add_u32 v7, v5, 5, v7"); a.e("v_lshl_add_u32 v7, v6, 3, v7")
    a.e("v_lshl_add_u32 v8, v3, 3, v4"); a.e("v_lshl_add_u32 v12, v8, 7, v7"); a.e("v_xor_b32 v13, 64, v12")
    a.e("v_lshl_add_u32 v8, v3, 2, v4"); a.e("v_lshl_add_u32 v14, v8, 7, v7"); a.e("v_xor_b32 v15, 64, v14")
    a.e("v_and_b32 v4, 31, v1"); a.e("s_lshl_b32 s91, s56, 5"); a.e("v_add_u32 v4, s91, v4")
    a.e("v_lshrrev_b32 v5, 3, v4"); a.e("v_and_b32 v6, 7, v4"); a.e("v_lshlrev_b32 v6, 2, v6"); a.e("v_lshl_add_u32 v16, v5, 7, v6")
    a.e("v_lshlrev_b32 v17, 11, v4"); a.e("v_lshl_add_u32 v17, v3, 4, v17")
    a.e("s_lshl_b32 s37, s%d, 8" % SMT); a.e("s_add_u32 s37, s37, %d" % F_O)
    a.e("s_barrier")
    a.stamp(4)
    a.e("s_setprio %d" % PRIO["b"])
    def hload(g):
        r = BH + 4 * (g % NHR)
        if "nohload" in EXP and 16 <= g < GB:
            hid[g] = a.vm_n - 1
            return
        if g < GB:
            hid[g] = a.vm("buffer_load_dwordx4 v[%d:%d], v2, s[8:11], s31 offen offset:%d sc1" % (r, r + 3, (g % 4) * 1024))
            if g % 4 == 3:
                if LAT_B and (g + 1) % (4 * LBC) == 0:
                    if g + 1 < GB: lat_off(a, 31, 57, (g + 1) // (4 * LBC), 36, LBN, LBC * 4096)
                else: a.e("s_add_u32 s31, s31, 4096")
        else:
            hid[g] = a.vm("buffer_load_dwordx4 v[%d:%d], v2, s[4:7], s38 offen offset:%d sc1" % (r, r + 3, (g % 4) * 1024))
            if g % 4 == 3:
                if LAT_B and (g + 1) % (4 * LBC) == 0:
                    if g + 1 < NG: lat_off(a, 38, 58, (g + 1 - GB) // (4 * LBC), 36, LBN, LBC * 4096)
                else: a.e("s_add_u32 s38, s38, 4096")
    dbg_mark(a, name + "_m3", 7)
    for g in range(8): hload(g)
    nh = 8
    fr = {}
    def reads(g):
        u, kk = g // 4, g % 4
        so = (u % NWU) * 8192 + kk * 2048
        f = g % 3
        va, d = (12, 512) if g < GB else (14, 1024)
        for ng in range(2):
            a.ds("ds_read_b64_tr_b16 v[%d:%d], v%d offset:%d" % (BA + 8 * f + 4 * ng, BA + 8 * f + 4 * ng + 1, va + ng, so))
            fr[g] = a.ds("ds_read_b64_tr_b16 v[%d:%d], v%d offset:%d" % (BA + 8 * f + 4 * ng + 2, BA + 8 * f + 4 * ng + 3, va + ng, so + d))
    reads(0); reads(1)
    polled = False
    nu = st["nu"]
    for g in range(NG):
        u, kk = g // 4, g % 4
        f = g % 3
        if kk == 2 and u + 1 < NU:
            assert u + 1 in uid
            if u == POLL_U:
                a.e("s_cmp_lg_u32 s%d, 0" % SW)
                a.e("s_cbranch_scc1 %s_polled" % name)
                if "noowait" not in EXP: wait_flags(a, name + "_op", 37, 15)
                a.label("%s_polled" % name)
                polled = True
            a.wait(vm=uid[u + 1]); a.e("s_barrier")
            if u == POLL_U:
                gid = a.vm("buffer_load_dword v22, v16, s[20:23], 0 offen sc1")
                a.stamp(5)
        if BSW and g == BSW[0]: a.e("s_setprio %d" % BSW[1])
        if g + 2 < NG: reads(g + 2)
        assert g in hid
        a.wait(vm=hid[g], lg=fr[g])
        hb = BH + 4 * (g % NHR)
        acc = BAC if g < GB else AAC
        for ng in range(2):
            M32(a, acc + 16 * ng, BA + 8 * f + 4 * ng, hb, "0" if g in (0, GB) else acc + 16 * ng)
        cnt = 0
        while nh < min(g + 1 + NHR, NG) and cnt < (OBURST if polled else 2) and (nh < GB or polled):
            hload(nh); nh += 1; cnt += 1
        if nu < NU and (nu < NWU or (u, kk) >= (nu - NWU + 1, 2)):
            wdma(nu); nu += 1
    a.stamp(6)
    a.wait(vm=gid)
    a.e("v_sub_f32 v23, 1.0, v22")
    for k in range(32): a.e("v_mul_f32 v%d, v%d, v23" % (BAC + k, BAC + k))
    for k in range(32): a.e("v_fmac_f32 v%d, v%d, v22" % (BAC + k, AAC + k))
    for k in range(16): a.e("v_cvt_pk_bf16_f32 v%d, v%d, v%d" % (BH + k, BAC + 2 * k, BAC + 2 * k + 1))
    a.e("s_nop 1")
    for q in range(4):
        b = BH + 4 * q
        a.e("v_permlane32_swap_b32 v%d, v%d" % (b, b + 2))
        a.e("v_permlane32_swap_b32 v%d, v%d" % (b + 1, b + 3))
    for q in range(4):
        b = BH + 4 * q
        a.vm("buffer_store_dwordx4 v[%d:%d], v17, s[24:27], s34 offen offset:%d%s" % (b, b + 3, 32 * q, OUT_FLAGS))
    if a.prof or DBGT: a.e("s_waitcnt vmcnt(0)")
    dbg_mark(a, name + "_m4", 8)
    a.stamp(7)
    a.stamp_flush(WS, WS + 1, WS_PROF, SW, 4)
    a.e("s_endpgm")

def gen_kernel(name, prof=False):
    a = Asm(); a.prof = prof; a.PROF_V = 254
    a.raw(kernel_header(name))
    a.e("s_cmp_ge_u32 s2, 512")
    a.e("s_cbranch_scc1 %s_exit" % name)
    if prof: a.e("v_mov_b32 v254, 0")
    a.stamp(0)
    a.e("s_load_dwordx8 s[60:67], s[0:1], 0")
    a.e("s_load_dwordx8 s[72:79], s[0:1], 48")
    a.e("s_load_dwordx2 s[68:69], s[0:1], 32")
    a.e("s_load_dwordx4 s[80:83], s[0:1], 80")
    a.e("s_load_dwordx2 s[84:85], s[0:1], 96")
    a.e("v_and_b32 v1, 63, v0")
    a.e("v_lshrrev_b32 v3, 6, v0")
    a.e("v_lshlrev_b32 v2, 4, v1")
    a.e("v_readfirstlane_b32 s%d, v3" % SW)
    a.e("s_and_b32 s%d, s2, 255" % SID)
    a.e("s_and_b32 s90, s%d, 7" % SID); a.e("s_lshr_b32 s91, s%d, 3" % SID)
    a.e("s_lshr_b32 s92, s90, 1"); a.e("s_lshl_b32 s92, s92, 2"); a.e("s_lshr_b32 s93, s91, 3"); a.e("s_add_u32 s%d, s92, s93" % SMT)
    a.e("s_and_b32 s92, s90, 1"); a.e("s_lshl_b32 s92, s92, 3"); a.e("s_and_b32 s93, s91, 7"); a.e("s_add_u32 s%d, s92, s93" % SNT)
    if DBGT:
        a.e("s_waitcnt lgkmcnt(0)")
        dbg_mark(a, name + "_m0", 4, neg=True)
    a.e("s_cmp_ge_u32 s2, 256")
    a.e("s_cbranch_scc1 %s_roleb" % name)
    if "noa" in EXP: a.e("s_endpgm")
    else: gen_role_a(a, name)
    a.label("%s_roleb" % name)
    a.nostamp = False
    a.reset_counts()
    gen_role_b(a, name)
    a.label("%s_exit" % name)
    a.e("s_endpgm")
    return a.text()
```

```python
import sys
sys.path.insert(0, "work")
from build import build
import s1
prof = "prof" in sys.argv
for x in sys.argv:
    if x.startswith("prio="):
        v = x[5:]; s1.PRIO = dict(a1=int(v[0]), attn=int(v[1]), b1=int(v[2]), b=int(v[3]), mish=int(v[4]) if len(v) > 4 else int(v[2]))
    if x == "nopf1": s1.PF_W1 = False
    if x == "pf1": s1.PF_W1 = True
    if x == "latb": s1.LAT_B1 = True
    if x == "smf": s1.A.SMF = True
    if x.startswith("skip="): s1.A.SKIP = set(x[5:].split("+"))
    if x == "xs3": s1.XS3 = True
    if x == "mish2": s1.MISH2 = True
    if x.startswith("bb="): s1.BB = int(x[3:])
    if x.startswith("outst="): s1.OUT_FLAGS = " " + x[6:].replace("+", " ")
    if x.startswith("asw="): s1.ASW = tuple(int(v) for v in x[4:].split(","))
    if x.startswith("b1sw="): s1.B1SW = tuple(int(v) for v in x[5:].split(","))
    if x.startswith("lat="): s1.LATN, s1.LATC = (int(v) for v in x[4:].split(","))
    if x.startswith("lb="): s1.LBN, s1.LBC = (int(v) for v in x[3:].split(","))
    if x == "nolat": s1.LAT_B1 = s1.LAT_A1 = s1.LAT_B = False
    if x == "dbgt": s1.DBGT = True
    if x == "lata": s1.LAT_A1 = True
    if x == "latbb": s1.LAT_B = True
    if x == "nopk": s1.PKMISH = False
    if x.startswith("bpro="): s1.BPRO = int(x[5:])
    if x.startswith("bsw="): s1.BSW = tuple(int(v) for v in x[4:].split(","))
    if x.startswith("pfx="): s1.PF_BX = int(x[4:])
    if x.startswith("kvrep="): s1.KVREP = int(x[6:])
    if x.startswith("sleep="): s1.SLEEP = int(x[6:])
    if x == "burst": s1.BURST = True
    if x.startswith("rotb="): s1.ROT_B1 = int(x[5:])
    if x.startswith("exp="): s1.EXP = set(x[4:].split("+"))
    if x.startswith("pfb="): s1.PF_B1 = int(x[4:])
    if x.startswith("pfa="): s1.PF_A1 = int(x[4:])
    if x.startswith("diag="): s1.DIAG = x[5:]
    if x == "nopf2": s1.PF_W2 = False
    if x.startswith("pollu="): s1.POLL_U = int(x[6:])
    if x.startswith("nhr="): s1.NHR = int(x[4:])
NAME = "gated_mix__grouped_kv_mqa__dense_activation_mish__prompt_kernel"
ks = [dict(name=NAME, text=s1.gen_kernel(NAME, prof=prof), grid=512, block=256, lds=81920, nfv=256, accum=256)]
open(sys.argv[1], "w").write(build(ks, plain=("plain" in sys.argv)))
```

```python
from asmlib import *
import struct
def f2u(x): return struct.unpack("<I", struct.pack("<f", x))[0]
import attn64 as A
from attn64 import VQ, VK, VV, VS, VP, VO, VL, VSEL, VNM, VT

WS_H = 4 << 20; WS_H_BYTES = 64 * 224 * 1024
WS_KV = 20 << 20; WS_O = 21 << 20; WS_G = 25 << 20; WS_F = 27 << 20; WS_PROF = 48 << 20
F_KV = 0; F_H = 8192; F_O = 12288; F_BYTES = 16384
KVREP = 32; SLEEP = 6
QSCALE = 0.25503486322159136
LOG2E = 1.4426950408889634
X, WQ, WK, WV, WO, W1, B1P, W2, GW, OUT, DBG, WS = 60, 62, 64, 66, 68, 72, 74, 76, 78, 80, 82, 84
SW, SMT, SNT, SID = 86, 87, 88, 89
FLAG = 65536; GATE = 180
PRIO = dict(a1=2, attn=0, b1=2, b=0, mish=3)
SPIN = 0x40000
PF_W1 = False
PF_B1 = 0
PF_BX = 0
PF_A1 = 0
DIAG = None
OUT_FLAGS = ''
ASW = None
B1SW = None
LATN = 4; LATC = 2
LBN = 4; LBC = 2
DBGT = False
LAT_A1 = True
LAT_B = True
LAT_B1 = True
PKMISH = True
BPRO = None
BURST = False
ROT_B1 = 0
EXP = set()
PF_W2 = True

def M32(a, d, x, y, c): A.M32(a.e, d, x, y, c)
def M16(a, d, x, y, c): A.M16(a.e, d, x, y, c)
def base(a, d, ptr, add, nbytes):
    if add is None:
        srd(a, d, ptr, ptr + 1, nbytes)
    else:
        a.e("s_add_u32 s92, s%d, %s" % (ptr, add)); a.e("s_addc_u32 s93, s%d, 0" % (ptr + 1))
        srd(a, d, 92, 93, nbytes)

def rot_adv(a, sb, blo, sk, step, total):
    a.e("s_add_u32 s%d, s%d, %d" % (sk, sk, step))
    a.e("s_cmp_eq_u32 s%d, %d" % (sk, total))
    a.e("s_cselect_b32 s%d, 0, s%d" % (sk, sk))
    a.e("s_add_u32 s%d, s%d, s%d" % (sb, blo, sk)); a.e("s_addc_u32 s%d, s%d, 0" % (sb + 1, blo + 1))

def burst(a, va=98, vd=99):
    a.e("s_lshl_b32 s96, s2, 2"); a.e("s_add_u32 s96, s96, s%d" % SW)
    a.e("v_lshlrev_b32 v3, 7, v1"); a.e("v_mov_b32 v4, 0x40000000")
    for ptr, nbytes, nl in ((W1, 1024 * 7168, 28), (X, 2048 * 2048, 16), (WQ, 1024 * 2048, 8)):
        base(a, 40, ptr, None, nbytes)
        a.e("s_mul_i32 s95, s96, %d" % (nl * 128))
        a.e("v_cmp_le_u32 vcc, %d, v1" % nl); a.e("s_nop 1")
        a.e("v_cndmask_b32 v%d, v3, v4, vcc" % va)
        a.e("buffer_load_dword v%d, v%d, s[40:43], s95 offen" % (vd, va))

def lat_r(a, reg, n):
    a.e("s_mul_i32 s94, s%d, %d" % (SMT, max(1, n // 4))); a.e("s_add_u32 s%d, s94, s%d" % (reg, SNT)); a.e("s_and_b32 s%d, s%d, %d" % (reg, reg, n - 1))

def lat_base(a, sb, blo, q, rreg, nslots, step):
    a.e("s_add_u32 s94, s%d, %d" % (rreg, q % nslots)); a.e("s_and_b32 s94, s94, %d" % (nslots - 1))
    if q // nslots: a.e("s_add_u32 s94, s94, %d" % (nslots * (q // nslots)))
    a.e("s_mul_i32 s94, s94, %d" % step)
    a.e("s_add_u32 s%d, s%d, s94" % (sb, blo)); a.e("s_addc_u32 s%d, s%d, 0" % (sb + 1, blo + 1))

def lat_off(a, sd, sbase, q, rreg, nslots, step):
    a.e("s_add_u32 s94, s%d, %d" % (rreg, q % nslots)); a.e("s_and_b32 s94, s94, %d" % (nslots - 1))
    if q // nslots: a.e("s_add_u32 s94, s94, %d" % (nslots * (q // nslots)))
    a.e("s_mul_i32 s94, s94, %d" % step)
    a.e("s_add_u32 s%d, s%d, s94" % (sd, sbase))

def dbg_mark(a, tag, word, neg=False):
    if not DBGT: return
    a.e("s_cmp_lg_u32 s%d, 0" % SW); a.e("s_cbranch_scc1 %s" % tag)
    a.e("s_memrealtime s[98:99]"); a.e("s_waitcnt lgkmcnt(0)"); a.lg_done = a.lg_n
    if neg: a.e("s_not_b32 s98, s98")
    a.e("s_mov_b32 s52, s%d" % DBG); a.e("s_mov_b32 s53, s%d" % (DBG + 1)); a.e("s_mov_b32 s54, 256"); a.e("s_mov_b32 s55, 0x00020000")
    a.e("v_mov_b32 v4, s98"); a.e("v_mov_b32 v5, %d" % (word * 4))
    a.e("v_cmp_eq_u32 vcc, 0, v1"); a.e("s_nop 1"); a.e("s_and_saveexec_b64 s[90:91], vcc")
    a.e("buffer_atomic_umax v4, v5, s[52:55], 0 offen")
    a.e("s_mov_b64 exec, s[90:91]")
    a.label(tag)

def poll(a, tag, srd4, voff, soff, nlanes_mask_exec=None):
    a.e("s_mov_b32 s96, 0x%x" % SPIN)
    a.label(tag)
    a.e("buffer_load_dword v5, %s, s[%d:%d], %s offen sc1" % (voff, srd4, srd4 + 3, soff))
    a.e("s_waitcnt vmcnt(0)")
    a.e("v_cmp_eq_u32 vcc, 1, v5")
    a.e("s_nop 3")
    a.e("s_cmp_eq_u64 vcc, exec")
    a.e("s_cbranch_scc1 %s_ok" % tag)
    a.e("s_sleep %d" % SLEEP)
    a.e("s_sub_u32 s96, s96, 1")
    a.e("s_cmp_lg_u32 s96, 0")
    a.e("s_cbranch_scc1 %s" % tag)
    a.label("%s_ok" % tag)

CLR = 253
def early_cleared(a, tag):
    a.e("s_cmp_lg_u32 s%d, 0" % SW); a.e("s_cbranch_scc1 %s" % tag)
    base(a, 52, DBG, None, 256)
    a.e("s_and_b32 s97, s2, 1"); a.e("s_lshl_b32 s97, s97, 7")
    a.e("v_mov_b32 v4, s97")
    a.e("buffer_load_dword v%d, v4, s[52:55], 0 offen sc1" % CLR)
    a.label(tag)

def check_cleared(a, tag):
    a.e("v_readfirstlane_b32 s97, v%d" % CLR)
    a.e("s_nop 3")
    a.e("s_cmp_eq_u32 s97, 1"); a.e("s_cbranch_scc1 %s_ok" % tag)
    base(a, 52, DBG, None, 256)
    a.e("s_and_b32 s97, s2, 1"); a.e("s_lshl_b32 s97, s97, 7")
    a.e("v_mov_b32 v4, s97")
    poll(a, tag, 52, "v4", "0")

def set_flag(a, soff_reg, nrep=1):
    base(a, 52, WS, "0x%x" % WS_F, F_BYTES)
    a.e("v_lshlrev_b32 v6, 8, v1"); a.e("v_add_u32 v6, s%d, v6" % soff_reg)
    a.e("v_mov_b32 v4, 1")
    a.e("v_cmp_gt_u32 vcc, %d, v1" % nrep)
    a.e("s_nop 1")
    a.e("s_and_saveexec_b64 s[90:91], vcc")
    a.e("buffer_store_dword v4, v6, s[52:55], 0 offen sc1")
    a.e("s_mov_b64 exec, s[90:91]")

def wait_flags(a, tag, soff_reg, mask):
    base(a, 52, WS, "0x%x" % WS_F, F_BYTES)
    a.e("v_and_b32 v4, %d, v1" % mask); a.e("v_lshlrev_b32 v4, 2, v4")
    poll(a, tag, 52, "v4", "s%d" % soff_reg)

AX = 32
AA = 64
AQ = 100
A_XD0, A_XD1, A_WD, A_KD = 204, 205, 206, 207
A_XR, A_WR, A_KR = 208, 212, 214
LA_W, LA_KV, LA_X = 0, 32768, 49152

def a1_setup(a):
    a.e("v_lshrrev_b32 v3, 3, v1")
    a.e("v_lshrrev_b32 v4, 4, v1")
    a.e("v_and_b32 v5, 7, v1")
    a.e("v_xor_b32 v4, v4, v5")
    a.e("v_lshlrev_b32 v4, 4, v4")
    a.e("v_lshl_add_u32 v%d, v3, 11, v4" % A_XD0)
    a.e("v_xor_b32 v%d, 64, v%d" % (A_XD1, A_XD0))
    a.e("v_bfe_u32 v4, v1, 4, 1"); a.e("v_lshlrev_b32 v4, 2, v4"); a.e("v_xor_b32 v4, v4, v5"); a.e("v_lshlrev_b32 v4, 4, v4")
    a.e("v_lshl_add_u32 v%d, v3, 11, v4" % A_WD)
    a.e("v_lshrrev_b32 v3, 2, v1"); a.e("v_and_b32 v4, 3, v1"); a.e("v_lshlrev_b32 v4, 4, v4")
    a.e("v_lshl_add_u32 v%d, v3, 6, v4" % A_KD)
    a.e("s_lshl_b32 s91, s%d, 7" % SMT); a.e("s_lshl_b32 s92, s%d, 5" % SW); a.e("s_add_u32 s91, s91, s92"); a.e("s_lshl_b32 s91, s91, 11")
    for q in range(4): a.e("s_add_u32 s%d, s91, %d" % (28 + q, q * (8 * 2048 - 1024)))
    a.e("s_lshl_b32 s33, s%d, 15" % SW); a.e("s_add_u32 s32, s33, %d" % (8 * 2048 - 1024))
    a.e("s_lshl_b32 s34, s%d, 10" % SW)
    a.e("s_lshl_b32 s35, s%d, 11" % SW)
    a.e("s_lshl_b32 s36, s%d, 10" % SW); a.e("s_add_u32 s36, s36, %d" % LA_KV)
    a.e("s_lshl_b32 s37, s%d, 13" % SW); a.e("s_add_u32 s37, s37, %d" % LA_X)

def a1_reads_setup(a):
    a.e("v_and_b32 v3, 31, v1"); a.e("v_lshrrev_b32 v4, 5, v1")
    a.e("v_bfe_u32 v5, v3, 1, 3"); a.e("v_xor_b32 v5, v5, v4"); a.e("v_lshlrev_b32 v5, 4, v5")
    a.e("v_lshl_add_u32 v5, v3, 7, v5"); a.e("v_add_u32 v5, s37, v5")
    for kk in range(4): a.e("v_xor_b32 v%d, %d, v5" % (A_XR + kk, kk * 32))
    a.e("v_bfe_u32 v6, v1, 2, 2"); a.e("v_bfe_u32 v5, v1, 4, 1"); a.e("v_and_b32 v7, 3, v1")
    a.e("v_lshlrev_b32 v3, 5, v5"); a.e("v_lshl_add_u32 v3, v7, 3, v3")
    a.e("v_lshl_add_u32 v4, v4, 3, v6")
    a.e("v_lshrrev_b32 v5, 1, v6"); a.e("v_lshl_add_u32 v5, v5, 6, v3")
    a.e("v_lshl_add_u32 v%d, v4, 7, v5" % A_WR); a.e("v_xor_b32 v%d, 64, v%d" % (A_WR + 1, A_WR))
    a.e("v_lshl_add_u32 v%d, v4, 6, v3" % A_KR); a.e("v_add_u32 v%d, %d, v%d" % (A_KR, LA_KV, A_KR))

def burst_a(a):
    burst(a, 220, 221)

def gen_a1(a, name, kind):
    NU = 16
    uid = {}; xid = {}
    def wdma1(u, p):
        if p == 0:
            a.set_m0(35, LA_W + (u % 4) * 8192)
            uid[u] = a.vm("buffer_load_dwordx4 v%d, s[8:11], s33 offen lds" % A_WD)
        elif p == 1:
            a.set_m0(35, LA_W + (u % 4) * 8192)
            uid[u] = a.vm("buffer_load_dwordx4 v%d, s[8:11], s32 offen offset:1024 lds" % A_WD)
            if LAT_A1 and (u + 1) % LATC == 0:
                if u + 1 < NU: lat_base(a, 8, 48, (u + 1) // LATC, 59, LATN, LATC * 64 * 2048)
            else: add64(a, 8, 64 * 2048)
        else:
            a.set_m0(36, (u % 4) * 4096)
            uid[u] = a.vm("buffer_load_dwordx4 v%d, s[12:15], s34 offen lds" % A_KD)
            if LAT_A1 and (u + 1) % LATC == 0:
                if u + 1 < NU: lat_base(a, 12, 50, (u + 1) // LATC, 59, LATN, LATC * 64 * 64)
            else: add64(a, 12, 64 * 64)
    NWP = 3 if kind else 2
    def wdma(u):
        for p in range(NWP): wdma1(u, p)
    def xdma1(u, q):
        a.set_m0(37, (u % 2) * 4096)
        xid[u] = a.vm("buffer_load_dwordx4 v%d, s[4:7], s%d offen offset:%d lds" % (A_XD0 + (q & 1), 28 + q, q * 1024))
        if q == 3:
            if LAT_A1 and (u + 1) % LATC == 0:
                if u + 1 < NU: lat_base(a, 4, X, (u + 1) // LATC, 59, LATN, LATC * 128)
            else: add64(a, 4, 128)
    def xdma(u):
        for q in range(4): xdma1(u, q)
    wdma(0); xdma(0); xdma(1); wdma(1)
    a1_reads_setup(a)
    if PF_W1:
        a.e("s_mul_i32 s91, s%d, 448" % SNT); a.e("s_and_b32 s91, s91, 0xffffff80")
        base(a, 16, W1, "s91", 1024 * 7168)
        a.e("s_and_b32 s91, s%d, 3" % SMT); a.e("s_lshl_b32 s91, s91, 4")
        a.e("v_lshrrev_b32 v3, 2, v1"); a.e("v_add_u32 v3, s91, v3"); a.e("s_movk_i32 s91, 7168"); a.e("v_mul_lo_u32 v3, v3, s91")
        a.e("v_and_b32 v4, 3, v1"); a.e("v_lshl_add_u32 v215, v4, 7, v3")
        a.e("s_mov_b32 s38, %d" % (2 * 64 * 7168))
    def pfa(uu, wave):
        lab = "%s_pa%d" % (name, uu)
        a.e("s_cmp_lg_u32 s%d, %d" % (SW, wave)); a.e("s_cbranch_scc1 %s" % lab)
        a.e("buffer_load_dword v217, v218, s[20:23], s39 offen")
        a.e("buffer_load_dword v217, v219, s[24:27], s38 offen")
        a.label(lab)
        a.e("s_add_u32 s39, s39, %d" % (64 * 2048)); a.e("s_add_u32 s38, s38, 128")
    if PF_A1:
        a.e("s_lshl_b32 s91, s%d, 7" % SNT)
        base(a, 20, WQ, "s91", 1024 * 2048)
        base(a, 24, X, None, 2048 * 2048)
        a.e("v_mov_b32 v4, 0x40000000"); a.e("v_cmp_le_u32 vcc, 16, v1")
        a.e("s_and_b32 s91, s%d, 3" % SMT); a.e("s_lshl_b32 s91, s91, 4"); a.e("v_add_u32 v3, s91, v1"); a.e("v_lshlrev_b32 v3, 11, v3")
        a.e("v_cndmask_b32 v218, v3, v4, vcc")
        a.e("s_and_b32 s91, s%d, 7" % SNT); a.e("s_lshl_b32 s91, s91, 4"); a.e("s_lshl_b32 s94, s%d, 7" % SMT); a.e("s_add_u32 s91, s91, s94")
        a.e("v_add_u32 v3, s91, v1"); a.e("v_lshlrev_b32 v3, 11, v3")
        a.e("v_cndmask_b32 v219, v3, v4, vcc")
        a.e("s_mov_b32 s39, %d" % (3 * 64 * 2048)); a.e("s_mov_b32 s38, %d" % (3 * 128))
    a.wait(vm=max(uid[0], xid[0])); a.e("s_barrier")
    a.stamp(1)
    wdma(2)
    if BURST: burst_a(a)
    if PF_A1:
        for uu in range(3, PF_A1): pfa(uu, uu & 3)
    a.e("s_cmp_lg_u32 s2, 0"); a.e("s_cbranch_scc1 %s_nopub" % name)
    a.e("s_cmp_lg_u32 s%d, 0" % SW); a.e("s_cbranch_scc1 %s_nopub" % name)
    base(a, 52, DBG, None, 256)
    a.e("v_lshlrev_b32 v6, 7, v1"); a.e("v_mov_b32 v4, 1")
    a.e("v_cmp_gt_u32 vcc, 2, v1"); a.e("s_nop 1")
    a.e("s_and_saveexec_b64 s[90:91], vcc")
    a.e("buffer_store_dword v4, v6, s[52:55], 0 offen sc1")
    a.e("s_mov_b64 exec, s[90:91]")
    a.label("%s_nopub" % name)
    xfr = {}; fr = {}
    def xread(u, kk):
        r = AX + 16 * (u % 2) + 4 * kk
        xfr[(u, kk)] = a.ds("ds_read_b128 v[%d:%d], v%d offset:%d" % (r, r + 3, A_XR + kk, (u % 2) * 4096))
    def reads(g):
        u, kk = g // 4, g % 4
        f = g % 3; b = AA + 12 * f
        so = LA_W + (u % 4) * 8192 + kk * 2048
        for ng in range(2):
            a.ds("ds_read_b64_tr_b16 v[%d:%d], v%d offset:%d" % (b + 4 * ng, b + 4 * ng + 1, A_WR + ng, so))
            fr[g] = a.ds("ds_read_b64_tr_b16 v[%d:%d], v%d offset:%d" % (b + 4 * ng + 2, b + 4 * ng + 3, A_WR + ng, so + 512))
        if kind:
            so = (u % 4) * 4096 + kk * 1024
            a.ds("ds_read_b64_tr_b16 v[%d:%d], v%d offset:%d" % (b + 8, b + 9, A_KR, so))
            fr[g] = a.ds("ds_read_b64_tr_b16 v[%d:%d], v%d offset:%d" % (b + 10, b + 11, A_KR, so + 256))
    for kk in range(4): xread(0, kk)
    reads(0); reads(1)
    pend = []
    for g in range(NU * 4):
        u, kk = g // 4, g % 4
        f = g % 3; b = AA + 12 * f
        if kk == 0 and u + 2 < NU and u >= 0 and (u + 2) not in xid:
            pass
        if ASW and kk == 0 and u == ASW[0]: a.e("s_setprio %d" % ASW[1])
        if kk == 2 and u + 1 < NU:
            a.wait(vm=uid[u + 1]); a.e("s_barrier")
        if g + 2 < NU * 4: reads(g + 2)
        if kk >= 2 and u + 1 < NU:
            a.wait(vm=xid[u + 1])
            xread(u + 1, 2 * (kk - 2)); xread(u + 1, 2 * (kk - 2) + 1)
        a.wait(lg=max(fr[g], xfr[(u, kk)]))
        xb = AX + 16 * (u % 2) + 4 * kk
        def pop():
            if pend:
                f, i0, i1 = pend.pop(0); f(i0, i1)
        if kk == 0 and u + 2 < NU:
            a.wait(lg=xfr[(u, 3)])
            pend += [(xdma1, u + 2, q) for q in range(4)]
        if kk == 2 and u + 3 < NU:
            pend += [(wdma1, u + 3, p) for p in range(NWP)]
        M32(a, AQ, b, xb, "0" if g == 0 else AQ)
        pop()
        M32(a, AQ + 16, b + 4, xb, "0" if g == 0 else AQ + 16)
        pop()
        if kind == "K": M32(a, AQ + 32, b + 8, xb, "0" if g == 0 else AQ + 32)
        if kind == "V": M32(a, AQ + 32, xb, b + 8, "0" if g == 0 else AQ + 32)
        if kk == 3:
            while pend: pop()
        if kk == 1 and PF_W1 and u + 2 < NU:
            lab = "%s_pf%d" % (name, u)
            a.e("s_cmp_lg_u32 s%d, %d" % (SW, u & 3)); a.e("s_cbranch_scc1 %s" % lab)
            a.e("buffer_load_dword v216, v215, s[16:19], s38 offen")
            a.label(lab)
            a.e("s_add_u32 s38, s38, %d" % (64 * 7168))
        if kk == 2 and PF_A1 and u + PF_A1 < NU: pfa(u + PF_A1, u & 3)
        if kk == 3 and u == 9: early_cleared(a, name + "_ec")
    a.stamp(2)
    a.e("s_nop 15")
    for c in range(2):
        for k in range(8):
            r = AQ + 16 * c + 2 * k
            a.e("v_pk_mul_f32 v[%d:%d], v[%d:%d], s[44:45]" % (r, r + 1, r, r + 1))
        for k in range(8):
            r = AQ + 16 * c + 2 * k
            a.e("v_cvt_pk_bf16_f32 v%d, v%d, v%d" % (VQ[c] + k, r, r + 1))
    if kind:
        for k in range(8): a.e("v_cvt_pk_bf16_f32 v%d, v%d, v%d" % (AX + k, AQ + 32 + 2 * k, AQ + 33 + 2 * k))
        base(a, 8, WS, "0x%x" % WS_KV, 64 * 4096)
        a.e("s_lshl_b32 s91, s%d, 2" % SMT); a.e("s_add_u32 s91, s91, s%d" % SW); a.e("s_lshl_b32 s91, s91, 12")
        o = 0 if kind == "K" else 2048
        a.e("buffer_store_dwordx4 v[%d:%d], v2, s[8:11], s91 offen offset:%d sc1" % (AX, AX + 3, o))
        a.e("buffer_store_dwordx4 v[%d:%d], v2, s[8:11], s91 offen offset:%d sc1" % (AX + 4, AX + 7, o + 1024))
    a.e("s_waitcnt vmcnt(0) lgkmcnt(0)")
    if DIAG == "kv": a.stamp(3, force=True)
    a.e("s_barrier")
    a.reset_counts()

def koff(t): return ((t // 4) % 4) * 16384 + (t % 4) * 4096
def kv_dma(a, slot):
    a.e("s_add_u32 m0, s30, %d" % (slot * 16384))
    a.e("s_add_u32 s31, s31, 16384")
    for q in range(4):
        a.e("buffer_load_dwordx4 v2, s[8:11], s31 offen offset:%d sc1 lds" % (q * 1024))
def rowmax(a, c):
    S = VS[c]
    a.e("v_max3_f32 v4, v%d, v%d, v%d" % (S, S + 1, S + 2))
    for k in range(3, 15, 2): a.e("v_max3_f32 v4, v4, v%d, v%d" % (S + k, S + k + 1))
    a.e("v_max_f32 v4, v4, v%d" % (S + 15))
def set_negm(a, c, src):
    a.e("v_mov_b32 v5, v%d" % src); a.e("v_mov_b32 v6, v%d" % src)
    a.e("s_nop 1"); a.e("v_permlane32_swap_b32 v5, v6"); a.e("s_nop 1")
    a.e("v_max_f32 v5, v5, v6"); a.e("v_sub_f32 v5, 0, v5")
    for k in range(16): a.e("v_mov_b32 v%d, v5" % (VNM[c] + k))

def gen_gate(a):
    G = GATE
    a.e("v_mov_b32 v4, 0"); a.e("v_mov_b32 v5, 0"); a.e("s_nop 0")
    for k in range(8):
        a.e("v_dot2c_f32_bf16 v4, v%d, v%d" % (G + 8 + k, G + k))
        a.e("v_dot2c_f32_bf16 v5, v%d, v%d" % (G + 16 + k, G + k))
    a.e("s_nop 2")
    for sh in (1, 2, 4, 8):
        for r in (4, 5): a.e("v_add_f32_dpp v%d, v%d, v%d row_shr:%d row_mask:0xf bank_mask:0xf bound_ctrl:0" % (r, r, r, sh))
        a.e("s_nop 0")
    for r in (4, 5): a.e("v_add_f32_dpp v%d, v%d, v%d row_bcast:15 row_mask:0xa bank_mask:0xf" % (r, r, r))
    a.e("s_nop 0")
    for r in (4, 5): a.e("v_add_f32_dpp v%d, v%d, v%d row_bcast:31 row_mask:0xc bank_mask:0xf" % (r, r, r))
    a.e("s_nop 0")
    for r in (4, 5): a.e("v_mul_f32 v%d, 0x%x, v%d" % (r, f2u(-LOG2E), r))
    for r in (4, 5): a.e("v_exp_f32 v%d, v%d" % (r, r))
    a.e("s_nop 0")
    for r in (4, 5): a.e("v_add_f32 v%d, 1.0, v%d" % (r, r))
    for r in (4, 5): a.e("v_rcp_f32 v%d, v%d" % (r, r))
    base(a, 24, WS, "0x%x" % WS_G, 256 * 128)
    a.e("s_lshl_b32 s91, s%d, 4" % SMT); a.e("s_add_u32 s91, s91, s%d" % SNT); a.e("s_lshl_b32 s91, s91, 7")
    a.e("s_lshl_b32 s94, s%d, 3" % SW); a.e("s_add_u32 s91, s91, s94")
    a.e("v_mov_b32 v6, s91")
    a.e("v_cmp_eq_u32 vcc, 63, v1"); a.e("s_nop 1")
    a.e("s_and_saveexec_b64 s[90:91], vcc")
    a.e("buffer_store_dwordx2 v[4:5], v6, s[24:27], 0 offen sc1")
    a.e("s_mov_b64 exec, s[90:91]")

def gen_attn(a, name):
    a.e("s_cmp_lg_u32 s%d, 0" % SW); a.e("s_cbranch_scc1 %s_kvw" % name)
    check_cleared(a, name + "_clr")
    a.e("s_cmp_ge_u32 s%d, 2" % SNT); a.e("s_cbranch_scc1 %s_nokvsig" % name)
    a.e("s_lshl_b32 s28, s%d, 1" % SMT); a.e("s_add_u32 s28, s28, s%d" % SNT); a.e("s_lshl_b32 s28, s28, 2"); a.e("s_add_u32 s28, s28, %d" % F_KV)
    set_flag(a, 28, nrep=KVREP)
    a.label("%s_nokvsig" % name)
    if DIAG == "kv": a.stamp(4, force=True)
    a.e("s_and_b32 s28, s2, %d" % (KVREP - 1)); a.e("s_lshl_b32 s28, s28, 8"); a.e("s_add_u32 s28, s28, %d" % F_KV)
    if "nokvwait" not in EXP: wait_flags(a, name + "_kvp", 28, 31)
    if DIAG == "kv": a.stamp(5, force=True)
    a.label("%s_kvw" % name)
    a.e("s_barrier")
    a.e("s_setprio %d" % PRIO["attn"])
    a.e("s_lshl_b32 s38, s%d, 2" % SMT); a.e("s_add_u32 s38, s38, s%d" % SW); a.e("s_lshl_b32 s38, s38, 6")
    a.e("s_lshl_b32 s91, s%d, 2" % SNT); a.e("s_add_u32 s38, s38, s91"); a.e("s_lshl_b32 s38, s38, 10")
    a.e("s_lshl_b32 s30, s%d, 12" % SW)
    a.e("s_mov_b32 s39, 0")
    base(a, 8, WS, "0x%x" % WS_KV, 64 * 4096)
    base(a, 12, WS, "0x%x" % WS_O, 4 << 20)
    a.label("%s_pass" % name)
    a.e("s_sub_u32 s31, s30, 16384")
    kv_dma(a, 0)
    a.e("v_mov_b32 v4, 0x%x" % FLAG); a.e("v_mov_b32 v5, 0")
    a.e("ds_write_b32 v4, v5")
    a.e("v_bfe_u32 v4, v1, 2, 1"); a.e("v_bfe_u32 v5, v1, 4, 1")
    a.e("v_cmp_eq_u32 vcc, v4, v5")
    a.e("v_mov_b32 v6, 0x3f803f80"); a.e("v_mov_b32 v7, 0")
    for k in range(4): a.e("v_cndmask_b32 v%d, v7, v6, vcc" % (VSEL + k))
    for c in range(2):
        for k in range(16): a.e("v_mov_b32 v%d, 0" % (VO[c] + k))
        for k in range(4): a.e("v_mov_b32 v%d, 0" % (VL[c] + k))
    for k in range(4): a.e("v_mov_b32 v%d, 0" % (VP[1] + 4 + k))
    for k in range(4): a.e("v_mov_b32 v%d, 0" % (VV + 4 + k))
    a.e("s_waitcnt vmcnt(0) lgkmcnt(0)")
    a.e("s_barrier")
    if DIAG == "kv": a.stamp(6, force=True); a.nostamp = True
    a.stamp(3)
    a.e("ds_read_b128 v[%d:%d], v2 offset:0" % (VK, VK + 3))
    a.e("ds_read_b128 v[%d:%d], v2 offset:1024" % (VK + 4, VK + 7))
    kv_dma(a, 1); kv_dma(a, 2)
    a.e("s_cmp_lg_u32 s39, 0")
    a.e("s_cbranch_scc1 %s_havemax" % name)
    base(a, 20, X, None, 2048 * 2048)
    base(a, 24, GW, None, 2048)
    a.e("s_lshl_b32 s91, s%d, 4" % SMT); a.e("s_add_u32 s91, s91, s%d" % SNT); a.e("s_lshl_b32 s91, s91, 2"); a.e("s_add_u32 s91, s91, s%d" % SW)
    a.e("s_lshl_b32 s28, s91, 12")
    a.e("v_lshlrev_b32 v3, 5, v1")
    G = GATE
    a.e("buffer_load_dwordx4 v[%d:%d], v3, s[24:27], 0 offen" % (G, G + 3))
    a.e("buffer_load_dwordx4 v[%d:%d], v3, s[24:27], 0 offen offset:16" % (G + 4, G + 7))
    a.e("buffer_load_dwordx4 v[%d:%d], v3, s[20:23], s28 offen" % (G + 8, G + 11))
    a.e("buffer_load_dwordx4 v[%d:%d], v3, s[20:23], s28 offen offset:16" % (G + 12, G + 15))
    a.e("buffer_load_dwordx4 v[%d:%d], v3, s[20:23], s28 offen offset:2048" % (G + 16, G + 19))
    a.e("buffer_load_dwordx4 v[%d:%d], v3, s[20:23], s28 offen offset:2064" % (G + 20, G + 23))
    a.e("s_waitcnt lgkmcnt(0)")
    for c in range(2):
        M32(a, VS[c], VK, VQ[c], "0")
        M32(a, VS[c], VK + 4, VQ[c] + 4, VS[c])
    a.e("s_nop 15")
    for c in range(2):
        rowmax(a, c); set_negm(a, c, 4)
    a.label("%s_havemax" % name)
    a.e("s_waitcnt lgkmcnt(0)")
    a.e("s_nop 0")
    M32(a, VS[0], VK, VQ[0], VNM[0])
    M32(a, VS[0], VK + 4, VQ[0] + 4, VS[0])
    a.e("ds_read_b128 v[%d:%d], v2 offset:%d" % (VV, VV + 3, 2048))
    a.e("s_nop 15")
    if PF_W2:
        a.e("s_lshl_b32 s91, s%d, 7" % SNT)
        base(a, 16, W2, "s91", 3584 * 2048)
        base(a, 40, WO, "s91", 1024 * 2048)
        a.e("s_and_b32 s91, s%d, 3" % SMT); a.e("s_lshl_b32 s91, s91, 4")
        a.e("v_lshrrev_b32 v3, 4, v1"); a.e("v_lshlrev_b32 v3, 6, v3"); a.e("v_and_b32 v4, 15, v1"); a.e("v_add_u32 v3, v3, v4"); a.e("v_add_u32 v3, s91, v3")
        a.e("v_lshlrev_b32 v215, 11, v3")
        a.e("s_mov_b32 s29, 0"); a.e("s_mov_b32 s32, 0")
    dbg_mark(a, name + "_m1", 5)
    a.e("s_mov_b32 s33, 4")
    a.label("%s_loop" % name)
    for i in range(16):
        ex = None
        if i % 4 == 3:
            a.e("s_waitcnt vmcnt(4)")
            a.e("s_barrier")
            slot = (i // 4 + 3) % 4
            ex = [["s_add_u32 m0, s30, %d" % (slot * 16384), "s_add_u32 s31, s31, 16384", "buffer_load_dwordx4 v2, s[8:11], s31 offen sc1 lds"]]
            ex += [["buffer_load_dwordx4 v2, s[8:11], s31 offen offset:%d sc1 lds" % (q * 1024)] for q in range(1, 4)]
        A.phase(a.e, 0, i, koff, extra=ex)
        if i % 4 == 0 and PF_W2:
            lab = "%s_pf2_%d" % (name, i)
            a.e("s_cmp_lg_u32 s%d, %d" % (SW, i // 4)); a.e("s_cbranch_scc1 %s" % lab)
            a.e("buffer_load_dword v216, v215, s[16:19], s29 offen")
            a.e("s_cmp_lg_u32 s33, 1"); a.e("s_cbranch_scc1 %s" % lab)
            a.e("buffer_load_dword v217, v215, s[40:43], s32 offen")
            a.label(lab)
            a.e("s_add_u32 s29, s29, %d" % (4 * 64 * 2048))
            a.e("s_cmp_lg_u32 s33, 1"); a.e("s_cbranch_scc1 %s_n" % lab)
            a.e("s_add_u32 s32, s32, %d" % (4 * 64 * 2048))
            a.label("%s_n" % lab)
        A.phase(a.e, 1, i, koff)
    a.e("s_cmp_lg_u32 s33, 4")
    a.e("s_cbranch_scc1 %s_nog2" % name)
    a.e("s_cmp_lg_u32 s39, 0")
    a.e("s_cbranch_scc1 %s_nog2" % name)
    gen_gate(a)
    a.label("%s_nog2" % name)
    a.e("s_sub_u32 s33, s33, 1")
    a.e("s_cmp_lg_u32 s33, 0")
    a.e("s_cbranch_scc1 %s_loop" % name)
    a.e("s_waitcnt vmcnt(0) lgkmcnt(0)")
    M32(a, VO[1], VV + 4, VP[1] + 4, VO[1])
    M16(a, VL[1], VSEL, VP[1] + 4, VL[1])
    a.stamp(4)
    a.e("s_nop 15")
    a.e("v_mov_b32 v5, 0x%x" % f2u(2.0 ** 30))
    a.e("v_mov_b32 v7, 0")
    a.e("s_mov_b64 s[34:35], 0")
    for c in range(2):
        a.e("v_rcp_f32 v4, v%d" % VL[c])
        a.e("v_cmp_nle_f32 vcc, v%d, v5" % VL[c])
        a.e("s_or_b64 s[34:35], s[34:35], vcc")
        for k in range(16): a.e("v_mul_f32 v%d, v%d, v4" % (VO[c] + k, VO[c] + k))
        for k in range(16): a.e("v_fma_f32 v7, v%d, 0, v7" % (VO[c] + k))
    a.e("v_cmp_u_f32 vcc, v7, v7")
    a.e("s_or_b64 s[34:35], s[34:35], vcc")
    for c in range(2):
        for k in range(8): a.e("v_cvt_pk_bf16_f32 v%d, v%d, v%d" % (VT + 8 * c + k, VO[c] + 2 * k, VO[c] + 2 * k + 1))
    for c in range(2):
        for m in range(2):
            a.e("buffer_store_dwordx4 v[%d:%d], v2, s[12:15], s38 offen offset:%d sc1" % (VT + 8 * c + 4 * m, VT + 8 * c + 4 * m + 3, c * 2048 + m * 1024))
    a.e("s_cmp_lg_u32 s39, 0")
    a.e("s_cbranch_scc1 %s_ok" % name)
    a.e("s_cmp_eq_u64 s[34:35], 0")
    a.e("s_cbranch_scc1 %s_ok" % name)
    a.e("v_mov_b32 v4, 0x%x" % FLAG); a.e("v_mov_b32 v5, 1")
    a.e("ds_write_b32 v4, v5")
    a.label("%s_ok" % name)
    a.e("s_waitcnt vmcnt(0) lgkmcnt(0)")
    a.e("s_barrier")
    a.e("v_mov_b32 v4, 0x%x" % FLAG)
    a.e("ds_read_b32 v5, v4")
    a.e("s_waitcnt lgkmcnt(0)")
    a.e("v_readfirstlane_b32 s36, v5")
    a.e("s_nop 3")
    a.e("s_cmp_eq_u32 s36, 0")
    a.e("s_cbranch_scc1 %s_store" % name)
    a.e("s_cmp_lg_u32 s39, 0")
    a.e("s_cbranch_scc1 %s_store" % name)
    a.e("s_barrier")
    a.e("s_mov_b32 s39, 1")
    a.e("v_mov_b32 v%d, 0xff800000" % VT)
    a.e("v_mov_b32 v%d, 0xff800000" % (VT + 1))
    a.e("s_mov_b32 s37, 0")
    a.label("%s_mx" % name)
    a.e("buffer_load_dwordx4 v[%d:%d], v2, s[8:11], s37 offen sc1" % (VK, VK + 3))
    a.e("buffer_load_dwordx4 v[%d:%d], v2, s[8:11], s37 offen offset:1024 sc1" % (VK + 4, VK + 7))
    a.e("s_waitcnt vmcnt(0)")
    for c in range(2):
        M32(a, VS[c], VK, VQ[c], "0")
        M32(a, VS[c], VK + 4, VQ[c] + 4, VS[c])
    a.e("s_nop 15")
    for c in range(2):
        for k in range(0, 16, 2): a.e("v_max3_f32 v%d, v%d, v%d, v%d" % (VT + c, VT + c, VS[c] + k, VS[c] + k + 1))
    a.e("s_add_u32 s37, s37, 4096")
    a.e("s_cmp_lt_u32 s37, %d" % (64 * 4096))
    a.e("s_cbranch_scc1 %s_mx" % name)
    for c in range(2): set_negm(a, c, VT + c)
    a.e("s_branch %s_pass" % name)
    a.label("%s_store" % name)
    a.e("s_cmp_lg_u32 s%d, 0" % SW)
    a.e("s_cbranch_scc1 %s_nosig" % name)
    a.e("s_lshl_b32 s28, s%d, 8" % SMT); a.e("s_lshl_b32 s91, s%d, 2" % SNT); a.e("s_add_u32 s28, s28, s91"); a.e("s_add_u32 s28, s28, %d" % F_O)
    set_flag(a, 28, nrep=1)
    a.label("%s_nosig" % name)
    dbg_mark(a, name + "_m2", 6)
    a.stamp(5)
    a.stamp_flush(WS, WS + 1, WS_PROF, SW, 4)
    a.e("s_endpgm")

def gen_role_a(a, name):
    if PRIO["a1"]: a.e("s_setprio %d" % PRIO["a1"])
    a1_setup(a)
    a.e("s_mov_b32 s44, 0x%x" % f2u(QSCALE)); a.e("s_mov_b32 s45, s44")
    a.e("s_lshl_b32 s94, s%d, 7" % SNT)
    a.e("s_waitcnt lgkmcnt(0)")
    a.e("s_cmp_lg_u32 s2, 0"); a.e("s_cbranch_scc1 %s_noclr" % name)
    base(a, 52, WS, "0x%x" % WS_F, F_BYTES)
    a.e("s_lshl_b32 s91, s%d, 12" % SW)
    for k in range(4): a.e("v_mov_b32 v%d, 0" % (8 + k))
    for k in range(4): a.e("buffer_store_dwordx4 v[8:11], v2, s[52:55], s91 offen offset:%d sc1" % (k * 1024))
    a.label("%s_noclr" % name)
    base(a, 8, WQ, "s94", 1024 * 2048)
    base(a, 4, X, None, 2048 * 2048)
    if LAT_A1:
        lat_r(a, 59, LATN)
        a.e("s_mov_b32 s48, s8"); a.e("s_mov_b32 s49, s9")
        lat_base(a, 8, 48, 0, 59, LATN, LATC * 64 * 2048)
        lat_base(a, 4, X, 0, 59, LATN, LATC * 128)
    a.e("s_cmp_eq_u32 s%d, 0" % SNT); a.e("s_cbranch_scc1 %s_aK" % name)
    a.e("s_cmp_eq_u32 s%d, 1" % SNT); a.e("s_cbranch_scc1 %s_aV" % name)
    gen_a1(a, name + "_n", None)
    a.e("s_branch %s_attn" % name)
    a.label("%s_aK" % name); a.reset_counts()
    base(a, 12, WK, None, 1024 * 64)
    if LAT_A1:
        a.e("s_mov_b32 s50, s12"); a.e("s_mov_b32 s51, s13")
        lat_base(a, 12, 50, 0, 59, LATN, LATC * 64 * 64)
    gen_a1(a, name + "_k", "K")
    a.e("s_branch %s_attn" % name)
    a.label("%s_aV" % name); a.reset_counts()
    base(a, 12, WV, None, 1024 * 64)
    if LAT_A1:
        a.e("s_mov_b32 s50, s12"); a.e("s_mov_b32 s51, s13")
        lat_base(a, 12, 50, 0, 59, LATN, LATC * 64 * 64)
    gen_a1(a, name + "_v", "V")
    a.label("%s_attn" % name)
    gen_attn(a, name)

BW = [8, 36]
BX = [64, 80]
HAC = 100
HB = 212
B_XD, B_WD, B_XR, B_BI, B_WR = 240, 241, 243, 245, 246
LB_X, LB_W = 0, 32768
def hacc(j, tb): return HAC + 16 * j + 4 * tb

def b1_setup(a):
    a.e("v_lshrrev_b32 v3, 3, v1"); a.e("v_and_b32 v4, 6, v3"); a.e("v_and_b32 v5, 7, v1"); a.e("v_xor_b32 v4, v4, v5")
    a.e("v_lshlrev_b32 v4, 4, v4"); a.e("v_lshl_add_u32 v%d, v3, 11, v4" % B_XD)
    a.e("s_lshl_b32 s91, s%d, 7" % SMT); a.e("s_lshl_b32 s92, s%d, 5" % SW); a.e("s_add_u32 s91, s91, s92"); a.e("s_lshl_b32 s91, s91, 11")
    for q in range(4): a.e("s_add_u32 s%d, s91, %d" % (28 + q, q * (8 * 2048 - 1024)))
    a.e("s_lshl_b32 s35, s%d, 12" % SW); a.e("s_add_u32 s36, s35, %d" % LB_W)
    a.e("s_add_u32 s35, s35, %d" % LB_X)

def b1_setup_w(a):
    a.e("v_lshrrev_b32 v3, 5, v1"); a.e("v_bfe_u32 v4, v1, 1, 4"); a.e("v_and_b32 v9, 1, v1"); a.e("v_lshlrev_b32 v9, 4, v9")
    a.e("s_and_b32 s91, s%d, 1" % SW); a.e("s_lshl_b32 s91, s91, 2")
    a.e("v_or_b32 v5, s91, v3")
    a.e("v_mul_u32_u24 v8, 7168, v3"); a.e("v_add_u32 v8, v8, v9")
    a.e("v_mov_b32 v10, 0x40000000")
    for par in range(2):
        a.e("v_xor_b32 v6, %d, v5" % (2 * par))
        a.e("v_xor_b32 v6, v6, v4")
        a.e("v_lshl_add_u32 v7, v6, 5, v8")
        a.e("v_cmp_le_u32 vcc, 14, v6")
        a.e("s_nop 1")
        a.e("v_cndmask_b32 v%d, v7, v10, vcc" % (B_WD + par))

def b1_reads_setup(a):
    a.e("v_and_b32 v5, 15, v1"); a.e("v_lshrrev_b32 v6, 4, v1"); a.e("v_bfe_u32 v7, v1, 2, 2"); a.e("v_and_b32 v8, 3, v1")
    a.e("s_and_b32 s37, s%d, 1" % SW); a.e("s_lshr_b32 s38, s%d, 1" % SW)
    a.e("v_and_b32 v3, 6, v5"); a.e("v_xor_b32 v3, v3, v6"); a.e("v_lshlrev_b32 v4, 4, v3"); a.e("v_lshl_add_u32 v4, v5, 7, v4")
    a.e("s_lshl_b32 s91, s37, 13"); a.e("v_add_u32 v%d, s91, v4" % B_XR); a.e("v_xor_b32 v%d, 64, v%d" % (B_XR + 1, B_XR))
    a.e("v_and_b32 v3, 1, v6"); a.e("v_lshl_or_b32 v3, v3, 2, v7")
    a.e("v_lshl_add_u32 v4, v6, 3, v7"); a.e("v_lshlrev_b32 v4, 9, v4"); a.e("v_lshl_add_u32 v4, v8, 3, v4"); a.e("v_add_u32 v4, %d, v4" % LB_W)
    a.e("s_mul_i32 s91, s38, 7")
    for j in range(7):
        a.e("s_add_u32 s94, s91, %d" % j)
        a.e("v_xor_b32 v9, s94, v3")
        a.e("v_lshl_add_u32 v%d, v9, 5, v4" % (B_WR + j))
    a.e("v_lshlrev_b32 v%d, 3, v6" % B_BI)
    a.e("s_mul_i32 s39, s%d, 448" % SNT); a.e("s_mul_i32 s91, s38, 224"); a.e("s_add_u32 s39, s39, s91")

def b1_x0(a, xid):
    a.set_m0(35, 0)
    for q in range(4):
        xid[0] = a.vm("buffer_load_dwordx4 v%d, s[4:7], s%d offen offset:%d lds" % (B_XD, 28 + q, q * 1024))
    if LAT_B1 and LATC == 1: lat_base(a, 4, X, 1, 59, LATN, 128)
    elif ROT_B1: rot_adv(a, 4, X, 57, 128, 2048)
    else: add64(a, 4, 128)

def gen_b1(a, name, after_loop, xid):
    NH = 32
    wid = {}
    def wdma1(h, i):
        a.set_m0(36, (h % 3) * 16384)
        wid[h] = a.vm("buffer_load_dwordx4 v%d, s[8:11], s%d offen offset:%d lds" % (B_WD + (i & 1), 48 + i, i * 1024))
        if i == 3:
            if LAT_B1 and (h + 1) % (2 * LATC) == 0:
                if h + 1 < NH: lat_base(a, 8, 12, (h + 1) // (2 * LATC), 59, LATN, 2 * LATC * 32 * 7168)
            elif ROT_B1: rot_adv(a, 8, 12, 56, 32 * 7168, 1024 * 7168)
            else: add64(a, 8, 32 * 7168)
    def xdma1(s, q):
        a.set_m0(35, (s % 2) * 16384)
        xid[s] = a.vm("buffer_load_dwordx4 v%d, s[4:7], s%d offen offset:%d lds" % (B_XD, 28 + q, q * 1024))
        if q == 3:
            if LAT_B1 and (s + 1) % LATC == 0:
                if s + 1 < 16: lat_base(a, 4, X, (s + 1) // LATC, 59, LATN, LATC * 128)
            elif ROT_B1: rot_adv(a, 4, X, 57, 128, 2048)
            else: add64(a, 4, 128)
    def wdma(h):
        for i in range(4): wdma1(h, i)
    def xdma(s):
        for q in range(4): xdma1(s, q)
    wdma(0); wdma(1)
    b1_reads_setup(a)
    base(a, 24, B1P, None, 3584 * 2)
    bias = []
    for j in range(7):
        bias.append(a.vm("buffer_load_dwordx2 v[%d:%d], v%d, s[24:27], s39 offen offset:%d" % (HB + 4 * j, HB + 4 * j + 1, B_BI, 32 * j)))
    def pf(hh, wave):
        lab = "%s_pf%d" % (name, hh)
        a.e("s_cmp_lg_u32 s%d, %d" % (SW, wave)); a.e("s_cbranch_scc1 %s" % lab)
        a.e("buffer_load_dword v96, v97, s[16:19], s34 offen")
        a.label(lab)
        a.e("s_add_u32 s34, s34, %d" % (32 * 7168))
    def pfx(st, wave):
        lab = "%s_px%d" % (name, st)
        a.e("s_cmp_lg_u32 s%d, %d" % (SW, wave)); a.e("s_cbranch_scc1 %s" % lab)
        a.e("buffer_load_dword v96, v98, s[20:23], s39x offen".replace("s39x", "s58"))
        a.label(lab)
        a.e("s_add_u32 s58, s58, 128")
    if PF_BX:
        base(a, 20, X, None, 2048 * 2048)
        a.e("s_and_b32 s91, s%d, 7" % SNT); a.e("s_lshl_b32 s91, s91, 4"); a.e("s_lshl_b32 s94, s%d, 7" % SMT); a.e("s_add_u32 s91, s91, s94")
        a.e("v_add_u32 v3, s91, v1"); a.e("v_lshlrev_b32 v3, 11, v3"); a.e("v_mov_b32 v4, 0x40000000")
        a.e("v_cmp_le_u32 vcc, 16, v1"); a.e("s_nop 1"); a.e("v_cndmask_b32 v98, v3, v4, vcc")
        a.e("s_mov_b32 s58, %d" % (2 * 128))
    if PF_B1:
        a.e("s_mul_i32 s91, s%d, 448" % SNT); a.e("s_and_b32 s91, s91, 0xffffff80")
        base(a, 16, W1, "s91", 1024 * 7168)
        a.e("s_and_b32 s91, s%d, 3" % SMT); a.e("s_lshl_b32 s91, s91, 3")
        a.e("v_lshrrev_b32 v3, 2, v1"); a.e("v_add_u32 v3, s91, v3"); a.e("v_mul_u32_u24 v3, 7168, v3")
        a.e("v_and_b32 v4, 3, v1"); a.e("v_lshl_add_u32 v3, v4, 7, v3"); a.e("v_mov_b32 v4, 0x40000000")
        a.e("v_cmp_le_u32 vcc, 32, v1"); a.e("s_nop 1"); a.e("v_cndmask_b32 v97, v3, v4, vcc")
        a.e("s_mov_b32 s34, %d" % (3 * 32 * 7168))
    a.wait(vm=max(wid[0], xid[0])); a.e("s_barrier")
    a.stamp(1)
    if BPRO is not None: a.e("s_setprio %d" % PRIO["b1"])
    wdma(2); xdma(1)
    if BURST: burst(a)
    if PF_B1:
        for hh in range(3, PF_B1): pf(hh, hh & 3)
    if PF_BX:
        for st in range(2, PF_BX): pfx(st, st & 3)
    rd = {}
    def rlist(h):
        s, kk = h // 2, h % 2
        L = []
        for tb in range(4):
            r = BX[h % 2] + 4 * tb
            L.append("ds_read_b128 v[%d:%d], v%d offset:%d" % (r, r + 3, B_XR + kk, (s % 2) * 16384 + tb * 2048))
        for j in range(7):
            r = BW[h % 2] + 4 * j
            o = (h % 3) * 16384
            L.append("ds_read_b64_tr_b16 v[%d:%d], v%d offset:%d" % (r, r + 1, B_WR + j, o))
            L.append("ds_read_b64_tr_b16 v[%d:%d], v%d offset:%d" % (r + 2, r + 3, B_WR + j, o + 2048))
        return L
    for x in rlist(0): rd[0] = a.ds(x)
    a.wait(vm=bias[-1])
    for j in range(7):
        b = HB + 4 * j
        a.e("v_and_b32 v%d, 0xffff0000, v%d" % (b + 3, b + 1))
        a.e("v_lshlrev_b32 v%d, 16, v%d" % (b + 2, b + 1))
        a.e("v_and_b32 v%d, 0xffff0000, v%d" % (b + 1, b))
        a.e("v_lshlrev_b32 v%d, 16, v%d" % (b, b))
    for h in range(NH):
        s, kk = h // 2, h % 2
        need = None
        if h + 1 < NH:
            need = wid[h + 1]
            need = max(need, xid[(h + 1) // 2])
        a.wait(vm=need if "nowait" not in EXP else None, lg=rd[h])
        if "nobar" not in EXP: a.e("s_barrier")
        if DIAG == "b1" and h in (8, 16, 24): a.stamp(1 + h // 8, force=True)
        if B1SW and h == B1SW[0]: a.e("s_setprio %d" % B1SW[1])
        todo = rlist(h + 1) if h + 1 < NH else []
        if "nords" in EXP and todo: rd[h + 1] = a.lg_n - 1; todo = []
        dma = []
        if h + 3 < NH:
            if "now" in EXP: wid[h + 3] = a.vm_n - 1
            else: dma += [(wdma1, h + 3, i) for i in range(4)]
        if kk == 1 and s + 2 < 16:
            if "nox" in EXP: xid[s + 2] = a.vm_n - 1
            else: dma += [(xdma1, s + 2, q) for q in range(4)]
        if h == NH - 1: after_loop()
        if h == 16 and "noa" not in EXP: early_cleared(a, name + "_ec")
        n = 0
        for j in range(7):
            for tb in range(4):
                d = hacc(j, tb)
                c = "v[%d:%d]" % (HB + 4 * j, HB + 4 * j + 3) if h == 0 else "v[%d:%d]" % (d, d + 3)
                a.e("v_mfma_f32_16x16x32_bf16 v[%d:%d], v[%d:%d], v[%d:%d], %s" % (d, d + 3, BW[h % 2] + 4 * j, BW[h % 2] + 4 * j + 3, BX[h % 2] + 4 * tb, BX[h % 2] + 4 * tb + 3, c))
                n += 1
                if todo and n >= 1 and tb != 3:
                    rd[h + 1] = a.ds(todo.pop(0))
                if dma and (tb == 3 or (tb == 1 and j == 3)):
                    f, i0, i1 = dma.pop(0)
                    f(i0, i1)
                if tb == 3 and j == 4 and PF_B1 and h + PF_B1 < NH: pf(h + PF_B1, h & 3)
                if tb == 3 and j == 5 and PF_BX and kk == 0 and s + PF_BX < 16: pfx(s + PF_BX, s & 3)
        while todo: rd[h + 1] = a.ds(todo.pop(0))
        assert not dma
    a.stamp(5 if DIAG == "b1" else 2, force=True)
    if DIAG == "b1": a.nostamp = True

def b1_epilogue(a):
    a.e("s_mov_b32 s44, 0x%x" % f2u(LOG2E)); a.e("s_mov_b32 s45, s44")
    a.e("s_mov_b32 s46, 0x%x" % f2u(-2.0)); a.e("s_mov_b32 s47, s46")
    base(a, 20, WS, "0x%x" % WS_H, WS_H_BYTES)
    a.e("s_lshl_b32 s91, s%d, 2" % SMT); a.e("s_lshl_b32 s94, s37, 1"); a.e("s_add_u32 s91, s91, s94")
    a.e("s_mul_i32 s91, s91, 224"); a.e("s_mul_i32 s94, s%d, 14" % SNT); a.e("s_add_u32 s91, s91, s94")
    a.e("s_mul_i32 s94, s38, 7"); a.e("s_add_u32 s91, s91, s94"); a.e("s_lshl_b32 s56, s91, 10")
    a.e("s_add_u32 s57, s56, %d" % (224 * 1024))
    a.e("s_add_u32 s58, s56, 4096"); a.e("s_add_u32 s59, s57, 4096")
    a.e("s_nop 7")
    cnt = 0
    for j in range(7):
        for pair in range(2):
            Aa = hacc(j, 2 * pair)
            t = HB + 16 * (cnt % 2); q = t + 12; cnt += 1
            if PKMISH:
                for k in range(4): a.e("v_pk_mul_f32 v[%d:%d], v[%d:%d], s[44:45]" % (t + 2 * k, t + 2 * k + 1, Aa + 2 * k, Aa + 2 * k + 1))
                for k in range(8): a.e("v_exp_f32 v%d, v%d" % (t + k, t + k))
                for k in range(4): a.e("v_pk_add_f32 v[%d:%d], v[%d:%d], 2.0 op_sel_hi:[1,0]" % (t + 8 + 2 * k, t + 9 + 2 * k, t + 2 * k, t + 2 * k + 1))
                for k in range(4): a.e("v_pk_fma_f32 v[%d:%d], v[%d:%d], v[%d:%d], 2.0 op_sel_hi:[1,1,0]" % (t + 2 * k, t + 2 * k + 1, t + 2 * k, t + 2 * k + 1, t + 8 + 2 * k, t + 9 + 2 * k))
                for k in range(8): a.e("v_rcp_f32 v%d, v%d" % (t + k, t + k))
                for k in range(4): a.e("v_pk_fma_f32 v[%d:%d], v[%d:%d], s[46:47], 1.0 op_sel_hi:[1,1,0]" % (t + 2 * k, t + 2 * k + 1, t + 2 * k, t + 2 * k + 1))
                for k in range(4): a.e("v_pk_mul_f32 v[%d:%d], v[%d:%d], v[%d:%d]" % (t + 2 * k, t + 2 * k + 1, t + 2 * k, t + 2 * k + 1, Aa + 2 * k, Aa + 2 * k + 1))
            else:
                for k in range(8): a.e("v_mul_f32 v%d, s44, v%d" % (t + k, Aa + k))
                for k in range(8): a.e("v_exp_f32 v%d, v%d" % (t + k, t + k))
                for k in range(8): a.e("v_add_f32 v%d, 2.0, v%d" % (t + 8 + k, t + k))
                for k in range(8): a.e("v_fma_f32 v%d, v%d, v%d, 2.0" % (t + k, t + k, t + 8 + k))
                for k in range(8): a.e("v_rcp_f32 v%d, v%d" % (t + k, t + k))
                for k in range(8): a.e("v_fma_f32 v%d, v%d, -2.0, 1.0" % (t + k, t + k))
                for k in range(8): a.e("v_mul_f32 v%d, v%d, v%d" % (t + k, t + k, Aa + k))
            for k in range(4): a.e("v_cvt_pk_bf16_f32 v%d, v%d, v%d" % (q + k, t + 2 * k, t + 2 * k + 1))
            a.e("s_nop 1")
            a.e("v_permlane16_swap_b32 v%d, v%d" % (q, q + 2))
            a.e("v_permlane16_swap_b32 v%d, v%d" % (q + 1, q + 3))
            if "nohstore" not in EXP: a.vm("buffer_store_dwordx4 v[%d:%d], v2, s[20:23], s%d offen offset:%d%s" % (q, q + 3, (56 if j < 4 else 58) + pair, (j % 4) * 1024, " sc1" if "plainh" not in EXP else ""))

NHR = 20; NWU = 8
BH = 32; BA = 144; BAC = 168; AAC = 200
POLL_U = 55; OBURST = 4; BB = 1
BSW = None
def gen_role_b(a, name):
    a.e("s_setprio %d" % (BPRO if BPRO is not None else PRIO["b1"]))
    for e in EXP:
        if e.startswith("bdelay"):
            for k in range(int(e[6:])): a.e("s_sleep 32")
    b1_setup(a)
    a.e("s_waitcnt lgkmcnt(0)")
    base(a, 4, X, None, 2048 * 2048)
    if LAT_B1:
        lat_r(a, 59, LATN)
        lat_base(a, 4, X, 0, 59, LATN, LATC * 128)
    if ROT_B1:
        a.e("s_add_u32 s91, s%d, s%d" % (SMT, SNT)); a.e("s_and_b32 s91, s91, 3"); a.e("s_mul_i32 s91, s91, %d" % ROT_B1)
        a.e("s_lshl_b32 s57, s91, 6")
        a.e("s_mul_i32 s56, s91, %d" % (32 * 7168))
        a.e("s_add_u32 s4, s%d, s57" % X); a.e("s_addc_u32 s5, s%d, 0" % (X + 1))
    xid0 = {}
    b1_x0(a, xid0)
    b1_setup_w(a)
    a.e("s_mul_i32 s94, s%d, 448" % SNT)
    a.e("s_add_u32 s92, s%d, s94" % W1); a.e("s_addc_u32 s93, s%d, 0" % (W1 + 1))
    srd(a, 8, 92, 93, 1024 * 7168)
    if LAT_B1:
        a.e("s_mov_b32 s12, s92"); a.e("s_mov_b32 s13, s93")
        lat_base(a, 8, 12, 0, 59, LATN, 2 * LATC * 32 * 7168)
    if ROT_B1:
        a.e("s_mov_b32 s12, s92"); a.e("s_mov_b32 s13, s93")
        a.e("s_add_u32 s8, s12, s56"); a.e("s_addc_u32 s9, s13, 0")
    a.e("s_mul_i32 s91, s%d, %d" % (SW, 8 * 7168))
    for i in range(4): a.e("s_add_u32 s%d, s91, %d" % (48 + i, i * (2 * 7168 - 1024)))
    NG = 288; NU = 72; GB = 224; UB = 56
    uid = {}; hid = {}
    st = dict(nu=0)
    def wdma(u):
        if "nobw" in EXP and 8 <= u < UB:
            uid[u] = a.vm_n - 1
            return
        sb = 16 if u < UB else 40
        a.set_m0(35, (u % NWU) * 8192)
        a.vm("buffer_load_dwordx4 v10, s[%d:%d], s33 offen lds" % (sb, sb + 3))
        uid[u] = a.vm("buffer_load_dwordx4 v10, s[%d:%d], s32 offen offset:1024 lds" % (sb, sb + 3))
        if LAT_B and (u + 1) % LBC == 0:
            if u + 1 < UB: lat_base(a, 16, 12, (u + 1) // LBC, 36, LBN, LBC * 64 * 2048)
            elif UB < u + 1 < NU: lat_base(a, 40, 14, (u + 1 - UB) // LBC, 36, LBN, LBC * 64 * 2048)
        else: add64(a, sb, 64 * 2048)
    def after_loop():
        a.e("v_lshrrev_b32 v3, 3, v1"); a.e("v_bfe_u32 v4, v1, 4, 1"); a.e("v_lshlrev_b32 v4, 2, v4"); a.e("v_and_b32 v5, 7, v1")
        a.e("v_xor_b32 v4, v4, v5"); a.e("v_lshlrev_b32 v4, 4, v4"); a.e("v_lshl_add_u32 v10, v3, 11, v4")
        a.e("s_lshl_b32 s33, s%d, 15" % SW); a.e("s_add_u32 s32, s33, %d" % (8 * 2048 - 1024))
        a.e("s_lshl_b32 s35, s%d, 11" % SW)
        a.e("s_lshl_b32 s34, s%d, 7" % SNT)
        base(a, 16, W2, "s34", 3584 * 2048)
        base(a, 40, WO, "s34", 1024 * 2048)
        if LAT_B:
            lat_r(a, 36, LBN)
            a.e("s_mov_b32 s12, s16"); a.e("s_mov_b32 s13, s17"); a.e("s_mov_b32 s14, s40"); a.e("s_mov_b32 s15, s41")
            lat_base(a, 16, 12, 0, 36, LBN, LBC * 64 * 2048)
            lat_base(a, 40, 14, 0, 36, LBN, LBC * 64 * 2048)
        a.cur_m0 = None
        for u in range(4): wdma(u)
        st["nu"] = 4
    gen_b1(a, name + "_b1", after_loop, xid0)
    if "b1only" in EXP:
        a.e("s_waitcnt vmcnt(0)")
        a.stamp_flush(WS, WS + 1, WS_PROF, SW, 4)
        a.e("s_endpgm")
        return
    if PRIO["mish"] != PRIO["b1"]: a.e("s_setprio %d" % PRIO["mish"])
    b1_epilogue(a)
    for u in range(4, NWU - 1): wdma(u)
    st["nu"] = NWU - 1
    a.e("s_waitcnt vmcnt(0)"); a.vm_done = a.vm_n
    a.e("s_barrier")
    a.e("s_cmp_lg_u32 s%d, 0" % SW); a.e("s_cbranch_scc1 %s_hw" % name)
    check_cleared(a, name + "_clrb")
    a.e("s_lshl_b32 s28, s%d, 8" % SMT); a.e("s_add_u32 s29, s28, %d" % F_H)
    a.e("s_lshl_b32 s91, s%d, 2" % SNT); a.e("s_add_u32 s28, s29, s91")
    set_flag(a, 28, nrep=1)
    a.stamp(3)
    if "nohwait" not in EXP: wait_flags(a, name + "_hp", 29, 15)
    a.label("%s_hw" % name)
    a.e("s_lshl_b32 s90, s%d, 2" % SMT); a.e("s_add_u32 s56, s90, s%d" % SW)
    a.e("s_mul_i32 s31, s56, %d" % (224 * 1024))
    a.e("s_lshl_b32 s38, s56, 16")
    if LAT_B:
        a.e("s_mov_b32 s57, s31"); a.e("s_mov_b32 s58, s38")
        lat_off(a, 31, 57, 0, 36, LBN, LBC * 4096)
        lat_off(a, 38, 58, 0, 36, LBN, LBC * 4096)
    base(a, 8, WS, "0x%x" % WS_H, WS_H_BYTES)
    base(a, 4, WS, "0x%x" % WS_O, 4 << 20)
    base(a, 20, WS, "0x%x" % WS_G, 256 * 128)
    base(a, 24, OUT, None, 2048 * 2048)
    a.e("v_lshrrev_b32 v3, 5, v1"); a.e("v_bfe_u32 v4, v1, 2, 2"); a.e("v_bfe_u32 v5, v1, 4, 1"); a.e("v_and_b32 v6, 3, v1")
    a.e("v_lshrrev_b32 v7, 1, v4"); a.e("v_lshlrev_b32 v7, 6, v7"); a.e("v_lshl_add_u32 v7, v5, 5, v7"); a.e("v_lshl_add_u32 v7, v6, 3, v7")
    a.e("v_lshl_add_u32 v8, v3, 3, v4"); a.e("v_lshl_add_u32 v12, v8, 7, v7"); a.e("v_xor_b32 v13, 64, v12")
    a.e("v_lshl_add_u32 v8, v3, 2, v4"); a.e("v_lshl_add_u32 v14, v8, 7, v7"); a.e("v_xor_b32 v15, 64, v14")
    a.e("v_and_b32 v4, 31, v1"); a.e("s_lshl_b32 s91, s56, 5"); a.e("v_add_u32 v4, s91, v4")
    a.e("v_lshrrev_b32 v5, 3, v4"); a.e("v_and_b32 v6, 7, v4"); a.e("v_lshlrev_b32 v6, 2, v6"); a.e("v_lshl_add_u32 v16, v5, 7, v6")
    a.e("v_lshlrev_b32 v17, 11, v4"); a.e("v_lshl_add_u32 v17, v3, 4, v17")
    a.e("s_lshl_b32 s37, s%d, 8" % SMT); a.e("s_add_u32 s37, s37, %d" % F_O)
    a.e("s_barrier")
    a.stamp(4)
    a.e("s_setprio %d" % PRIO["b"])
    def hload(g):
        r = BH + 4 * (g % NHR)
        if "nohload" in EXP and 16 <= g < GB:
            hid[g] = a.vm_n - 1
            return
        if g < GB:
            hid[g] = a.vm("buffer_load_dwordx4 v[%d:%d], v2, s[8:11], s31 offen offset:%d sc1" % (r, r + 3, (g % 4) * 1024))
            if g % 4 == 3:
                if LAT_B and (g + 1) % (4 * LBC) == 0:
                    if g + 1 < GB: lat_off(a, 31, 57, (g + 1) // (4 * LBC), 36, LBN, LBC * 4096)
                else: a.e("s_add_u32 s31, s31, 4096")
        else:
            hid[g] = a.vm("buffer_load_dwordx4 v[%d:%d], v2, s[4:7], s38 offen offset:%d sc1" % (r, r + 3, (g % 4) * 1024))
            if g % 4 == 3:
                if LAT_B and (g + 1) % (4 * LBC) == 0:
                    if g + 1 < NG: lat_off(a, 38, 58, (g + 1 - GB) // (4 * LBC), 36, LBN, LBC * 4096)
                else: a.e("s_add_u32 s38, s38, 4096")
    dbg_mark(a, name + "_m3", 7)
    for g in range(8): hload(g)
    nh = 8
    fr = {}
    def reads(g):
        u, kk = g // 4, g % 4
        so = (u % NWU) * 8192 + kk * 2048
        f = g % 3
        va, d = (12, 512) if g < GB else (14, 1024)
        for ng in range(2):
            a.ds("ds_read_b64_tr_b16 v[%d:%d], v%d offset:%d" % (BA + 8 * f + 4 * ng, BA + 8 * f + 4 * ng + 1, va + ng, so))
            fr[g] = a.ds("ds_read_b64_tr_b16 v[%d:%d], v%d offset:%d" % (BA + 8 * f + 4 * ng + 2, BA + 8 * f + 4 * ng + 3, va + ng, so + d))
    reads(0); reads(1)
    polled = False
    nu = st["nu"]
    ubar_prev = -1
    for g in range(NG):
        u, kk = g // 4, g % 4
        f = g % 3
        if kk == 2 and u + 1 < NU and u % BB == 0:
            ubar = u
            un = min(u + BB, NU - 1)
            while un not in uid:
                assert nu < NWU or nu <= ubar_prev + NWU - 1
                wdma(nu); nu += 1
            if u == POLL_U:
                a.e("s_cmp_lg_u32 s%d, 0" % SW)
                a.e("s_cbranch_scc1 %s_polled" % name)
                if "noowait" not in EXP: wait_flags(a, name + "_op", 37, 15)
                a.label("%s_polled" % name)
                polled = True
            a.wait(vm=uid[un]); a.e("s_barrier")
            ubar_prev = u
            if u == POLL_U:
                gid = a.vm("buffer_load_dword v22, v16, s[20:23], 0 offen sc1")
                a.stamp(5)
        if BSW and g == BSW[0]: a.e("s_setprio %d" % BSW[1])
        if g + 2 < NG: reads(g + 2)
        assert g in hid
        a.wait(vm=hid[g], lg=fr[g])
        hb = BH + 4 * (g % NHR)
        acc = BAC if g < GB else AAC
        for ng in range(2):
            M32(a, acc + 16 * ng, BA + 8 * f + 4 * ng, hb, "0" if g in (0, GB) else acc + 16 * ng)
        cnt = 0
        while nh < min(g + 1 + NHR, NG) and cnt < (OBURST if polled else 2) and (nh < GB or polled):
            hload(nh); nh += 1; cnt += 1
        if nu < NU and (nu < NWU or nu <= ubar_prev + NWU - 1):
            wdma(nu); nu += 1
    a.stamp(6)
    a.wait(vm=gid)
    a.e("v_sub_f32 v23, 1.0, v22")
    for k in range(32): a.e("v_mul_f32 v%d, v%d, v23" % (BAC + k, BAC + k))
    for k in range(32): a.e("v_fmac_f32 v%d, v%d, v22" % (BAC + k, AAC + k))
    for k in range(16): a.e("v_cvt_pk_bf16_f32 v%d, v%d, v%d" % (BH + k, BAC + 2 * k, BAC + 2 * k + 1))
    a.e("s_nop 1")
    for q in range(4):
        b = BH + 4 * q
        a.e("v_permlane32_swap_b32 v%d, v%d" % (b, b + 2))
        a.e("v_permlane32_swap_b32 v%d, v%d" % (b + 1, b + 3))
    for q in range(4):
        b = BH + 4 * q
        a.vm("buffer_store_dwordx4 v[%d:%d], v17, s[24:27], s34 offen offset:%d%s" % (b, b + 3, 32 * q, OUT_FLAGS))
    if a.prof or DBGT: a.e("s_waitcnt vmcnt(0)")
    dbg_mark(a, name + "_m4", 8)
    a.stamp(7)
    a.stamp_flush(WS, WS + 1, WS_PROF, SW, 4)
    a.e("s_endpgm")

def gen_kernel(name, prof=False):
    a = Asm(); a.prof = prof; a.PROF_V = 254
    a.raw(kernel_header(name))
    a.e("s_cmp_ge_u32 s2, 512")
    a.e("s_cbranch_scc1 %s_exit" % name)
    if prof: a.e("v_mov_b32 v254, 0")
    a.stamp(0)
    a.e("s_load_dwordx8 s[60:67], s[0:1], 0")
    a.e("s_load_dwordx8 s[72:79], s[0:1], 48")
    a.e("s_load_dwordx2 s[68:69], s[0:1], 32")
    a.e("s_load_dwordx4 s[80:83], s[0:1], 80")
    a.e("s_load_dwordx2 s[84:85], s[0:1], 96")
    a.e("v_and_b32 v1, 63, v0")
    a.e("v_lshrrev_b32 v3, 6, v0")
    a.e("v_lshlrev_b32 v2, 4, v1")
    a.e("v_readfirstlane_b32 s%d, v3" % SW)
    a.e("s_and_b32 s%d, s2, 255" % SID)
    a.e("s_and_b32 s90, s%d, 7" % SID); a.e("s_lshr_b32 s91, s%d, 3" % SID)
    a.e("s_lshr_b32 s92, s90, 1"); a.e("s_lshl_b32 s92, s92, 2"); a.e("s_lshr_b32 s93, s91, 3"); a.e("s_add_u32 s%d, s92, s93" % SMT)
    a.e("s_and_b32 s92, s90, 1"); a.e("s_lshl_b32 s92, s92, 3"); a.e("s_and_b32 s93, s91, 7"); a.e("s_add_u32 s%d, s92, s93" % SNT)
    if DBGT:
        a.e("s_waitcnt lgkmcnt(0)")
        dbg_mark(a, name + "_m0", 4, neg=True)
    a.e("s_cmp_ge_u32 s2, 256")
    a.e("s_cbranch_scc1 %s_roleb" % name)
    if "noa" in EXP: a.e("s_endpgm")
    else: gen_role_a(a, name)
    a.label("%s_roleb" % name)
    a.nostamp = False
    a.reset_counts()
    gen_role_b(a, name)
    a.label("%s_exit" % name)
    a.e("s_endpgm")
    return a.text()
```

```python
from asmlib import *
import struct
def f2u(x): return struct.unpack("<I", struct.pack("<f", x))[0]
import attn64 as A
from attn64 import VQ, VK, VV, VS, VP, VO, VL, VSEL, VNM, VT

WS_H = 4 << 20; WS_H_BYTES = 64 * 224 * 1024
WS_KV = 20 << 20; WS_O = 21 << 20; WS_G = 25 << 20; WS_F = 27 << 20; WS_PROF = 48 << 20
F_KV = 0; F_H = 8192; F_O = 12288; F_BYTES = 16384
KVREP = 32; SLEEP = 6
QSCALE = 0.25503486322159136
LOG2E = 1.4426950408889634
X, WQ, WK, WV, WO, W1, B1P, W2, GW, OUT, DBG, WS = 60, 62, 64, 66, 68, 72, 74, 76, 78, 80, 82, 84
SW, SMT, SNT, SID = 86, 87, 88, 89
FLAG = 65536; GATE = 180
PRIO = dict(a1=2, attn=0, b1=2, b=0, mish=3)
SPIN = 0x40000
PF_W1 = False
PF_B1 = 0
PF_BX = 0
PF_A1 = 0
DIAG = None
MISH2 = False
OUT_FLAGS = ''
ASW = None
B1SW = None
LATN = 4; LATC = 2
LBN = 4; LBC = 2
DBGT = False
LAT_A1 = True
LAT_B = True
LAT_B1 = True
PKMISH = True
BPRO = None
BURST = False
ROT_B1 = 0
EXP = set()
PF_W2 = True

def M32(a, d, x, y, c): A.M32(a.e, d, x, y, c)
def M16(a, d, x, y, c): A.M16(a.e, d, x, y, c)
def base(a, d, ptr, add, nbytes):
    if add is None:
        srd(a, d, ptr, ptr + 1, nbytes)
    else:
        a.e("s_add_u32 s92, s%d, %s" % (ptr, add)); a.e("s_addc_u32 s93, s%d, 0" % (ptr + 1))
        srd(a, d, 92, 93, nbytes)

def rot_adv(a, sb, blo, sk, step, total):
    a.e("s_add_u32 s%d, s%d, %d" % (sk, sk, step))
    a.e("s_cmp_eq_u32 s%d, %d" % (sk, total))
    a.e("s_cselect_b32 s%d, 0, s%d" % (sk, sk))
    a.e("s_add_u32 s%d, s%d, s%d" % (sb, blo, sk)); a.e("s_addc_u32 s%d, s%d, 0" % (sb + 1, blo + 1))

def burst(a, va=98, vd=99):
    a.e("s_lshl_b32 s96, s2, 2"); a.e("s_add_u32 s96, s96, s%d" % SW)
    a.e("v_lshlrev_b32 v3, 7, v1"); a.e("v_mov_b32 v4, 0x40000000")
    for ptr, nbytes, nl in ((W1, 1024 * 7168, 28), (X, 2048 * 2048, 16), (WQ, 1024 * 2048, 8)):
        base(a, 40, ptr, None, nbytes)
        a.e("s_mul_i32 s95, s96, %d" % (nl * 128))
        a.e("v_cmp_le_u32 vcc, %d, v1" % nl); a.e("s_nop 1")
        a.e("v_cndmask_b32 v%d, v3, v4, vcc" % va)
        a.e("buffer_load_dword v%d, v%d, s[40:43], s95 offen" % (vd, va))

def lat_r(a, reg, n):
    a.e("s_mul_i32 s94, s%d, %d" % (SMT, max(1, n // 4))); a.e("s_add_u32 s%d, s94, s%d" % (reg, SNT)); a.e("s_and_b32 s%d, s%d, %d" % (reg, reg, n - 1))

def lat_base(a, sb, blo, q, rreg, nslots, step):
    a.e("s_add_u32 s94, s%d, %d" % (rreg, q % nslots)); a.e("s_and_b32 s94, s94, %d" % (nslots - 1))
    if q // nslots: a.e("s_add_u32 s94, s94, %d" % (nslots * (q // nslots)))
    a.e("s_mul_i32 s94, s94, %d" % step)
    a.e("s_add_u32 s%d, s%d, s94" % (sb, blo)); a.e("s_addc_u32 s%d, s%d, 0" % (sb + 1, blo + 1))

def lat_off(a, sd, sbase, q, rreg, nslots, step):
    a.e("s_add_u32 s94, s%d, %d" % (rreg, q % nslots)); a.e("s_and_b32 s94, s94, %d" % (nslots - 1))
    if q // nslots: a.e("s_add_u32 s94, s94, %d" % (nslots * (q // nslots)))
    a.e("s_mul_i32 s94, s94, %d" % step)
    a.e("s_add_u32 s%d, s%d, s94" % (sd, sbase))

def dbg_mark(a, tag, word, neg=False):
    if not DBGT: return
    a.e("s_cmp_lg_u32 s%d, 0" % SW); a.e("s_cbranch_scc1 %s" % tag)
    a.e("s_memrealtime s[98:99]"); a.e("s_waitcnt lgkmcnt(0)"); a.lg_done = a.lg_n
    if neg: a.e("s_not_b32 s98, s98")
    a.e("s_mov_b32 s52, s%d" % DBG); a.e("s_mov_b32 s53, s%d" % (DBG + 1)); a.e("s_mov_b32 s54, 256"); a.e("s_mov_b32 s55, 0x00020000")
    a.e("v_mov_b32 v4, s98"); a.e("v_mov_b32 v5, %d" % (word * 4))
    a.e("v_cmp_eq_u32 vcc, 0, v1"); a.e("s_nop 1"); a.e("s_and_saveexec_b64 s[90:91], vcc")
    a.e("buffer_atomic_umax v4, v5, s[52:55], 0 offen")
    a.e("s_mov_b64 exec, s[90:91]")
    a.label(tag)

def poll(a, tag, srd4, voff, soff, nlanes_mask_exec=None):
    a.e("s_mov_b32 s96, 0x%x" % SPIN)
    a.label(tag)
    a.e("buffer_load_dword v5, %s, s[%d:%d], %s offen sc1" % (voff, srd4, srd4 + 3, soff))
    a.e("s_waitcnt vmcnt(0)")
    a.e("v_cmp_eq_u32 vcc, 1, v5")
    a.e("s_nop 3")
    a.e("s_cmp_eq_u64 vcc, exec")
    a.e("s_cbranch_scc1 %s_ok" % tag)
    a.e("s_sleep %d" % SLEEP)
    a.e("s_sub_u32 s96, s96, 1")
    a.e("s_cmp_lg_u32 s96, 0")
    a.e("s_cbranch_scc1 %s" % tag)
    a.label("%s_ok" % tag)

CLR = 253
def early_cleared(a, tag):
    a.e("s_cmp_lg_u32 s%d, 0" % SW); a.e("s_cbranch_scc1 %s" % tag)
    base(a, 52, DBG, None, 256)
    a.e("s_and_b32 s97, s2, 1"); a.e("s_lshl_b32 s97, s97, 7")
    a.e("v_mov_b32 v4, s97")
    a.e("buffer_load_dword v%d, v4, s[52:55], 0 offen sc1" % CLR)
    a.label(tag)

def check_cleared(a, tag):
    a.e("v_readfirstlane_b32 s97, v%d" % CLR)
    a.e("s_nop 3")
    a.e("s_cmp_eq_u32 s97, 1"); a.e("s_cbranch_scc1 %s_ok" % tag)
    base(a, 52, DBG, None, 256)
    a.e("s_and_b32 s97, s2, 1"); a.e("s_lshl_b32 s97, s97, 7")
    a.e("v_mov_b32 v4, s97")
    poll(a, tag, 52, "v4", "0")

def set_flag(a, soff_reg, nrep=1):
    base(a, 52, WS, "0x%x" % WS_F, F_BYTES)
    a.e("v_lshlrev_b32 v6, 8, v1"); a.e("v_add_u32 v6, s%d, v6" % soff_reg)
    a.e("v_mov_b32 v4, 1")
    a.e("v_cmp_gt_u32 vcc, %d, v1" % nrep)
    a.e("s_nop 1")
    a.e("s_and_saveexec_b64 s[90:91], vcc")
    a.e("buffer_store_dword v4, v6, s[52:55], 0 offen sc1")
    a.e("s_mov_b64 exec, s[90:91]")

def wait_flags(a, tag, soff_reg, mask):
    base(a, 52, WS, "0x%x" % WS_F, F_BYTES)
    a.e("v_and_b32 v4, %d, v1" % mask); a.e("v_lshlrev_b32 v4, 2, v4")
    poll(a, tag, 52, "v4", "s%d" % soff_reg)

AX = 32
AA = 64
AQ = 100
A_XD0, A_XD1, A_WD, A_KD = 204, 205, 206, 207
A_XR, A_WR, A_KR = 208, 212, 214
LA_W, LA_KV, LA_X = 0, 32768, 49152

def a1_setup(a):
    a.e("v_lshrrev_b32 v3, 3, v1")
    a.e("v_lshrrev_b32 v4, 4, v1")
    a.e("v_and_b32 v5, 7, v1")
    a.e("v_xor_b32 v4, v4, v5")
    a.e("v_lshlrev_b32 v4, 4, v4")
    a.e("v_lshl_add_u32 v%d, v3, 11, v4" % A_XD0)
    a.e("v_xor_b32 v%d, 64, v%d" % (A_XD1, A_XD0))
    a.e("v_bfe_u32 v4, v1, 4, 1"); a.e("v_lshlrev_b32 v4, 2, v4"); a.e("v_xor_b32 v4, v4, v5"); a.e("v_lshlrev_b32 v4, 4, v4")
    a.e("v_lshl_add_u32 v%d, v3, 11, v4" % A_WD)
    a.e("v_lshrrev_b32 v3, 2, v1"); a.e("v_and_b32 v4, 3, v1"); a.e("v_lshlrev_b32 v4, 4, v4")
    a.e("v_lshl_add_u32 v%d, v3, 6, v4" % A_KD)
    a.e("s_lshl_b32 s91, s%d, 7" % SMT); a.e("s_lshl_b32 s92, s%d, 5" % SW); a.e("s_add_u32 s91, s91, s92"); a.e("s_lshl_b32 s91, s91, 11")
    for q in range(4): a.e("s_add_u32 s%d, s91, %d" % (28 + q, q * (8 * 2048 - 1024)))
    a.e("s_lshl_b32 s33, s%d, 15" % SW); a.e("s_add_u32 s32, s33, %d" % (8 * 2048 - 1024))
    a.e("s_lshl_b32 s34, s%d, 10" % SW)
    a.e("s_lshl_b32 s35, s%d, 11" % SW)
    a.e("s_lshl_b32 s36, s%d, 10" % SW); a.e("s_add_u32 s36, s36, %d" % LA_KV)
    a.e("s_lshl_b32 s37, s%d, 13" % SW); a.e("s_add_u32 s37, s37, %d" % LA_X)

def a1_reads_setup(a):
    a.e("v_and_b32 v3, 31, v1"); a.e("v_lshrrev_b32 v4, 5, v1")
    a.e("v_bfe_u32 v5, v3, 1, 3"); a.e("v_xor_b32 v5, v5, v4"); a.e("v_lshlrev_b32 v5, 4, v5")
    a.e("v_lshl_add_u32 v5, v3, 7, v5"); a.e("v_add_u32 v5, s37, v5")
    for kk in range(4): a.e("v_xor_b32 v%d, %d, v5" % (A_XR + kk, kk * 32))
    a.e("v_bfe_u32 v6, v1, 2, 2"); a.e("v_bfe_u32 v5, v1, 4, 1"); a.e("v_and_b32 v7, 3, v1")
    a.e("v_lshlrev_b32 v3, 5, v5"); a.e("v_lshl_add_u32 v3, v7, 3, v3")
    a.e("v_lshl_add_u32 v4, v4, 3, v6")
    a.e("v_lshrrev_b32 v5, 1, v6"); a.e("v_lshl_add_u32 v5, v5, 6, v3")
    a.e("v_lshl_add_u32 v%d, v4, 7, v5" % A_WR); a.e("v_xor_b32 v%d, 64, v%d" % (A_WR + 1, A_WR))
    a.e("v_lshl_add_u32 v%d, v4, 6, v3" % A_KR); a.e("v_add_u32 v%d, %d, v%d" % (A_KR, LA_KV, A_KR))

def burst_a(a):
    burst(a, 220, 221)

def gen_a1(a, name, kind):
    NU = 16
    uid = {}; xid = {}
    def wdma1(u, p):
        if p == 0:
            a.set_m0(35, LA_W + (u % 4) * 8192)
            uid[u] = a.vm("buffer_load_dwordx4 v%d, s[8:11], s33 offen lds" % A_WD)
        elif p == 1:
            a.set_m0(35, LA_W + (u % 4) * 8192)
            uid[u] = a.vm("buffer_load_dwordx4 v%d, s[8:11], s32 offen offset:1024 lds" % A_WD)
            if LAT_A1 and (u + 1) % LATC == 0:
                if u + 1 < NU: lat_base(a, 8, 48, (u + 1) // LATC, 59, LATN, LATC * 64 * 2048)
            else: add64(a, 8, 64 * 2048)
        else:
            a.set_m0(36, (u % 4) * 4096)
            uid[u] = a.vm("buffer_load_dwordx4 v%d, s[12:15], s34 offen lds" % A_KD)
            if LAT_A1 and (u + 1) % LATC == 0:
                if u + 1 < NU: lat_base(a, 12, 50, (u + 1) // LATC, 59, LATN, LATC * 64 * 64)
            else: add64(a, 12, 64 * 64)
    NWP = 3 if kind else 2
    def wdma(u):
        for p in range(NWP): wdma1(u, p)
    def xdma1(u, q):
        a.set_m0(37, (u % 2) * 4096)
        xid[u] = a.vm("buffer_load_dwordx4 v%d, s[4:7], s%d offen offset:%d lds" % (A_XD0 + (q & 1), 28 + q, q * 1024))
        if q == 3:
            if LAT_A1 and (u + 1) % LATC == 0:
                if u + 1 < NU: lat_base(a, 4, X, (u + 1) // LATC, 59, LATN, LATC * 128)
            else: add64(a, 4, 128)
    def xdma(u):
        for q in range(4): xdma1(u, q)
    wdma(0); xdma(0); xdma(1); wdma(1)
    a1_reads_setup(a)
    if PF_W1:
        a.e("s_mul_i32 s91, s%d, 448" % SNT); a.e("s_and_b32 s91, s91, 0xffffff80")
        base(a, 16, W1, "s91", 1024 * 7168)
        a.e("s_and_b32 s91, s%d, 3" % SMT); a.e("s_lshl_b32 s91, s91, 4")
        a.e("v_lshrrev_b32 v3, 2, v1"); a.e("v_add_u32 v3, s91, v3"); a.e("s_movk_i32 s91, 7168"); a.e("v_mul_lo_u32 v3, v3, s91")
        a.e("v_and_b32 v4, 3, v1"); a.e("v_lshl_add_u32 v215, v4, 7, v3")
        a.e("s_mov_b32 s38, %d" % (2 * 64 * 7168))
    def pfa(uu, wave):
        lab = "%s_pa%d" % (name, uu)
        a.e("s_cmp_lg_u32 s%d, %d" % (SW, wave)); a.e("s_cbranch_scc1 %s" % lab)
        a.e("buffer_load_dword v217, v218, s[20:23], s39 offen")
        a.e("buffer_load_dword v217, v219, s[24:27], s38 offen")
        a.label(lab)
        a.e("s_add_u32 s39, s39, %d" % (64 * 2048)); a.e("s_add_u32 s38, s38, 128")
    if PF_A1:
        a.e("s_lshl_b32 s91, s%d, 7" % SNT)
        base(a, 20, WQ, "s91", 1024 * 2048)
        base(a, 24, X, None, 2048 * 2048)
        a.e("v_mov_b32 v4, 0x40000000"); a.e("v_cmp_le_u32 vcc, 16, v1")
        a.e("s_and_b32 s91, s%d, 3" % SMT); a.e("s_lshl_b32 s91, s91, 4"); a.e("v_add_u32 v3, s91, v1"); a.e("v_lshlrev_b32 v3, 11, v3")
        a.e("v_cndmask_b32 v218, v3, v4, vcc")
        a.e("s_and_b32 s91, s%d, 7" % SNT); a.e("s_lshl_b32 s91, s91, 4"); a.e("s_lshl_b32 s94, s%d, 7" % SMT); a.e("s_add_u32 s91, s91, s94")
        a.e("v_add_u32 v3, s91, v1"); a.e("v_lshlrev_b32 v3, 11, v3")
        a.e("v_cndmask_b32 v219, v3, v4, vcc")
        a.e("s_mov_b32 s39, %d" % (3 * 64 * 2048)); a.e("s_mov_b32 s38, %d" % (3 * 128))
    a.wait(vm=max(uid[0], xid[0]))
    a.e("s_cmp_lg_u32 s2, 0"); a.e("s_cbranch_scc1 %s_clrw" % name)
    a.e("s_waitcnt vmcnt(0)")
    a.label("%s_clrw" % name)
    a.e("s_barrier")
    a.stamp(1)
    wdma(2)
    if BURST: burst_a(a)
    if PF_A1:
        for uu in range(3, PF_A1): pfa(uu, uu & 3)
    a.e("s_cmp_lg_u32 s2, 0"); a.e("s_cbranch_scc1 %s_nopub" % name)
    a.e("s_cmp_lg_u32 s%d, 0" % SW); a.e("s_cbranch_scc1 %s_nopub" % name)
    base(a, 52, DBG, None, 256)
    a.e("v_lshlrev_b32 v6, 7, v1"); a.e("v_mov_b32 v4, 1")
    a.e("v_cmp_gt_u32 vcc, 2, v1"); a.e("s_nop 1")
    a.e("s_and_saveexec_b64 s[90:91], vcc")
    a.e("buffer_store_dword v4, v6, s[52:55], 0 offen sc1")
    a.e("s_mov_b64 exec, s[90:91]")
    a.label("%s_nopub" % name)
    xfr = {}; fr = {}
    def xread(u, kk):
        r = AX + 16 * (u % 2) + 4 * kk
        xfr[(u, kk)] = a.ds("ds_read_b128 v[%d:%d], v%d offset:%d" % (r, r + 3, A_XR + kk, (u % 2) * 4096))
    def reads(g):
        u, kk = g // 4, g % 4
        f = g % 3; b = AA + 12 * f
        so = LA_W + (u % 4) * 8192 + kk * 2048
        for ng in range(2):
            a.ds("ds_read_b64_tr_b16 v[%d:%d], v%d offset:%d" % (b + 4 * ng, b + 4 * ng + 1, A_WR + ng, so))
            fr[g] = a.ds("ds_read_b64_tr_b16 v[%d:%d], v%d offset:%d" % (b + 4 * ng + 2, b + 4 * ng + 3, A_WR + ng, so + 512))
        if kind:
            so = (u % 4) * 4096 + kk * 1024
            a.ds("ds_read_b64_tr_b16 v[%d:%d], v%d offset:%d" % (b + 8, b + 9, A_KR, so))
            fr[g] = a.ds("ds_read_b64_tr_b16 v[%d:%d], v%d offset:%d" % (b + 10, b + 11, A_KR, so + 256))
    for kk in range(4): xread(0, kk)
    reads(0); reads(1)
    pend = []
    for g in range(NU * 4):
        u, kk = g // 4, g % 4
        f = g % 3; b = AA + 12 * f
        if kk == 0 and u + 2 < NU and u >= 0 and (u + 2) not in xid:
            pass
        if ASW and kk == 0 and u == ASW[0]: a.e("s_setprio %d" % ASW[1])
        if kk == 2 and u + 1 < NU:
            a.wait(vm=uid[u + 1]); a.e("s_barrier")
        if g + 2 < NU * 4: reads(g + 2)
        if kk >= 2 and u + 1 < NU:
            a.wait(vm=xid[u + 1])
            xread(u + 1, 2 * (kk - 2)); xread(u + 1, 2 * (kk - 2) + 1)
        a.wait(lg=max(fr[g], xfr[(u, kk)]))
        xb = AX + 16 * (u % 2) + 4 * kk
        def pop():
            if pend:
                f, i0, i1 = pend.pop(0); f(i0, i1)
        if kk == 0 and u + 2 < NU:
            a.wait(lg=xfr[(u, 3)])
            pend += [(xdma1, u + 2, q) for q in range(4)]
        if kk == 2 and u + 3 < NU:
            pend += [(wdma1, u + 3, p) for p in range(NWP)]
        M32(a, AQ, b, xb, "0" if g == 0 else AQ)
        pop()
        M32(a, AQ + 16, b + 4, xb, "0" if g == 0 else AQ + 16)
        pop()
        if kind == "K": M32(a, AQ + 32, b + 8, xb, "0" if g == 0 else AQ + 32)
        if kind == "V": M32(a, AQ + 32, xb, b + 8, "0" if g == 0 else AQ + 32)
        if kk == 3:
            while pend: pop()
        if kk == 1 and PF_W1 and u + 2 < NU:
            lab = "%s_pf%d" % (name, u)
            a.e("s_cmp_lg_u32 s%d, %d" % (SW, u & 3)); a.e("s_cbranch_scc1 %s" % lab)
            a.e("buffer_load_dword v216, v215, s[16:19], s38 offen")
            a.label(lab)
            a.e("s_add_u32 s38, s38, %d" % (64 * 7168))
        if kk == 2 and PF_A1 and u + PF_A1 < NU: pfa(u + PF_A1, u & 3)
        if kk == 3 and u == 9: early_cleared(a, name + "_ec")
    a.stamp(2)
    a.e("s_nop 15")
    for c in range(2):
        for k in range(8):
            r = AQ + 16 * c + 2 * k
            a.e("v_pk_mul_f32 v[%d:%d], v[%d:%d], s[44:45]" % (r, r + 1, r, r + 1))
        for k in range(8):
            r = AQ + 16 * c + 2 * k
            a.e("v_cvt_pk_bf16_f32 v%d, v%d, v%d" % (VQ[c] + k, r, r + 1))
    if kind:
        for k in range(8): a.e("v_cvt_pk_bf16_f32 v%d, v%d, v%d" % (AX + k, AQ + 32 + 2 * k, AQ + 33 + 2 * k))
        base(a, 8, WS, "0x%x" % WS_KV, 64 * 4096)
        a.e("s_lshl_b32 s91, s%d, 2" % SMT); a.e("s_add_u32 s91, s91, s%d" % SW); a.e("s_lshl_b32 s91, s91, 12")
        o = 0 if kind == "K" else 2048
        a.e("buffer_store_dwordx4 v[%d:%d], v2, s[8:11], s91 offen offset:%d sc1" % (AX, AX + 3, o))
        a.e("buffer_store_dwordx4 v[%d:%d], v2, s[8:11], s91 offen offset:%d sc1" % (AX + 4, AX + 7, o + 1024))
    a.e("s_waitcnt vmcnt(0) lgkmcnt(0)")
    if DIAG == "kv": a.stamp(3, force=True)
    a.e("s_barrier")
    a.reset_counts()

def koff(t): return ((t // 4) % 4) * 16384 + (t % 4) * 4096
def kv_dma(a, slot):
    a.e("s_add_u32 m0, s30, %d" % (slot * 16384))
    a.e("s_add_u32 s31, s31, 16384")
    for q in range(4):
        a.e("buffer_load_dwordx4 v2, s[8:11], s31 offen offset:%d sc1 lds" % (q * 1024))
def rowmax(a, c):
    S = VS[c]
    a.e("v_max3_f32 v4, v%d, v%d, v%d" % (S, S + 1, S + 2))
    for k in range(3, 15, 2): a.e("v_max3_f32 v4, v4, v%d, v%d" % (S + k, S + k + 1))
    a.e("v_max_f32 v4, v4, v%d" % (S + 15))
def set_negm(a, c, src):
    a.e("v_mov_b32 v5, v%d" % src); a.e("v_mov_b32 v6, v%d" % src)
    a.e("s_nop 1"); a.e("v_permlane32_swap_b32 v5, v6"); a.e("s_nop 1")
    a.e("v_max_f32 v5, v5, v6"); a.e("v_sub_f32 v5, 0, v5")
    for k in range(16): a.e("v_mov_b32 v%d, v5" % (VNM[c] + k))

def gen_gate(a):
    G = GATE
    a.e("v_mov_b32 v4, 0"); a.e("v_mov_b32 v5, 0"); a.e("s_nop 0")
    for k in range(8):
        a.e("v_dot2c_f32_bf16 v4, v%d, v%d" % (G + 8 + k, G + k))
        a.e("v_dot2c_f32_bf16 v5, v%d, v%d" % (G + 16 + k, G + k))
    a.e("s_nop 2")
    for sh in (1, 2, 4, 8):
        for r in (4, 5): a.e("v_add_f32_dpp v%d, v%d, v%d row_shr:%d row_mask:0xf bank_mask:0xf bound_ctrl:0" % (r, r, r, sh))
        a.e("s_nop 0")
    for r in (4, 5): a.e("v_add_f32_dpp v%d, v%d, v%d row_bcast:15 row_mask:0xa bank_mask:0xf" % (r, r, r))
    a.e("s_nop 0")
    for r in (4, 5): a.e("v_add_f32_dpp v%d, v%d, v%d row_bcast:31 row_mask:0xc bank_mask:0xf" % (r, r, r))
    a.e("s_nop 0")
    for r in (4, 5): a.e("v_mul_f32 v%d, 0x%x, v%d" % (r, f2u(-LOG2E), r))
    for r in (4, 5): a.e("v_exp_f32 v%d, v%d" % (r, r))
    a.e("s_nop 0")
    for r in (4, 5): a.e("v_add_f32 v%d, 1.0, v%d" % (r, r))
    for r in (4, 5): a.e("v_rcp_f32 v%d, v%d" % (r, r))
    base(a, 24, WS, "0x%x" % WS_G, 256 * 128)
    a.e("s_lshl_b32 s91, s%d, 4" % SMT); a.e("s_add_u32 s91, s91, s%d" % SNT); a.e("s_lshl_b32 s91, s91, 7")
    a.e("s_lshl_b32 s94, s%d, 3" % SW); a.e("s_add_u32 s91, s91, s94")
    a.e("v_mov_b32 v6, s91")
    a.e("v_cmp_eq_u32 vcc, 63, v1"); a.e("s_nop 1")
    a.e("s_and_saveexec_b64 s[90:91], vcc")
    a.e("buffer_store_dwordx2 v[4:5], v6, s[24:27], 0 offen sc1")
    a.e("s_mov_b64 exec, s[90:91]")

def gen_attn(a, name):
    a.e("s_cmp_lg_u32 s%d, 0" % SW); a.e("s_cbranch_scc1 %s_kvw" % name)
    check_cleared(a, name + "_clr")
    a.e("s_cmp_ge_u32 s%d, 2" % SNT); a.e("s_cbranch_scc1 %s_nokvsig" % name)
    a.e("s_lshl_b32 s28, s%d, 1" % SMT); a.e("s_add_u32 s28, s28, s%d" % SNT); a.e("s_lshl_b32 s28, s28, 2"); a.e("s_add_u32 s28, s28, %d" % F_KV)
    set_flag(a, 28, nrep=KVREP)
    a.label("%s_nokvsig" % name)
    if DIAG == "kv": a.stamp(4, force=True)
    a.e("s_and_b32 s28, s2, %d" % (KVREP - 1)); a.e("s_lshl_b32 s28, s28, 8"); a.e("s_add_u32 s28, s28, %d" % F_KV)
    if "nokvwait" not in EXP: wait_flags(a, name + "_kvp", 28, 31)
    if DIAG == "kv": a.stamp(5, force=True)
    a.label("%s_kvw" % name)
    a.e("s_barrier")
    a.e("s_setprio %d" % PRIO["attn"])
    a.e("s_lshl_b32 s38, s%d, 2" % SMT); a.e("s_add_u32 s38, s38, s%d" % SW); a.e("s_lshl_b32 s38, s38, 6")
    a.e("s_lshl_b32 s91, s%d, 2" % SNT); a.e("s_add_u32 s38, s38, s91"); a.e("s_lshl_b32 s38, s38, 10")
    a.e("s_lshl_b32 s30, s%d, 12" % SW)
    a.e("s_mov_b32 s39, 0")
    base(a, 8, WS, "0x%x" % WS_KV, 64 * 4096)
    base(a, 12, WS, "0x%x" % WS_O, 4 << 20)
    a.label("%s_pass" % name)
    a.e("s_sub_u32 s31, s30, 16384")
    kv_dma(a, 0)
    a.e("v_mov_b32 v4, 0x%x" % FLAG); a.e("v_mov_b32 v5, 0")
    a.e("ds_write_b32 v4, v5")
    a.e("v_bfe_u32 v4, v1, 2, 1"); a.e("v_bfe_u32 v5, v1, 4, 1")
    a.e("v_cmp_eq_u32 vcc, v4, v5")
    a.e("v_mov_b32 v6, 0x3f803f80"); a.e("v_mov_b32 v7, 0")
    for k in range(4): a.e("v_cndmask_b32 v%d, v7, v6, vcc" % (VSEL + k))
    for c in range(2):
        for k in range(16): a.e("v_mov_b32 v%d, 0" % (VO[c] + k))
        for k in range(4): a.e("v_mov_b32 v%d, 0" % (VL[c] + k))
    for k in range(4): a.e("v_mov_b32 v%d, 0" % (VP[1] + 4 + k))
    for k in range(4): a.e("v_mov_b32 v%d, 0" % (VV + 4 + k))
    a.e("s_waitcnt vmcnt(0) lgkmcnt(0)")
    a.e("s_barrier")
    if DIAG == "kv": a.stamp(6, force=True); a.nostamp = True
    a.stamp(3)
    a.e("ds_read_b128 v[%d:%d], v2 offset:0" % (VK, VK + 3))
    a.e("ds_read_b128 v[%d:%d], v2 offset:1024" % (VK + 4, VK + 7))
    kv_dma(a, 1); kv_dma(a, 2)
    a.e("s_cmp_lg_u32 s39, 0")
    a.e("s_cbranch_scc1 %s_havemax" % name)
    base(a, 20, X, None, 2048 * 2048)
    base(a, 24, GW, None, 2048)
    a.e("s_lshl_b32 s91, s%d, 4" % SMT); a.e("s_add_u32 s91, s91, s%d" % SNT); a.e("s_lshl_b32 s91, s91, 2"); a.e("s_add_u32 s91, s91, s%d" % SW)
    a.e("s_lshl_b32 s28, s91, 12")
    a.e("v_lshlrev_b32 v3, 5, v1")
    G = GATE
    a.e("buffer_load_dwordx4 v[%d:%d], v3, s[24:27], 0 offen" % (G, G + 3))
    a.e("buffer_load_dwordx4 v[%d:%d], v3, s[24:27], 0 offen offset:16" % (G + 4, G + 7))
    a.e("buffer_load_dwordx4 v[%d:%d], v3, s[20:23], s28 offen" % (G + 8, G + 11))
    a.e("buffer_load_dwordx4 v[%d:%d], v3, s[20:23], s28 offen offset:16" % (G + 12, G + 15))
    a.e("buffer_load_dwordx4 v[%d:%d], v3, s[20:23], s28 offen offset:2048" % (G + 16, G + 19))
    a.e("buffer_load_dwordx4 v[%d:%d], v3, s[20:23], s28 offen offset:2064" % (G + 20, G + 23))
    a.e("s_waitcnt lgkmcnt(0)")
    for c in range(2):
        M32(a, VS[c], VK, VQ[c], "0")
        M32(a, VS[c], VK + 4, VQ[c] + 4, VS[c])
    a.e("s_nop 15")
    for c in range(2):
        rowmax(a, c); set_negm(a, c, 4)
    a.label("%s_havemax" % name)
    a.e("s_waitcnt lgkmcnt(0)")
    a.e("s_nop 0")
    M32(a, VS[0], VK, VQ[0], VNM[0])
    M32(a, VS[0], VK + 4, VQ[0] + 4, VS[0])
    a.e("ds_read_b128 v[%d:%d], v2 offset:%d" % (VV, VV + 3, 2048))
    a.e("s_nop 15")
    if PF_W2:
        a.e("s_lshl_b32 s91, s%d, 7" % SNT)
        base(a, 16, W2, "s91", 3584 * 2048)
        base(a, 40, WO, "s91", 1024 * 2048)
        a.e("s_and_b32 s91, s%d, 3" % SMT); a.e("s_lshl_b32 s91, s91, 4")
        a.e("v_lshrrev_b32 v3, 4, v1"); a.e("v_lshlrev_b32 v3, 6, v3"); a.e("v_and_b32 v4, 15, v1"); a.e("v_add_u32 v3, v3, v4"); a.e("v_add_u32 v3, s91, v3")
        a.e("v_lshlrev_b32 v215, 11, v3")
        a.e("s_mov_b32 s29, 0"); a.e("s_mov_b32 s32, 0")
    dbg_mark(a, name + "_m1", 5)
    a.e("s_mov_b32 s33, 4")
    a.label("%s_loop" % name)
    for i in range(16):
        ex = None
        if i % 4 == 3:
            a.e("s_waitcnt vmcnt(4)")
            a.e("s_barrier")
            slot = (i // 4 + 3) % 4
            ex = [["s_add_u32 m0, s30, %d" % (slot * 16384), "s_add_u32 s31, s31, 16384", "buffer_load_dwordx4 v2, s[8:11], s31 offen sc1 lds"]]
            ex += [["buffer_load_dwordx4 v2, s[8:11], s31 offen offset:%d sc1 lds" % (q * 1024)] for q in range(1, 4)]
        A.phase(a.e, 0, i, koff, extra=ex)
        if i % 4 == 0 and PF_W2:
            lab = "%s_pf2_%d" % (name, i)
            a.e("s_cmp_lg_u32 s%d, %d" % (SW, i // 4)); a.e("s_cbranch_scc1 %s" % lab)
            a.e("buffer_load_dword v216, v215, s[16:19], s29 offen")
            a.e("s_cmp_lg_u32 s33, 1"); a.e("s_cbranch_scc1 %s" % lab)
            a.e("buffer_load_dword v217, v215, s[40:43], s32 offen")
            a.label(lab)
            a.e("s_add_u32 s29, s29, %d" % (4 * 64 * 2048))
            a.e("s_cmp_lg_u32 s33, 1"); a.e("s_cbranch_scc1 %s_n" % lab)
            a.e("s_add_u32 s32, s32, %d" % (4 * 64 * 2048))
            a.label("%s_n" % lab)
        A.phase(a.e, 1, i, koff)
    a.e("s_cmp_lg_u32 s33, 4")
    a.e("s_cbranch_scc1 %s_nog2" % name)
    a.e("s_cmp_lg_u32 s39, 0")
    a.e("s_cbranch_scc1 %s_nog2" % name)
    gen_gate(a)
    a.label("%s_nog2" % name)
    a.e("s_sub_u32 s33, s33, 1")
    a.e("s_cmp_lg_u32 s33, 0")
    a.e("s_cbranch_scc1 %s_loop" % name)
    a.e("s_waitcnt vmcnt(0) lgkmcnt(0)")
    M32(a, VO[1], VV + 4, VP[1] + 4, VO[1])
    M16(a, VL[1], VSEL, VP[1] + 4, VL[1])
    a.stamp(4)
    a.e("s_nop 15")
    a.e("v_mov_b32 v5, 0x%x" % f2u(2.0 ** 30))
    a.e("v_mov_b32 v7, 0")
    a.e("s_mov_b64 s[34:35], 0")
    for c in range(2):
        a.e("v_rcp_f32 v4, v%d" % VL[c])
        a.e("v_cmp_nle_f32 vcc, v%d, v5" % VL[c])
        a.e("s_or_b64 s[34:35], s[34:35], vcc")
        for k in range(16): a.e("v_mul_f32 v%d, v%d, v4" % (VO[c] + k, VO[c] + k))
        for k in range(16): a.e("v_fma_f32 v7, v%d, 0, v7" % (VO[c] + k))
    a.e("v_cmp_u_f32 vcc, v7, v7")
    a.e("s_or_b64 s[34:35], s[34:35], vcc")
    for c in range(2):
        for k in range(8): a.e("v_cvt_pk_bf16_f32 v%d, v%d, v%d" % (VT + 8 * c + k, VO[c] + 2 * k, VO[c] + 2 * k + 1))
    for c in range(2):
        for m in range(2):
            a.e("buffer_store_dwordx4 v[%d:%d], v2, s[12:15], s38 offen offset:%d sc1" % (VT + 8 * c + 4 * m, VT + 8 * c + 4 * m + 3, c * 2048 + m * 1024))
    a.e("s_cmp_lg_u32 s39, 0")
    a.e("s_cbranch_scc1 %s_ok" % name)
    a.e("s_cmp_eq_u64 s[34:35], 0")
    a.e("s_cbranch_scc1 %s_ok" % name)
    a.e("v_mov_b32 v4, 0x%x" % FLAG); a.e("v_mov_b32 v5, 1")
    a.e("ds_write_b32 v4, v5")
    a.label("%s_ok" % name)
    a.e("s_waitcnt vmcnt(0) lgkmcnt(0)")
    a.e("s_barrier")
    a.e("v_mov_b32 v4, 0x%x" % FLAG)
    a.e("ds_read_b32 v5, v4")
    a.e("s_waitcnt lgkmcnt(0)")
    a.e("v_readfirstlane_b32 s36, v5")
    a.e("s_nop 3")
    a.e("s_cmp_eq_u32 s36, 0")
    a.e("s_cbranch_scc1 %s_store" % name)
    a.e("s_cmp_lg_u32 s39, 0")
    a.e("s_cbranch_scc1 %s_store" % name)
    a.e("s_barrier")
    a.e("s_mov_b32 s39, 1")
    a.e("v_mov_b32 v%d, 0xff800000" % VT)
    a.e("v_mov_b32 v%d, 0xff800000" % (VT + 1))
    a.e("s_mov_b32 s37, 0")
    a.label("%s_mx" % name)
    a.e("buffer_load_dwordx4 v[%d:%d], v2, s[8:11], s37 offen sc1" % (VK, VK + 3))
    a.e("buffer_load_dwordx4 v[%d:%d], v2, s[8:11], s37 offen offset:1024 sc1" % (VK + 4, VK + 7))
    a.e("s_waitcnt vmcnt(0)")
    for c in range(2):
        M32(a, VS[c], VK, VQ[c], "0")
        M32(a, VS[c], VK + 4, VQ[c] + 4, VS[c])
    a.e("s_nop 15")
    for c in range(2):
        for k in range(0, 16, 2): a.e("v_max3_f32 v%d, v%d, v%d, v%d" % (VT + c, VT + c, VS[c] + k, VS[c] + k + 1))
    a.e("s_add_u32 s37, s37, 4096")
    a.e("s_cmp_lt_u32 s37, %d" % (64 * 4096))
    a.e("s_cbranch_scc1 %s_mx" % name)
    for c in range(2): set_negm(a, c, VT + c)
    a.e("s_branch %s_pass" % name)
    a.label("%s_store" % name)
    a.e("s_cmp_lg_u32 s%d, 0" % SW)
    a.e("s_cbranch_scc1 %s_nosig" % name)
    a.e("s_lshl_b32 s28, s%d, 8" % SMT); a.e("s_lshl_b32 s91, s%d, 2" % SNT); a.e("s_add_u32 s28, s28, s91"); a.e("s_add_u32 s28, s28, %d" % F_O)
    set_flag(a, 28, nrep=1)
    a.label("%s_nosig" % name)
    dbg_mark(a, name + "_m2", 6)
    a.stamp(5)
    a.stamp_flush(WS, WS + 1, WS_PROF, SW, 4)
    a.e("s_endpgm")

def gen_role_a(a, name):
    if PRIO["a1"]: a.e("s_setprio %d" % PRIO["a1"])
    a1_setup(a)
    a.e("s_mov_b32 s44, 0x%x" % f2u(QSCALE)); a.e("s_mov_b32 s45, s44")
    a.e("s_lshl_b32 s94, s%d, 7" % SNT)
    a.e("s_waitcnt lgkmcnt(0)")
    a.e("s_cmp_lg_u32 s2, 0"); a.e("s_cbranch_scc1 %s_noclr" % name)
    base(a, 52, WS, "0x%x" % WS_F, F_BYTES)
    a.e("s_lshl_b32 s91, s%d, 12" % SW)
    for k in range(4): a.e("v_mov_b32 v%d, 0" % (8 + k))
    for k in range(4): a.e("buffer_store_dwordx4 v[8:11], v2, s[52:55], s91 offen offset:%d sc1" % (k * 1024))
    a.label("%s_noclr" % name)
    base(a, 8, WQ, "s94", 1024 * 2048)
    base(a, 4, X, None, 2048 * 2048)
    if LAT_A1:
        lat_r(a, 59, LATN)
        a.e("s_mov_b32 s48, s8"); a.e("s_mov_b32 s49, s9")
        lat_base(a, 8, 48, 0, 59, LATN, LATC * 64 * 2048)
        lat_base(a, 4, X, 0, 59, LATN, LATC * 128)
    a.e("s_cmp_eq_u32 s%d, 0" % SNT); a.e("s_cbranch_scc1 %s_aK" % name)
    a.e("s_cmp_eq_u32 s%d, 1" % SNT); a.e("s_cbranch_scc1 %s_aV" % name)
    gen_a1(a, name + "_n", None)
    a.e("s_branch %s_attn" % name)
    a.label("%s_aK" % name); a.reset_counts()
    base(a, 12, WK, None, 1024 * 64)
    if LAT_A1:
        a.e("s_mov_b32 s50, s12"); a.e("s_mov_b32 s51, s13")
        lat_base(a, 12, 50, 0, 59, LATN, LATC * 64 * 64)
    gen_a1(a, name + "_k", "K")
    a.e("s_branch %s_attn" % name)
    a.label("%s_aV" % name); a.reset_counts()
    base(a, 12, WV, None, 1024 * 64)
    if LAT_A1:
        a.e("s_mov_b32 s50, s12"); a.e("s_mov_b32 s51, s13")
        lat_base(a, 12, 50, 0, 59, LATN, LATC * 64 * 64)
    gen_a1(a, name + "_v", "V")
    a.label("%s_attn" % name)
    gen_attn(a, name)

BW = [8, 36]
BX = [64, 80]
HAC = 100
HB = 212
B_XD, B_WD, B_XR, B_BI, B_WR = 240, 241, 243, 245, 246
LB_X, LB_W = 0, 32768
def hacc(j, tb): return HAC + 16 * j + 4 * tb

def b1_setup(a):
    a.e("v_lshrrev_b32 v3, 3, v1"); a.e("v_and_b32 v4, 6, v3"); a.e("v_and_b32 v5, 7, v1"); a.e("v_xor_b32 v4, v4, v5")
    a.e("v_lshlrev_b32 v4, 4, v4"); a.e("v_lshl_add_u32 v%d, v3, 11, v4" % B_XD)
    a.e("s_lshl_b32 s91, s%d, 7" % SMT); a.e("s_lshl_b32 s92, s%d, 5" % SW); a.e("s_add_u32 s91, s91, s92"); a.e("s_lshl_b32 s91, s91, 11")
    for q in range(4): a.e("s_add_u32 s%d, s91, %d" % (28 + q, q * (8 * 2048 - 1024)))
    a.e("s_lshl_b32 s35, s%d, 12" % SW); a.e("s_add_u32 s36, s35, %d" % LB_W)
    a.e("s_add_u32 s35, s35, %d" % LB_X)

def b1_setup_w(a):
    a.e("v_lshrrev_b32 v3, 5, v1"); a.e("v_bfe_u32 v4, v1, 1, 4"); a.e("v_and_b32 v9, 1, v1"); a.e("v_lshlrev_b32 v9, 4, v9")
    a.e("s_and_b32 s91, s%d, 1" % SW); a.e("s_lshl_b32 s91, s91, 2")
    a.e("v_or_b32 v5, s91, v3")
    a.e("v_mul_u32_u24 v8, 7168, v3"); a.e("v_add_u32 v8, v8, v9")
    a.e("v_mov_b32 v10, 0x40000000")
    for par in range(2):
        a.e("v_xor_b32 v6, %d, v5" % (2 * par))
        a.e("v_xor_b32 v6, v6, v4")
        a.e("v_lshl_add_u32 v7, v6, 5, v8")
        a.e("v_cmp_le_u32 vcc, 14, v6")
        a.e("s_nop 1")
        a.e("v_cndmask_b32 v%d, v7, v10, vcc" % (B_WD + par))

def b1_reads_setup(a):
    a.e("v_and_b32 v5, 15, v1"); a.e("v_lshrrev_b32 v6, 4, v1"); a.e("v_bfe_u32 v7, v1, 2, 2"); a.e("v_and_b32 v8, 3, v1")
    a.e("s_and_b32 s37, s%d, 1" % SW); a.e("s_lshr_b32 s38, s%d, 1" % SW)
    a.e("v_and_b32 v3, 6, v5"); a.e("v_xor_b32 v3, v3, v6"); a.e("v_lshlrev_b32 v4, 4, v3"); a.e("v_lshl_add_u32 v4, v5, 7, v4")
    a.e("s_lshl_b32 s91, s37, 13"); a.e("v_add_u32 v%d, s91, v4" % B_XR); a.e("v_xor_b32 v%d, 64, v%d" % (B_XR + 1, B_XR))
    a.e("v_and_b32 v3, 1, v6"); a.e("v_lshl_or_b32 v3, v3, 2, v7")
    a.e("v_lshl_add_u32 v4, v6, 3, v7"); a.e("v_lshlrev_b32 v4, 9, v4"); a.e("v_lshl_add_u32 v4, v8, 3, v4"); a.e("v_add_u32 v4, %d, v4" % LB_W)
    a.e("s_mul_i32 s91, s38, 7")
    for j in range(7):
        a.e("s_add_u32 s94, s91, %d" % j)
        a.e("v_xor_b32 v9, s94, v3")
        a.e("v_lshl_add_u32 v%d, v9, 5, v4" % (B_WR + j))
    a.e("v_lshlrev_b32 v%d, 3, v6" % B_BI)
    a.e("s_mul_i32 s39, s%d, 448" % SNT); a.e("s_mul_i32 s91, s38, 224"); a.e("s_add_u32 s39, s39, s91")

def b1_x0(a, xid):
    a.set_m0(35, 0)
    for q in range(4):
        xid[0] = a.vm("buffer_load_dwordx4 v%d, s[4:7], s%d offen offset:%d lds" % (B_XD, 28 + q, q * 1024))
    if LAT_B1 and LATC == 1: lat_base(a, 4, X, 1, 59, LATN, 128)
    elif ROT_B1: rot_adv(a, 4, X, 57, 128, 2048)
    else: add64(a, 4, 128)

def gen_b1(a, name, after_loop, xid):
    NH = 32
    wid = {}
    def wdma1(h, i):
        a.set_m0(36, (h % 3) * 16384)
        wid[h] = a.vm("buffer_load_dwordx4 v%d, s[8:11], s%d offen offset:%d lds" % (B_WD + (i & 1), 48 + i, i * 1024))
        if i == 3:
            if LAT_B1 and (h + 1) % (2 * LATC) == 0:
                if h + 1 < NH: lat_base(a, 8, 12, (h + 1) // (2 * LATC), 59, LATN, 2 * LATC * 32 * 7168)
            elif ROT_B1: rot_adv(a, 8, 12, 56, 32 * 7168, 1024 * 7168)
            else: add64(a, 8, 32 * 7168)
    def xdma1(s, q):
        a.set_m0(35, (s % 2) * 16384)
        xid[s] = a.vm("buffer_load_dwordx4 v%d, s[4:7], s%d offen offset:%d lds" % (B_XD, 28 + q, q * 1024))
        if q == 3:
            if LAT_B1 and (s + 1) % LATC == 0:
                if s + 1 < 16: lat_base(a, 4, X, (s + 1) // LATC, 59, LATN, LATC * 128)
            elif ROT_B1: rot_adv(a, 4, X, 57, 128, 2048)
            else: add64(a, 4, 128)
    def wdma(h):
        for i in range(4): wdma1(h, i)
    def xdma(s):
        for q in range(4): xdma1(s, q)
    wdma(0); wdma(1)
    b1_reads_setup(a)
    base(a, 24, B1P, None, 3584 * 2)
    bias = []
    for j in range(7):
        bias.append(a.vm("buffer_load_dwordx2 v[%d:%d], v%d, s[24:27], s39 offen offset:%d" % (HB + 4 * j, HB + 4 * j + 1, B_BI, 32 * j)))
    def pf(hh, wave):
        lab = "%s_pf%d" % (name, hh)
        a.e("s_cmp_lg_u32 s%d, %d" % (SW, wave)); a.e("s_cbranch_scc1 %s" % lab)
        a.e("buffer_load_dword v96, v97, s[16:19], s34 offen")
        a.label(lab)
        a.e("s_add_u32 s34, s34, %d" % (32 * 7168))
    def pfx(st, wave):
        lab = "%s_px%d" % (name, st)
        a.e("s_cmp_lg_u32 s%d, %d" % (SW, wave)); a.e("s_cbranch_scc1 %s" % lab)
        a.e("buffer_load_dword v96, v98, s[20:23], s39x offen".replace("s39x", "s58"))
        a.label(lab)
        a.e("s_add_u32 s58, s58, 128")
    if PF_BX:
        base(a, 20, X, None, 2048 * 2048)
        a.e("s_and_b32 s91, s%d, 7" % SNT); a.e("s_lshl_b32 s91, s91, 4"); a.e("s_lshl_b32 s94, s%d, 7" % SMT); a.e("s_add_u32 s91, s91, s94")
        a.e("v_add_u32 v3, s91, v1"); a.e("v_lshlrev_b32 v3, 11, v3"); a.e("v_mov_b32 v4, 0x40000000")
        a.e("v_cmp_le_u32 vcc, 16, v1"); a.e("s_nop 1"); a.e("v_cndmask_b32 v98, v3, v4, vcc")
        a.e("s_mov_b32 s58, %d" % (2 * 128))
    if PF_B1:
        a.e("s_mul_i32 s91, s%d, 448" % SNT); a.e("s_and_b32 s91, s91, 0xffffff80")
        base(a, 16, W1, "s91", 1024 * 7168)
        a.e("s_and_b32 s91, s%d, 3" % SMT); a.e("s_lshl_b32 s91, s91, 3")
        a.e("v_lshrrev_b32 v3, 2, v1"); a.e("v_add_u32 v3, s91, v3"); a.e("v_mul_u32_u24 v3, 7168, v3")
        a.e("v_and_b32 v4, 3, v1"); a.e("v_lshl_add_u32 v3, v4, 7, v3"); a.e("v_mov_b32 v4, 0x40000000")
        a.e("v_cmp_le_u32 vcc, 32, v1"); a.e("s_nop 1"); a.e("v_cndmask_b32 v97, v3, v4, vcc")
        a.e("s_mov_b32 s34, %d" % (3 * 32 * 7168))
    a.wait(vm=max(wid[0], xid[0])); a.e("s_barrier")
    a.stamp(1)
    if BPRO is not None: a.e("s_setprio %d" % PRIO["b1"])
    wdma(2); xdma(1)
    if BURST: burst(a)
    if PF_B1:
        for hh in range(3, PF_B1): pf(hh, hh & 3)
    if PF_BX:
        for st in range(2, PF_BX): pfx(st, st & 3)
    rd = {}
    def rlist(h):
        s, kk = h // 2, h % 2
        L = []
        for tb in range(4):
            r = BX[h % 2] + 4 * tb
            L.append("ds_read_b128 v[%d:%d], v%d offset:%d" % (r, r + 3, B_XR + kk, (s % 2) * 16384 + tb * 2048))
        for j in range(7):
            r = BW[h % 2] + 4 * j
            o = (h % 3) * 16384
            L.append("ds_read_b64_tr_b16 v[%d:%d], v%d offset:%d" % (r, r + 1, B_WR + j, o))
            L.append("ds_read_b64_tr_b16 v[%d:%d], v%d offset:%d" % (r + 2, r + 3, B_WR + j, o + 2048))
        return L
    for x in rlist(0): rd[0] = a.ds(x)
    a.wait(vm=bias[-1])
    for j in range(7):
        b = HB + 4 * j
        a.e("v_and_b32 v%d, 0xffff0000, v%d" % (b + 3, b + 1))
        a.e("v_lshlrev_b32 v%d, 16, v%d" % (b + 2, b + 1))
        a.e("v_and_b32 v%d, 0xffff0000, v%d" % (b + 1, b))
        a.e("v_lshlrev_b32 v%d, 16, v%d" % (b, b))
    for h in range(NH):
        s, kk = h // 2, h % 2
        need = None
        if h + 1 < NH:
            need = wid[h + 1]
            need = max(need, xid[(h + 1) // 2])
        a.wait(vm=need if "nowait" not in EXP else None, lg=rd[h])
        if "nobar" not in EXP: a.e("s_barrier")
        if DIAG == "b1" and h in (8, 16, 24): a.stamp(1 + h // 8, force=True)
        if B1SW and h == B1SW[0]: a.e("s_setprio %d" % B1SW[1])
        todo = rlist(h + 1) if h + 1 < NH else []
        if "nords" in EXP and todo: rd[h + 1] = a.lg_n - 1; todo = []
        dma = []
        if h + 3 < NH:
            if "now" in EXP: wid[h + 3] = a.vm_n - 1
            else: dma += [(wdma1, h + 3, i) for i in range(4)]
        if kk == 1 and s + 2 < 16:
            if "nox" in EXP: xid[s + 2] = a.vm_n - 1
            else: dma += [(xdma1, s + 2, q) for q in range(4)]
        if h == NH - 1: after_loop()
        if h == 16 and "noa" not in EXP: early_cleared(a, name + "_ec")
        n = 0
        for j in range(7):
            for tb in range(4):
                d = hacc(j, tb)
                c = "v[%d:%d]" % (HB + 4 * j, HB + 4 * j + 3) if h == 0 else "v[%d:%d]" % (d, d + 3)
                a.e("v_mfma_f32_16x16x32_bf16 v[%d:%d], v[%d:%d], v[%d:%d], %s" % (d, d + 3, BW[h % 2] + 4 * j, BW[h % 2] + 4 * j + 3, BX[h % 2] + 4 * tb, BX[h % 2] + 4 * tb + 3, c))
                n += 1
                if todo and n >= 1 and tb != 3:
                    rd[h + 1] = a.ds(todo.pop(0))
                if dma and (tb == 3 or (tb == 1 and j == 3)):
                    f, i0, i1 = dma.pop(0)
                    f(i0, i1)
                if tb == 3 and j == 4 and PF_B1 and h + PF_B1 < NH: pf(h + PF_B1, h & 3)
                if tb == 3 and j == 5 and PF_BX and kk == 0 and s + PF_BX < 16: pfx(s + PF_BX, s & 3)
        while todo: rd[h + 1] = a.ds(todo.pop(0))
        assert not dma
    a.stamp(5 if DIAG == "b1" else 2, force=True)
    if DIAG == "b1": a.nostamp = True

def b1_epilogue(a):
    a.e("s_mov_b32 s44, 0x%x" % f2u(LOG2E)); a.e("s_mov_b32 s45, s44")
    a.e("s_mov_b32 s46, 0x%x" % f2u(-2.0)); a.e("s_mov_b32 s47, s46")
    base(a, 20, WS, "0x%x" % WS_H, WS_H_BYTES)
    a.e("s_lshl_b32 s91, s%d, 2" % SMT); a.e("s_lshl_b32 s94, s37, 1"); a.e("s_add_u32 s91, s91, s94")
    a.e("s_mul_i32 s91, s91, 224"); a.e("s_mul_i32 s94, s%d, 14" % SNT); a.e("s_add_u32 s91, s91, s94")
    a.e("s_mul_i32 s94, s38, 7"); a.e("s_add_u32 s91, s91, s94"); a.e("s_lshl_b32 s56, s91, 10")
    a.e("s_add_u32 s57, s56, %d" % (224 * 1024))
    a.e("s_add_u32 s58, s56, 4096"); a.e("s_add_u32 s59, s57, 4096")
    a.e("s_nop 7")
    if MISH2:
        for j in range(7):
            P = [(hacc(j, 2 * p), HB + 16 * p) for p in range(2)]
            for Aa, t in P:
                for k in range(4): a.e("v_pk_mul_f32 v[%d:%d], v[%d:%d], s[44:45]" % (t + 2 * k, t + 2 * k + 1, Aa + 2 * k, Aa + 2 * k + 1))
            for Aa, t in P:
                for k in range(8): a.e("v_exp_f32 v%d, v%d" % (t + k, t + k))
            for Aa, t in P:
                for k in range(4): a.e("v_pk_add_f32 v[%d:%d], v[%d:%d], 2.0 op_sel_hi:[1,0]" % (t + 8 + 2 * k, t + 9 + 2 * k, t + 2 * k, t + 2 * k + 1))
            for Aa, t in P:
                for k in range(4): a.e("v_pk_fma_f32 v[%d:%d], v[%d:%d], v[%d:%d], 2.0 op_sel_hi:[1,1,0]" % (t + 2 * k, t + 2 * k + 1, t + 2 * k, t + 2 * k + 1, t + 8 + 2 * k, t + 9 + 2 * k))
            for Aa, t in P:
                for k in range(8): a.e("v_rcp_f32 v%d, v%d" % (t + k, t + k))
            for Aa, t in P:
                for k in range(4): a.e("v_pk_fma_f32 v[%d:%d], v[%d:%d], s[46:47], 1.0 op_sel_hi:[1,1,0]" % (t + 2 * k, t + 2 * k + 1, t + 2 * k, t + 2 * k + 1))
            for Aa, t in P:
                for k in range(4): a.e("v_pk_mul_f32 v[%d:%d], v[%d:%d], v[%d:%d]" % (t + 2 * k, t + 2 * k + 1, t + 2 * k, t + 2 * k + 1, Aa + 2 * k, Aa + 2 * k + 1))
            for Aa, t in P:
                for k in range(4): a.e("v_cvt_pk_bf16_f32 v%d, v%d, v%d" % (Aa + k, t + 2 * k, t + 2 * k + 1))
            a.e("s_nop 0")
            for Aa, t in P:
                a.e("v_permlane16_swap_b32 v%d, v%d" % (Aa, Aa + 2))
                a.e("v_permlane16_swap_b32 v%d, v%d" % (Aa + 1, Aa + 3))
            for p, (Aa, t) in enumerate(P):
                a.vm("buffer_store_dwordx4 v[%d:%d], v2, s[20:23], s%d offen offset:%d sc1" % (Aa, Aa + 3, (56 if j < 4 else 58) + p, (j % 4) * 1024))
        return
    cnt = 0
    for j in range(7):
        for pair in range(2):
            Aa = hacc(j, 2 * pair)
            t = HB + 16 * (cnt % 2); q = t + 12; cnt += 1
            if PKMISH:
                for k in range(4): a.e("v_pk_mul_f32 v[%d:%d], v[%d:%d], s[44:45]" % (t + 2 * k, t + 2 * k + 1, Aa + 2 * k, Aa + 2 * k + 1))
                for k in range(8): a.e("v_exp_f32 v%d, v%d" % (t + k, t + k))
                for k in range(4): a.e("v_pk_add_f32 v[%d:%d], v[%d:%d], 2.0 op_sel_hi:[1,0]" % (t + 8 + 2 * k, t + 9 + 2 * k, t + 2 * k, t + 2 * k + 1))
                for k in range(4): a.e("v_pk_fma_f32 v[%d:%d], v[%d:%d], v[%d:%d], 2.0 op_sel_hi:[1,1,0]" % (t + 2 * k, t + 2 * k + 1, t + 2 * k, t + 2 * k + 1, t + 8 + 2 * k, t + 9 + 2 * k))
                for k in range(8): a.e("v_rcp_f32 v%d, v%d" % (t + k, t + k))
                for k in range(4): a.e("v_pk_fma_f32 v[%d:%d], v[%d:%d], s[46:47], 1.0 op_sel_hi:[1,1,0]" % (t + 2 * k, t + 2 * k + 1, t + 2 * k, t + 2 * k + 1))
                for k in range(4): a.e("v_pk_mul_f32 v[%d:%d], v[%d:%d], v[%d:%d]" % (t + 2 * k, t + 2 * k + 1, t + 2 * k, t + 2 * k + 1, Aa + 2 * k, Aa + 2 * k + 1))
            else:
                for k in range(8): a.e("v_mul_f32 v%d, s44, v%d" % (t + k, Aa + k))
                for k in range(8): a.e("v_exp_f32 v%d, v%d" % (t + k, t + k))
                for k in range(8): a.e("v_add_f32 v%d, 2.0, v%d" % (t + 8 + k, t + k))
                for k in range(8): a.e("v_fma_f32 v%d, v%d, v%d, 2.0" % (t + k, t + k, t + 8 + k))
                for k in range(8): a.e("v_rcp_f32 v%d, v%d" % (t + k, t + k))
                for k in range(8): a.e("v_fma_f32 v%d, v%d, -2.0, 1.0" % (t + k, t + k))
                for k in range(8): a.e("v_mul_f32 v%d, v%d, v%d" % (t + k, t + k, Aa + k))
            for k in range(4): a.e("v_cvt_pk_bf16_f32 v%d, v%d, v%d" % (q + k, t + 2 * k, t + 2 * k + 1))
            a.e("s_nop 1")
            a.e("v_permlane16_swap_b32 v%d, v%d" % (q, q + 2))
            a.e("v_permlane16_swap_b32 v%d, v%d" % (q + 1, q + 3))
            if "nohstore" not in EXP: a.vm("buffer_store_dwordx4 v[%d:%d], v2, s[20:23], s%d offen offset:%d%s" % (q, q + 3, (56 if j < 4 else 58) + pair, (j % 4) * 1024, " sc1" if "plainh" not in EXP else ""))

NHR = 20; NWU = 8
BH = 32; BA = 144; BAC = 168; AAC = 200
POLL_U = 55; OBURST = 4; BB = 1
BSW = None
def gen_role_b(a, name):
    a.e("s_setprio %d" % (BPRO if BPRO is not None else PRIO["b1"]))
    for e in EXP:
        if e.startswith("bdelay"):
            for k in range(int(e[6:])): a.e("s_sleep 32")
    b1_setup(a)
    a.e("s_waitcnt lgkmcnt(0)")
    base(a, 4, X, None, 2048 * 2048)
    if LAT_B1:
        lat_r(a, 59, LATN)
        lat_base(a, 4, X, 0, 59, LATN, LATC * 128)
    if ROT_B1:
        a.e("s_add_u32 s91, s%d, s%d" % (SMT, SNT)); a.e("s_and_b32 s91, s91, 3"); a.e("s_mul_i32 s91, s91, %d" % ROT_B1)
        a.e("s_lshl_b32 s57, s91, 6")
        a.e("s_mul_i32 s56, s91, %d" % (32 * 7168))
        a.e("s_add_u32 s4, s%d, s57" % X); a.e("s_addc_u32 s5, s%d, 0" % (X + 1))
    xid0 = {}
    b1_x0(a, xid0)
    b1_setup_w(a)
    a.e("s_mul_i32 s94, s%d, 448" % SNT)
    a.e("s_add_u32 s92, s%d, s94" % W1); a.e("s_addc_u32 s93, s%d, 0" % (W1 + 1))
    srd(a, 8, 92, 93, 1024 * 7168)
    if LAT_B1:
        a.e("s_mov_b32 s12, s92"); a.e("s_mov_b32 s13, s93")
        lat_base(a, 8, 12, 0, 59, LATN, 2 * LATC * 32 * 7168)
    if ROT_B1:
        a.e("s_mov_b32 s12, s92"); a.e("s_mov_b32 s13, s93")
        a.e("s_add_u32 s8, s12, s56"); a.e("s_addc_u32 s9, s13, 0")
    a.e("s_mul_i32 s91, s%d, %d" % (SW, 8 * 7168))
    for i in range(4): a.e("s_add_u32 s%d, s91, %d" % (48 + i, i * (2 * 7168 - 1024)))
    NG = 288; NU = 72; GB = 224; UB = 56
    uid = {}; hid = {}
    st = dict(nu=0)
    def wdma(u):
        if "nobw" in EXP and 8 <= u < UB:
            uid[u] = a.vm_n - 1
            return
        sb = 16 if u < UB else 40
        a.set_m0(35, (u % NWU) * 8192)
        a.vm("buffer_load_dwordx4 v10, s[%d:%d], s33 offen lds" % (sb, sb + 3))
        uid[u] = a.vm("buffer_load_dwordx4 v10, s[%d:%d], s32 offen offset:1024 lds" % (sb, sb + 3))
        if LAT_B and (u + 1) % LBC == 0:
            if u + 1 < UB: lat_base(a, 16, 12, (u + 1) // LBC, 36, LBN, LBC * 64 * 2048)
            elif UB < u + 1 < NU: lat_base(a, 40, 14, (u + 1 - UB) // LBC, 36, LBN, LBC * 64 * 2048)
        else: add64(a, sb, 64 * 2048)
    def after_loop():
        a.e("v_lshrrev_b32 v3, 3, v1"); a.e("v_bfe_u32 v4, v1, 4, 1"); a.e("v_lshlrev_b32 v4, 2, v4"); a.e("v_and_b32 v5, 7, v1")
        a.e("v_xor_b32 v4, v4, v5"); a.e("v_lshlrev_b32 v4, 4, v4"); a.e("v_lshl_add_u32 v10, v3, 11, v4")
        a.e("s_lshl_b32 s33, s%d, 15" % SW); a.e("s_add_u32 s32, s33, %d" % (8 * 2048 - 1024))
        a.e("s_lshl_b32 s35, s%d, 11" % SW)
        a.e("s_lshl_b32 s34, s%d, 7" % SNT)
        base(a, 16, W2, "s34", 3584 * 2048)
        base(a, 40, WO, "s34", 1024 * 2048)
        if LAT_B:
            lat_r(a, 36, LBN)
            a.e("s_mov_b32 s12, s16"); a.e("s_mov_b32 s13, s17"); a.e("s_mov_b32 s14, s40"); a.e("s_mov_b32 s15, s41")
            lat_base(a, 16, 12, 0, 36, LBN, LBC * 64 * 2048)
            lat_base(a, 40, 14, 0, 36, LBN, LBC * 64 * 2048)
        a.cur_m0 = None
        for u in range(4): wdma(u)
        st["nu"] = 4
    gen_b1(a, name + "_b1", after_loop, xid0)
    if "b1only" in EXP:
        a.e("s_waitcnt vmcnt(0)")
        a.stamp_flush(WS, WS + 1, WS_PROF, SW, 4)
        a.e("s_endpgm")
        return
    if PRIO["mish"] != PRIO["b1"]: a.e("s_setprio %d" % PRIO["mish"])
    b1_epilogue(a)
    for u in range(4, NWU - 1): wdma(u)
    st["nu"] = NWU - 1
    a.e("s_waitcnt vmcnt(0)"); a.vm_done = a.vm_n
    a.e("s_barrier")
    a.e("s_cmp_lg_u32 s%d, 0" % SW); a.e("s_cbranch_scc1 %s_hw" % name)
    check_cleared(a, name + "_clrb")
    a.e("s_lshl_b32 s28, s%d, 8" % SMT); a.e("s_add_u32 s29, s28, %d" % F_H)
    a.e("s_lshl_b32 s91, s%d, 2" % SNT); a.e("s_add_u32 s28, s29, s91")
    set_flag(a, 28, nrep=1)
    a.stamp(3)
    if "nohwait" not in EXP: wait_flags(a, name + "_hp", 29, 15)
    a.label("%s_hw" % name)
    a.e("s_lshl_b32 s90, s%d, 2" % SMT); a.e("s_add_u32 s56, s90, s%d" % SW)
    a.e("s_mul_i32 s31, s56, %d" % (224 * 1024))
    a.e("s_lshl_b32 s38, s56, 16")
    if LAT_B:
        a.e("s_mov_b32 s57, s31"); a.e("s_mov_b32 s58, s38")
        lat_off(a, 31, 57, 0, 36, LBN, LBC * 4096)
        lat_off(a, 38, 58, 0, 36, LBN, LBC * 4096)
    base(a, 8, WS, "0x%x" % WS_H, WS_H_BYTES)
    base(a, 4, WS, "0x%x" % WS_O, 4 << 20)
    base(a, 20, WS, "0x%x" % WS_G, 256 * 128)
    base(a, 24, OUT, None, 2048 * 2048)
    a.e("v_lshrrev_b32 v3, 5, v1"); a.e("v_bfe_u32 v4, v1, 2, 2"); a.e("v_bfe_u32 v5, v1, 4, 1"); a.e("v_and_b32 v6, 3, v1")
    a.e("v_lshrrev_b32 v7, 1, v4"); a.e("v_lshlrev_b32 v7, 6, v7"); a.e("v_lshl_add_u32 v7, v5, 5, v7"); a.e("v_lshl_add_u32 v7, v6, 3, v7")
    a.e("v_lshl_add_u32 v8, v3, 3, v4"); a.e("v_lshl_add_u32 v12, v8, 7, v7"); a.e("v_xor_b32 v13, 64, v12")
    a.e("v_lshl_add_u32 v8, v3, 2, v4"); a.e("v_lshl_add_u32 v14, v8, 7, v7"); a.e("v_xor_b32 v15, 64, v14")
    a.e("v_and_b32 v4, 31, v1"); a.e("s_lshl_b32 s91, s56, 5"); a.e("v_add_u32 v4, s91, v4")
    a.e("v_lshrrev_b32 v5, 3, v4"); a.e("v_and_b32 v6, 7, v4"); a.e("v_lshlrev_b32 v6, 2, v6"); a.e("v_lshl_add_u32 v16, v5, 7, v6")
    a.e("v_lshlrev_b32 v17, 11, v4"); a.e("v_lshl_add_u32 v17, v3, 4, v17")
    a.e("s_lshl_b32 s37, s%d, 8" % SMT); a.e("s_add_u32 s37, s37, %d" % F_O)
    a.e("s_barrier")
    a.stamp(4)
    a.e("s_setprio %d" % PRIO["b"])
    def hload(g):
        r = BH + 4 * (g % NHR)
        if "nohload" in EXP and 16 <= g < GB:
            hid[g] = a.vm_n - 1
            return
        if g < GB:
            hid[g] = a.vm("buffer_load_dwordx4 v[%d:%d], v2, s[8:11], s31 offen offset:%d sc1" % (r, r + 3, (g % 4) * 1024))
            if g % 4 == 3:
                if LAT_B and (g + 1) % (4 * LBC) == 0:
                    if g + 1 < GB: lat_off(a, 31, 57, (g + 1) // (4 * LBC), 36, LBN, LBC * 4096)
                else: a.e("s_add_u32 s31, s31, 4096")
        else:
            hid[g] = a.vm("buffer_load_dwordx4 v[%d:%d], v2, s[4:7], s38 offen offset:%d sc1" % (r, r + 3, (g % 4) * 1024))
            if g % 4 == 3:
                if LAT_B and (g + 1) % (4 * LBC) == 0:
                    if g + 1 < NG: lat_off(a, 38, 58, (g + 1 - GB) // (4 * LBC), 36, LBN, LBC * 4096)
                else: a.e("s_add_u32 s38, s38, 4096")
    dbg_mark(a, name + "_m3", 7)
    for g in range(8): hload(g)
    nh = 8
    fr = {}
    def reads(g):
        u, kk = g // 4, g % 4
        so = (u % NWU) * 8192 + kk * 2048
        f = g % 3
        va, d = (12, 512) if g < GB else (14, 1024)
        for ng in range(2):
            a.ds("ds_read_b64_tr_b16 v[%d:%d], v%d offset:%d" % (BA + 8 * f + 4 * ng, BA + 8 * f + 4 * ng + 1, va + ng, so))
            fr[g] = a.ds("ds_read_b64_tr_b16 v[%d:%d], v%d offset:%d" % (BA + 8 * f + 4 * ng + 2, BA + 8 * f + 4 * ng + 3, va + ng, so + d))
    reads(0); reads(1)
    polled = False
    nu = st["nu"]
    ubar_prev = -1
    for g in range(NG):
        u, kk = g // 4, g % 4
        f = g % 3
        if kk == 2 and u + 1 < NU and u % BB == 0:
            ubar = u
            un = min(u + BB, NU - 1)
            while un not in uid:
                assert nu < NWU or nu <= ubar_prev + NWU - 1
                wdma(nu); nu += 1
            if u == POLL_U:
                a.e("s_cmp_lg_u32 s%d, 0" % SW)
                a.e("s_cbranch_scc1 %s_polled" % name)
                if "noowait" not in EXP: wait_flags(a, name + "_op", 37, 15)
                a.label("%s_polled" % name)
                polled = True
            a.wait(vm=uid[un]); a.e("s_barrier")
            ubar_prev = u
            if u == POLL_U:
                gid = a.vm("buffer_load_dword v22, v16, s[20:23], 0 offen sc1")
                a.stamp(5)
        if BSW and g == BSW[0]: a.e("s_setprio %d" % BSW[1])
        if g + 2 < NG: reads(g + 2)
        assert g in hid
        a.wait(vm=hid[g], lg=fr[g])
        hb = BH + 4 * (g % NHR)
        acc = BAC if g < GB else AAC
        for ng in range(2):
            M32(a, acc + 16 * ng, BA + 8 * f + 4 * ng, hb, "0" if g in (0, GB) else acc + 16 * ng)
        cnt = 0
        while nh < min(g + 1 + NHR, NG) and cnt < (OBURST if polled else 2) and (nh < GB or polled):
            hload(nh); nh += 1; cnt += 1
        if nu < NU and (nu < NWU or nu <= ubar_prev + NWU - 1):
            wdma(nu); nu += 1
    a.stamp(6)
    a.wait(vm=gid)
    a.e("v_sub_f32 v23, 1.0, v22")
    for k in range(32): a.e("v_mul_f32 v%d, v%d, v23" % (BAC + k, BAC + k))
    for k in range(32): a.e("v_fmac_f32 v%d, v%d, v22" % (BAC + k, AAC + k))
    for k in range(16): a.e("v_cvt_pk_bf16_f32 v%d, v%d, v%d" % (BH + k, BAC + 2 * k, BAC + 2 * k + 1))
    a.e("s_nop 1")
    for q in range(4):
        b = BH + 4 * q
        a.e("v_permlane32_swap_b32 v%d, v%d" % (b, b + 2))
        a.e("v_permlane32_swap_b32 v%d, v%d" % (b + 1, b + 3))
    for q in range(4):
        b = BH + 4 * q
        a.vm("buffer_store_dwordx4 v[%d:%d], v17, s[24:27], s34 offen offset:%d%s" % (b, b + 3, 32 * q, OUT_FLAGS))
    if a.prof or DBGT: a.e("s_waitcnt vmcnt(0)")
    dbg_mark(a, name + "_m4", 8)
    a.stamp(7)
    a.stamp_flush(WS, WS + 1, WS_PROF, SW, 4)
    a.e("s_endpgm")

def gen_kernel(name, prof=False):
    a = Asm(); a.prof = prof; a.PROF_V = 254
    a.raw(kernel_header(name))
    a.e("s_cmp_ge_u32 s2, 512")
    a.e("s_cbranch_scc1 %s_exit" % name)
    if prof: a.e("v_mov_b32 v254, 0")
    a.stamp(0)
    a.e("s_load_dwordx8 s[60:67], s[0:1], 0")
    a.e("s_load_dwordx8 s[72:79], s[0:1], 48")
    a.e("s_load_dwordx2 s[68:69], s[0:1], 32")
    a.e("s_load_dwordx4 s[80:83], s[0:1], 80")
    a.e("s_load_dwordx2 s[84:85], s[0:1], 96")
    a.e("v_and_b32 v1, 63, v0")
    a.e("v_lshrrev_b32 v3, 6, v0")
    a.e("v_lshlrev_b32 v2, 4, v1")
    a.e("v_readfirstlane_b32 s%d, v3" % SW)
    a.e("s_and_b32 s%d, s2, 255" % SID)
    a.e("s_and_b32 s90, s%d, 7" % SID); a.e("s_lshr_b32 s91, s%d, 3" % SID)
    a.e("s_lshr_b32 s92, s90, 1"); a.e("s_lshl_b32 s92, s92, 2"); a.e("s_lshr_b32 s93, s91, 3"); a.e("s_add_u32 s%d, s92, s93" % SMT)
    a.e("s_and_b32 s92, s90, 1"); a.e("s_lshl_b32 s92, s92, 3"); a.e("s_and_b32 s93, s91, 7"); a.e("s_add_u32 s%d, s92, s93" % SNT)
    if DBGT:
        a.e("s_waitcnt lgkmcnt(0)")
        dbg_mark(a, name + "_m0", 4, neg=True)
    a.e("s_cmp_ge_u32 s2, 256")
    a.e("s_cbranch_scc1 %s_roleb" % name)
    if "noa" in EXP: a.e("s_endpgm")
    else: gen_role_a(a, name)
    a.label("%s_roleb" % name)
    a.nostamp = False
    a.reset_counts()
    gen_role_b(a, name)
    a.label("%s_exit" % name)
    a.e("s_endpgm")
    return a.text()
```

```python
VQ = [8, 16]
VK = 24
VV = 32
VS = [40, 56]
VP = [72, 80]
VO = [88, 104]
VL = [120, 124]
VSEL = 128
VNM = [132, 148]
VT = 164
def M32(e, d, x, y, c):
    cs = "v[%d:%d]" % (c, c + 15) if isinstance(c, int) else c
    e("v_mfma_f32_32x32x16_bf16 v[%d:%d], v[%d:%d], v[%d:%d], %s" % (d, d + 15, x, x + 3, y, y + 3, cs))
def M16(e, d, x, y, c):
    if "lsum" in SKIP: return
    e("v_mfma_f32_16x16x32_bf16 v[%d:%d], v[%d:%d], v[%d:%d], v[%d:%d]" % (d, d + 3, x, x + 3, y, y + 3, c, c + 3))

LSUM = "mfma"
SMF = True
VIDX = 222
SKIP = set()
VLA = [204, 212]
VONE = 220
def LS(e, t):
    e("v_smfmac_f32_16x16x64_bf16 v[%d:%d], v[%d:%d], v[%d:%d], v%d" % (VL[t], VL[t] + 3, VSEL, VSEL + 3, VP[t], VP[t] + 7, VIDX))

def phase(e, c, i, koff, vaddr="v2", variant=0, extra=None):
    o = 1 - c
    Sc, So = VS[c], VS[o]
    extra = list(extra or [])
    def E(k):
        e("v_exp_f32 v%d, v%d" % (Sc + k, Sc + k))
        if extra and k in (1, 4, 7, 10, 13):
            for x in extra.pop(0): e(x)
    def C(k): e("v_cvt_pk_bf16_f32 v%d, v%d, v%d" % (VP[c] + k, Sc + 2 * k, Sc + 2 * k + 1))
    def R(d, off): e("ds_read_b128 v[%d:%d], %s offset:%d" % (d, d + 3, vaddr, off))
    W = lambda n: e("s_waitcnt lgkmcnt(%d)" % n)
    if variant == 0 and LSUM != "mfma":
        def A2(t, half, k):
            if LSUM == "pk":
                r = VS[t] + 8 * half + 2 * k
                e("v_pk_add_f32 v[%d:%d], v[%d:%d], v[%d:%d]" % (VLA[t] + 2 * k, VLA[t] + 2 * k + 1, VLA[t] + 2 * k, VLA[t] + 2 * k + 1, r, r + 1))
            elif LSUM == "dot":
                e("v_dot2c_f32_bf16 v%d, v%d, v%d" % (VLA[t] + 4 * half + k, VP[t] + 4 * half + k, VONE))
            elif LSUM == "add":
                r = VS[t] + 8 * half + 2 * k
                e("v_add_f32 v%d, v%d, v%d" % (VLA[t] + 2 * k, VLA[t] + 2 * k, r))
                e("v_add_f32 v%d, v%d, v%d" % (VLA[t] + 2 * k + 1, VLA[t] + 2 * k + 1, r + 1))
        if c == 1: W(0)
        M32(e, So, VK, VQ[o], VNM[o])
        E(0); E(1); E(2)
        M32(e, VO[o], VV + 4, VP[o] + 4, VO[o])
        if c == 0: R(VV + 4, koff(i) + 3072)
        E(3); E(4); E(5)
        M32(e, So, VK + 4, VQ[o] + 4, So)
        if c == 0: R(VK, koff(i + 1)); R(VK + 4, koff(i + 1) + 1024)
        E(6); E(7); E(8)
        C(0); C(1); E(9); C(2); C(3)
        A2(c, 0, 0); E(10); A2(c, 0, 1); E(11)
        if c == 0: W(3)
        M32(e, VO[c], VV, VP[c], VO[c])
        if c == 1: R(VV, koff(i + 1) + 2048)
        E(12); A2(c, 0, 2); E(13); A2(c, 0, 3); E(14)
        E(15)
        C(4); A2(c, 1, 0); C(5); A2(c, 1, 1); C(6); A2(c, 1, 2); C(7); A2(c, 1, 3)
        return
    if variant == 0:
        if c == 0:
            M32(e, So, VK, VQ[o], VNM[o])
            E(0); E(1); E(2)
            M32(e, VO[o], VV + 4, VP[o] + 4, VO[o])
            R(VV + 4, koff(i) + 3072)
            E(3); E(4); E(5)
            M32(e, So, VK + 4, VQ[o] + 4, So)
            R(VK, koff(i + 1)); R(VK + 4, koff(i + 1) + 1024)
            E(6); E(7); E(8)
            if SMF: LS(e, o)
            else: M16(e, VL[o], VSEL, VP[o] + 4, VL[o])
            C(0); C(1); E(9); C(2); C(3)
            E(10); E(11)
            W(3)
            M32(e, VO[c], VV, VP[c], VO[c])
            E(12); E(13); E(14)
            if not SMF: M16(e, VL[c], VSEL, VP[c], VL[c])
            E(15)
            C(4); C(5); C(6); C(7)
        else:
            W(0)
            M32(e, So, VK, VQ[o], VNM[o])
            E(0); E(1); E(2)
            M32(e, VO[o], VV + 4, VP[o] + 4, VO[o])
            E(3); E(4); E(5)
            M32(e, So, VK + 4, VQ[o] + 4, So)
            E(6); E(7); E(8)
            if SMF: LS(e, o)
            else: M16(e, VL[o], VSEL, VP[o] + 4, VL[o])
            C(0); C(1); E(9); C(2); C(3)
            E(10); E(11)
            M32(e, VO[c], VV, VP[c], VO[c])
            R(VV, koff(i + 1) + 2048)
            E(12); E(13); E(14)
            if not SMF: M16(e, VL[c], VSEL, VP[c], VL[c])
            E(15)
            C(4); C(5); C(6); C(7)
    elif variant == 1:
        M32(e, So, VK, VQ[o], VNM[o])
        E(0); E(1); E(2)
        M32(e, VO[o], VV + 4, VP[o] + 4, VO[o])
        E(3)
        if c == 0: R(VV + 4, koff(i) + 3072)
        E(4); E(5)
        M32(e, So, VK + 4, VQ[o] + 4, So)
        E(6)
        if c == 0: R(VK, koff(i + 1))
        E(7)
        if c == 0: R(VK + 4, koff(i + 1) + 1024)
        E(8)
        M16(e, VL[o], VSEL, VP[o] + 4, VL[o])
        C(0); C(1); E(9); C(2); C(3)
        E(10); E(11)
        if c == 0: W(3)
        E(12)
        M32(e, VO[c], VV, VP[c], VO[c])
        E(13)
        if c == 1: R(VV, koff(i + 1) + 2048)
        E(14); E(15)
        M16(e, VL[c], VSEL, VP[c], VL[c])
        C(4); C(5); C(6)
        if c == 0: W(0)
        C(7)
    elif variant == 2:
        M32(e, So, VK, VQ[o], VNM[o])
        E(0); E(1); E(2)
        M32(e, VO[o], VV + 4, VP[o] + 4, VO[o])
        E(3)
        if c == 0: R(VV + 4, koff(i) + 3072)
        E(4); C(0); C(1)
        M32(e, So, VK + 4, VQ[o] + 4, So)
        E(5)
        if c == 0: R(VK, koff(i + 1))
        E(6)
        if c == 0: R(VK + 4, koff(i + 1) + 1024)
        E(7)
        M16(e, VL[o], VSEL, VP[o] + 4, VL[o])
        E(8); C(2); E(9); C(3)
        E(10)
        if c == 0: W(3)
        E(11)
        M32(e, VO[c], VV, VP[c], VO[c])
        E(12)
        if c == 1: R(VV, koff(i + 1) + 2048)
        E(13); C(4); C(5)
        M16(e, VL[c], VSEL, VP[c], VL[c])
        E(14); E(15)
        if c == 0: W(0)
        C(6); C(7)
    elif variant == 3:
        M32(e, So, VK, VQ[o], VNM[o])
        E(0); E(1); E(2)
        M32(e, VO[o], VV + 4, VP[o] + 4, VO[o])
        E(3); C(0)
        if c == 0: R(VV + 4, koff(i) + 3072)
        E(4); E(5)
        M32(e, So, VK + 4, VQ[o] + 4, So)
        E(6); C(1)
        if c == 0: R(VK, koff(i + 1))
        E(7); C(2)
        if c == 0: R(VK + 4, koff(i + 1) + 1024)
        M16(e, VL[o], VSEL, VP[o] + 4, VL[o])
        E(8); C(3); E(9); E(10)
        if c == 0: W(3)
        M32(e, VO[c], VV, VP[c], VO[c])
        E(11); C(4); E(12)
        if c == 1: R(VV, koff(i + 1) + 2048)
        E(13)
        M16(e, VL[c], VSEL, VP[c], VL[c])
        E(14); C(5); E(15); C(6)
        if c == 0: W(0)
        C(7)
```

```python
from asmlib import *
import struct
def f2u(x): return struct.unpack("<I", struct.pack("<f", x))[0]
import attn64 as A
from attn64 import VQ, VK, VV, VS, VP, VO, VL, VSEL, VNM, VT

WS_H = 4 << 20; WS_H_BYTES = 64 * 224 * 1024
WS_KV = 20 << 20; WS_O = 21 << 20; WS_G = 25 << 20; WS_F = 27 << 20; WS_PROF = 48 << 20
F_KV = 0; F_H = 8192; F_O = 12288; F_BYTES = 16384
KVREP = 32; SLEEP = 6
QSCALE = 0.25503486322159136
LOG2E = 1.4426950408889634
X, WQ, WK, WV, WO, W1, B1P, W2, GW, OUT, DBG, WS = 60, 62, 64, 66, 68, 72, 74, 76, 78, 80, 82, 84
SW, SMT, SNT, SID = 86, 87, 88, 89
FLAG = 65536; GATE = 180
PRIO = dict(a1=2, attn=0, b1=2, b=0, mish=3)
SPIN = 0x40000
PF_W1 = False
PF_B1 = 0
PF_BX = 0
PF_A1 = 0
DIAG = None
XS3 = False
MISH2 = False
OUT_FLAGS = ''
ASW = None
B1SW = None
LATN = 4; LATC = 2
LBN = 4; LBC = 2
DBGT = False
LAT_A1 = True
LAT_B = True
LAT_B1 = True
PKMISH = True
BPRO = None
BURST = False
ROT_B1 = 0
EXP = set()
PF_W2 = True

def M32(a, d, x, y, c): A.M32(a.e, d, x, y, c)
def M16(a, d, x, y, c): A.M16(a.e, d, x, y, c)
def base(a, d, ptr, add, nbytes):
    if add is None:
        srd(a, d, ptr, ptr + 1, nbytes)
    else:
        a.e("s_add_u32 s92, s%d, %s" % (ptr, add)); a.e("s_addc_u32 s93, s%d, 0" % (ptr + 1))
        srd(a, d, 92, 93, nbytes)

def rot_adv(a, sb, blo, sk, step, total):
    a.e("s_add_u32 s%d, s%d, %d" % (sk, sk, step))
    a.e("s_cmp_eq_u32 s%d, %d" % (sk, total))
    a.e("s_cselect_b32 s%d, 0, s%d" % (sk, sk))
    a.e("s_add_u32 s%d, s%d, s%d" % (sb, blo, sk)); a.e("s_addc_u32 s%d, s%d, 0" % (sb + 1, blo + 1))

def burst(a, va=98, vd=99):
    a.e("s_lshl_b32 s96, s2, 2"); a.e("s_add_u32 s96, s96, s%d" % SW)
    a.e("v_lshlrev_b32 v3, 7, v1"); a.e("v_mov_b32 v4, 0x40000000")
    for ptr, nbytes, nl in ((W1, 1024 * 7168, 28), (X, 2048 * 2048, 16), (WQ, 1024 * 2048, 8)):
        base(a, 40, ptr, None, nbytes)
        a.e("s_mul_i32 s95, s96, %d" % (nl * 128))
        a.e("v_cmp_le_u32 vcc, %d, v1" % nl); a.e("s_nop 1")
        a.e("v_cndmask_b32 v%d, v3, v4, vcc" % va)
        a.e("buffer_load_dword v%d, v%d, s[40:43], s95 offen" % (vd, va))

def lat_r(a, reg, n):
    a.e("s_mul_i32 s94, s%d, %d" % (SMT, max(1, n // 4))); a.e("s_add_u32 s%d, s94, s%d" % (reg, SNT)); a.e("s_and_b32 s%d, s%d, %d" % (reg, reg, n - 1))

def lat_base(a, sb, blo, q, rreg, nslots, step):
    a.e("s_add_u32 s94, s%d, %d" % (rreg, q % nslots)); a.e("s_and_b32 s94, s94, %d" % (nslots - 1))
    if q // nslots: a.e("s_add_u32 s94, s94, %d" % (nslots * (q // nslots)))
    a.e("s_mul_i32 s94, s94, %d" % step)
    a.e("s_add_u32 s%d, s%d, s94" % (sb, blo)); a.e("s_addc_u32 s%d, s%d, 0" % (sb + 1, blo + 1))

def lat_off(a, sd, sbase, q, rreg, nslots, step):
    a.e("s_add_u32 s94, s%d, %d" % (rreg, q % nslots)); a.e("s_and_b32 s94, s94, %d" % (nslots - 1))
    if q // nslots: a.e("s_add_u32 s94, s94, %d" % (nslots * (q // nslots)))
    a.e("s_mul_i32 s94, s94, %d" % step)
    a.e("s_add_u32 s%d, s%d, s94" % (sd, sbase))

def dbg_mark(a, tag, word, neg=False):
    if not DBGT: return
    a.e("s_cmp_lg_u32 s%d, 0" % SW); a.e("s_cbranch_scc1 %s" % tag)
    a.e("s_memrealtime s[98:99]"); a.e("s_waitcnt lgkmcnt(0)"); a.lg_done = a.lg_n
    if neg: a.e("s_not_b32 s98, s98")
    a.e("s_mov_b32 s52, s%d" % DBG); a.e("s_mov_b32 s53, s%d" % (DBG + 1)); a.e("s_mov_b32 s54, 256"); a.e("s_mov_b32 s55, 0x00020000")
    a.e("v_mov_b32 v4, s98"); a.e("v_mov_b32 v5, %d" % (word * 4))
    a.e("v_cmp_eq_u32 vcc, 0, v1"); a.e("s_nop 1"); a.e("s_and_saveexec_b64 s[90:91], vcc")
    a.e("buffer_atomic_umax v4, v5, s[52:55], 0 offen")
    a.e("s_mov_b64 exec, s[90:91]")
    a.label(tag)

def poll(a, tag, srd4, voff, soff, nlanes_mask_exec=None):
    a.e("s_mov_b32 s96, 0x%x" % SPIN)
    a.label(tag)
    a.e("buffer_load_dword v5, %s, s[%d:%d], %s offen sc1" % (voff, srd4, srd4 + 3, soff))
    a.e("s_waitcnt vmcnt(0)")
    a.e("v_cmp_eq_u32 vcc, 1, v5")
    a.e("s_nop 3")
    a.e("s_cmp_eq_u64 vcc, exec")
    a.e("s_cbranch_scc1 %s_ok" % tag)
    a.e("s_sleep %d" % SLEEP)
    a.e("s_sub_u32 s96, s96, 1")
    a.e("s_cmp_lg_u32 s96, 0")
    a.e("s_cbranch_scc1 %s" % tag)
    a.label("%s_ok" % tag)

CLR = 253
def early_cleared(a, tag):
    a.e("s_cmp_lg_u32 s%d, 0" % SW); a.e("s_cbranch_scc1 %s" % tag)
    base(a, 52, DBG, None, 256)
    a.e("s_and_b32 s97, s2, 1"); a.e("s_lshl_b32 s97, s97, 7")
    a.e("v_mov_b32 v4, s97")
    a.e("buffer_load_dword v%d, v4, s[52:55], 0 offen sc1" % CLR)
    a.label(tag)

def check_cleared(a, tag):
    a.e("v_readfirstlane_b32 s97, v%d" % CLR)
    a.e("s_nop 3")
    a.e("s_cmp_eq_u32 s97, 1"); a.e("s_cbranch_scc1 %s_ok" % tag)
    base(a, 52, DBG, None, 256)
    a.e("s_and_b32 s97, s2, 1"); a.e("s_lshl_b32 s97, s97, 7")
    a.e("v_mov_b32 v4, s97")
    poll(a, tag, 52, "v4", "0")

def set_flag(a, soff_reg, nrep=1):
    base(a, 52, WS, "0x%x" % WS_F, F_BYTES)
    a.e("v_lshlrev_b32 v6, 8, v1"); a.e("v_add_u32 v6, s%d, v6" % soff_reg)
    a.e("v_mov_b32 v4, 1")
    a.e("v_cmp_gt_u32 vcc, %d, v1" % nrep)
    a.e("s_nop 1")
    a.e("s_and_saveexec_b64 s[90:91], vcc")
    a.e("buffer_store_dword v4, v6, s[52:55], 0 offen sc1")
    a.e("s_mov_b64 exec, s[90:91]")

def wait_flags(a, tag, soff_reg, mask):
    base(a, 52, WS, "0x%x" % WS_F, F_BYTES)
    a.e("v_and_b32 v4, %d, v1" % mask); a.e("v_lshlrev_b32 v4, 2, v4")
    poll(a, tag, 52, "v4", "s%d" % soff_reg)

AX = 32
AA = 64
AQ = 100
A_XD0, A_XD1, A_WD, A_KD = 204, 205, 206, 207
A_XR, A_WR, A_KR = 208, 212, 214
LA_W, LA_KV, LA_X = 0, 32768, 49152

def a1_setup(a):
    a.e("v_lshrrev_b32 v3, 3, v1")
    a.e("v_lshrrev_b32 v4, 4, v1")
    a.e("v_and_b32 v5, 7, v1")
    a.e("v_xor_b32 v4, v4, v5")
    a.e("v_lshlrev_b32 v4, 4, v4")
    a.e("v_lshl_add_u32 v%d, v3, 11, v4" % A_XD0)
    a.e("v_xor_b32 v%d, 64, v%d" % (A_XD1, A_XD0))
    a.e("v_bfe_u32 v4, v1, 4, 1"); a.e("v_lshlrev_b32 v4, 2, v4"); a.e("v_xor_b32 v4, v4, v5"); a.e("v_lshlrev_b32 v4, 4, v4")
    a.e("v_lshl_add_u32 v%d, v3, 11, v4" % A_WD)
    a.e("v_lshrrev_b32 v3, 2, v1"); a.e("v_and_b32 v4, 3, v1"); a.e("v_lshlrev_b32 v4, 4, v4")
    a.e("v_lshl_add_u32 v%d, v3, 6, v4" % A_KD)
    a.e("s_lshl_b32 s91, s%d, 7" % SMT); a.e("s_lshl_b32 s92, s%d, 5" % SW); a.e("s_add_u32 s91, s91, s92"); a.e("s_lshl_b32 s91, s91, 11")
    for q in range(4): a.e("s_add_u32 s%d, s91, %d" % (28 + q, q * (8 * 2048 - 1024)))
    a.e("s_lshl_b32 s33, s%d, 15" % SW); a.e("s_add_u32 s32, s33, %d" % (8 * 2048 - 1024))
    a.e("s_lshl_b32 s34, s%d, 10" % SW)
    a.e("s_lshl_b32 s35, s%d, 11" % SW)
    a.e("s_lshl_b32 s36, s%d, 10" % SW); a.e("s_add_u32 s36, s36, %d" % LA_KV)
    a.e("s_lshl_b32 s37, s%d, 13" % SW); a.e("s_add_u32 s37, s37, %d" % LA_X)

def a1_reads_setup(a):
    a.e("v_and_b32 v3, 31, v1"); a.e("v_lshrrev_b32 v4, 5, v1")
    a.e("v_bfe_u32 v5, v3, 1, 3"); a.e("v_xor_b32 v5, v5, v4"); a.e("v_lshlrev_b32 v5, 4, v5")
    a.e("v_lshl_add_u32 v5, v3, 7, v5"); a.e("v_add_u32 v5, s37, v5")
    for kk in range(4): a.e("v_xor_b32 v%d, %d, v5" % (A_XR + kk, kk * 32))
    a.e("v_bfe_u32 v6, v1, 2, 2"); a.e("v_bfe_u32 v5, v1, 4, 1"); a.e("v_and_b32 v7, 3, v1")
    a.e("v_lshlrev_b32 v3, 5, v5"); a.e("v_lshl_add_u32 v3, v7, 3, v3")
    a.e("v_lshl_add_u32 v4, v4, 3, v6")
    a.e("v_lshrrev_b32 v5, 1, v6"); a.e("v_lshl_add_u32 v5, v5, 6, v3")
    a.e("v_lshl_add_u32 v%d, v4, 7, v5" % A_WR); a.e("v_xor_b32 v%d, 64, v%d" % (A_WR + 1, A_WR))
    a.e("v_lshl_add_u32 v%d, v4, 6, v3" % A_KR); a.e("v_add_u32 v%d, %d, v%d" % (A_KR, LA_KV, A_KR))

def burst_a(a):
    burst(a, 220, 221)

def gen_a1(a, name, kind):
    NU = 16
    uid = {}; xid = {}
    NXS = 3 if (XS3 and not kind) else 2
    if NXS == 3:
        a.e("s_mul_i32 s37, s%d, 12288" % SW); a.e("s_add_u32 s37, s37, 32768")
    def wdma1(u, p):
        if p == 0:
            a.set_m0(35, LA_W + (u % 4) * 8192)
            uid[u] = a.vm("buffer_load_dwordx4 v%d, s[8:11], s33 offen lds" % A_WD)
        elif p == 1:
            a.set_m0(35, LA_W + (u % 4) * 8192)
            uid[u] = a.vm("buffer_load_dwordx4 v%d, s[8:11], s32 offen offset:1024 lds" % A_WD)
            if LAT_A1 and (u + 1) % LATC == 0:
                if u + 1 < NU: lat_base(a, 8, 48, (u + 1) // LATC, 59, LATN, LATC * 64 * 2048)
            else: add64(a, 8, 64 * 2048)
        else:
            a.set_m0(36, (u % 4) * 4096)
            uid[u] = a.vm("buffer_load_dwordx4 v%d, s[12:15], s34 offen lds" % A_KD)
            if LAT_A1 and (u + 1) % LATC == 0:
                if u + 1 < NU: lat_base(a, 12, 50, (u + 1) // LATC, 59, LATN, LATC * 64 * 64)
            else: add64(a, 12, 64 * 64)
    NWP = 3 if kind else 2
    def wdma(u):
        for p in range(NWP): wdma1(u, p)
    def xdma1(u, q):
        a.set_m0(37, (u % NXS) * 4096)
        xid[u] = a.vm("buffer_load_dwordx4 v%d, s[4:7], s%d offen offset:%d lds" % (A_XD0 + (q & 1), 28 + q, q * 1024))
        if q == 3:
            if LAT_A1 and (u + 1) % LATC == 0:
                if u + 1 < NU: lat_base(a, 4, X, (u + 1) // LATC, 59, LATN, LATC * 128)
            else: add64(a, 4, 128)
    def xdma(u):
        for q in range(4): xdma1(u, q)
    wdma(0); xdma(0); xdma(1); wdma(1)
    if NXS == 3: xdma(2)
    a1_reads_setup(a)
    if PF_W1:
        a.e("s_mul_i32 s91, s%d, 448" % SNT); a.e("s_and_b32 s91, s91, 0xffffff80")
        base(a, 16, W1, "s91", 1024 * 7168)
        a.e("s_and_b32 s91, s%d, 3" % SMT); a.e("s_lshl_b32 s91, s91, 4")
        a.e("v_lshrrev_b32 v3, 2, v1"); a.e("v_add_u32 v3, s91, v3"); a.e("s_movk_i32 s91, 7168"); a.e("v_mul_lo_u32 v3, v3, s91")
        a.e("v_and_b32 v4, 3, v1"); a.e("v_lshl_add_u32 v215, v4, 7, v3")
        a.e("s_mov_b32 s38, %d" % (2 * 64 * 7168))
    def pfa(uu, wave):
        lab = "%s_pa%d" % (name, uu)
        a.e("s_cmp_lg_u32 s%d, %d" % (SW, wave)); a.e("s_cbranch_scc1 %s" % lab)
        a.e("buffer_load_dword v217, v218, s[20:23], s39 offen")
        a.e("buffer_load_dword v217, v219, s[24:27], s38 offen")
        a.label(lab)
        a.e("s_add_u32 s39, s39, %d" % (64 * 2048)); a.e("s_add_u32 s38, s38, 128")
    if PF_A1:
        a.e("s_lshl_b32 s91, s%d, 7" % SNT)
        base(a, 20, WQ, "s91", 1024 * 2048)
        base(a, 24, X, None, 2048 * 2048)
        a.e("v_mov_b32 v4, 0x40000000"); a.e("v_cmp_le_u32 vcc, 16, v1")
        a.e("s_and_b32 s91, s%d, 3" % SMT); a.e("s_lshl_b32 s91, s91, 4"); a.e("v_add_u32 v3, s91, v1"); a.e("v_lshlrev_b32 v3, 11, v3")
        a.e("v_cndmask_b32 v218, v3, v4, vcc")
        a.e("s_and_b32 s91, s%d, 7" % SNT); a.e("s_lshl_b32 s91, s91, 4"); a.e("s_lshl_b32 s94, s%d, 7" % SMT); a.e("s_add_u32 s91, s91, s94")
        a.e("v_add_u32 v3, s91, v1"); a.e("v_lshlrev_b32 v3, 11, v3")
        a.e("v_cndmask_b32 v219, v3, v4, vcc")
        a.e("s_mov_b32 s39, %d" % (3 * 64 * 2048)); a.e("s_mov_b32 s38, %d" % (3 * 128))
    a.wait(vm=max(uid[0], xid[0]))
    a.e("s_cmp_lg_u32 s2, 0"); a.e("s_cbranch_scc1 %s_clrw" % name)
    a.e("s_waitcnt vmcnt(0)")
    a.label("%s_clrw" % name)
    a.e("s_barrier")
    a.stamp(1)
    wdma(2)
    if BURST: burst_a(a)
    if PF_A1:
        for uu in range(3, PF_A1): pfa(uu, uu & 3)
    a.e("s_cmp_lg_u32 s2, 0"); a.e("s_cbranch_scc1 %s_nopub" % name)
    a.e("s_cmp_lg_u32 s%d, 0" % SW); a.e("s_cbranch_scc1 %s_nopub" % name)
    base(a, 52, DBG, None, 256)
    a.e("v_lshlrev_b32 v6, 7, v1"); a.e("v_mov_b32 v4, 1")
    a.e("v_cmp_gt_u32 vcc, 2, v1"); a.e("s_nop 1")
    a.e("s_and_saveexec_b64 s[90:91], vcc")
    a.e("buffer_store_dword v4, v6, s[52:55], 0 offen sc1")
    a.e("s_mov_b64 exec, s[90:91]")
    a.label("%s_nopub" % name)
    xfr = {}; fr = {}
    def xread(u, kk):
        r = AX + 16 * (u % 2) + 4 * kk
        xfr[(u, kk)] = a.ds("ds_read_b128 v[%d:%d], v%d offset:%d" % (r, r + 3, A_XR + kk, (u % NXS) * 4096))
    def reads(g):
        u, kk = g // 4, g % 4
        f = g % 3; b = AA + 12 * f
        so = LA_W + (u % 4) * 8192 + kk * 2048
        for ng in range(2):
            a.ds("ds_read_b64_tr_b16 v[%d:%d], v%d offset:%d" % (b + 4 * ng, b + 4 * ng + 1, A_WR + ng, so))
            fr[g] = a.ds("ds_read_b64_tr_b16 v[%d:%d], v%d offset:%d" % (b + 4 * ng + 2, b + 4 * ng + 3, A_WR + ng, so + 512))
        if kind:
            so = (u % 4) * 4096 + kk * 1024
            a.ds("ds_read_b64_tr_b16 v[%d:%d], v%d offset:%d" % (b + 8, b + 9, A_KR, so))
            fr[g] = a.ds("ds_read_b64_tr_b16 v[%d:%d], v%d offset:%d" % (b + 10, b + 11, A_KR, so + 256))
    for kk in range(4): xread(0, kk)
    reads(0); reads(1)
    pend = []
    for g in range(NU * 4 if "a1short" not in EXP else 8):
        u, kk = g // 4, g % 4
        f = g % 3; b = AA + 12 * f
        if kk == 0 and u + 2 < NU and u >= 0 and (u + 2) not in xid:
            pass
        if ASW and kk == 0 and u == ASW[0]: a.e("s_setprio %d" % ASW[1])
        if kk == 2 and u + 1 < NU:
            a.wait(vm=uid[u + 1]); a.e("s_barrier")
        if g + 2 < NU * 4: reads(g + 2)
        if kk >= 2 and u + 1 < NU:
            a.wait(vm=xid[u + 1])
            xread(u + 1, 2 * (kk - 2)); xread(u + 1, 2 * (kk - 2) + 1)
        a.wait(lg=max(fr[g], xfr[(u, kk)]))
        xb = AX + 16 * (u % 2) + 4 * kk
        def pop():
            if pend:
                f, i0, i1 = pend.pop(0); f(i0, i1)
        if kk == 0 and u + NXS < NU:
            a.wait(lg=xfr[(u, 3)])
            pend += [(xdma1, u + NXS, q) for q in range(4)]
        if kk == 2 and u + 3 < NU:
            pend += [(wdma1, u + 3, p) for p in range(NWP)]
        M32(a, AQ, b, xb, "0" if g == 0 else AQ)
        pop()
        M32(a, AQ + 16, b + 4, xb, "0" if g == 0 else AQ + 16)
        pop()
        if kind == "K": M32(a, AQ + 32, b + 8, xb, "0" if g == 0 else AQ + 32)
        if kind == "V": M32(a, AQ + 32, xb, b + 8, "0" if g == 0 else AQ + 32)
        if kk == 3:
            while pend: pop()
        if kk == 1 and PF_W1 and u + 2 < NU:
            lab = "%s_pf%d" % (name, u)
            a.e("s_cmp_lg_u32 s%d, %d" % (SW, u & 3)); a.e("s_cbranch_scc1 %s" % lab)
            a.e("buffer_load_dword v216, v215, s[16:19], s38 offen")
            a.label(lab)
            a.e("s_add_u32 s38, s38, %d" % (64 * 7168))
        if kk == 2 and PF_A1 and u + PF_A1 < NU: pfa(u + PF_A1, u & 3)
        if kk == 3 and u == 9: early_cleared(a, name + "_ec")
    a.stamp(2)
    a.e("s_nop 15")
    for c in range(2):
        for k in range(8):
            r = AQ + 16 * c + 2 * k
            a.e("v_pk_mul_f32 v[%d:%d], v[%d:%d], s[44:45]" % (r, r + 1, r, r + 1))
        for k in range(8):
            r = AQ + 16 * c + 2 * k
            a.e("v_cvt_pk_bf16_f32 v%d, v%d, v%d" % (VQ[c] + k, r, r + 1))
    if kind:
        for k in range(8): a.e("v_cvt_pk_bf16_f32 v%d, v%d, v%d" % (AX + k, AQ + 32 + 2 * k, AQ + 33 + 2 * k))
        base(a, 8, WS, "0x%x" % WS_KV, 64 * 4096)
        a.e("s_lshl_b32 s91, s%d, 2" % SMT); a.e("s_add_u32 s91, s91, s%d" % SW); a.e("s_lshl_b32 s91, s91, 12")
        o = 0 if kind == "K" else 2048
        a.e("buffer_store_dwordx4 v[%d:%d], v2, s[8:11], s91 offen offset:%d sc1" % (AX, AX + 3, o))
        a.e("buffer_store_dwordx4 v[%d:%d], v2, s[8:11], s91 offen offset:%d sc1" % (AX + 4, AX + 7, o + 1024))
    a.e("s_waitcnt vmcnt(0) lgkmcnt(0)")
    if DIAG == "kv": a.stamp(3, force=True)
    a.e("s_barrier")
    a.reset_counts()

def koff(t): return ((t // 4) % 4) * 16384 + (t % 4) * 4096
def kv_dma(a, slot):
    a.e("s_add_u32 m0, s30, %d" % (slot * 16384))
    a.e("s_add_u32 s31, s31, 16384")
    for q in range(4):
        a.e("buffer_load_dwordx4 v2, s[8:11], s31 offen offset:%d sc1 lds" % (q * 1024))
def rowmax(a, c):
    S = VS[c]
    a.e("v_max3_f32 v4, v%d, v%d, v%d" % (S, S + 1, S + 2))
    for k in range(3, 15, 2): a.e("v_max3_f32 v4, v4, v%d, v%d" % (S + k, S + k + 1))
    a.e("v_max_f32 v4, v4, v%d" % (S + 15))
def set_negm(a, c, src):
    a.e("v_mov_b32 v5, v%d" % src); a.e("v_mov_b32 v6, v%d" % src)
    a.e("s_nop 1"); a.e("v_permlane32_swap_b32 v5, v6"); a.e("s_nop 1")
    a.e("v_max_f32 v5, v5, v6"); a.e("v_sub_f32 v5, 0, v5")
    for k in range(16): a.e("v_mov_b32 v%d, v5" % (VNM[c] + k))

def gen_gate(a):
    G = GATE
    a.e("v_mov_b32 v4, 0"); a.e("v_mov_b32 v5, 0"); a.e("s_nop 0")
    for k in range(8):
        a.e("v_dot2c_f32_bf16 v4, v%d, v%d" % (G + 8 + k, G + k))
        a.e("v_dot2c_f32_bf16 v5, v%d, v%d" % (G + 16 + k, G + k))
    a.e("s_nop 2")
    for sh in (1, 2, 4, 8):
        for r in (4, 5): a.e("v_add_f32_dpp v%d, v%d, v%d row_shr:%d row_mask:0xf bank_mask:0xf bound_ctrl:0" % (r, r, r, sh))
        a.e("s_nop 0")
    for r in (4, 5): a.e("v_add_f32_dpp v%d, v%d, v%d row_bcast:15 row_mask:0xa bank_mask:0xf" % (r, r, r))
    a.e("s_nop 0")
    for r in (4, 5): a.e("v_add_f32_dpp v%d, v%d, v%d row_bcast:31 row_mask:0xc bank_mask:0xf" % (r, r, r))
    a.e("s_nop 0")
    for r in (4, 5): a.e("v_mul_f32 v%d, 0x%x, v%d" % (r, f2u(-LOG2E), r))
    for r in (4, 5): a.e("v_exp_f32 v%d, v%d" % (r, r))
    a.e("s_nop 0")
    for r in (4, 5): a.e("v_add_f32 v%d, 1.0, v%d" % (r, r))
    for r in (4, 5): a.e("v_rcp_f32 v%d, v%d" % (r, r))
    base(a, 24, WS, "0x%x" % WS_G, 256 * 128)
    a.e("s_lshl_b32 s91, s%d, 4" % SMT); a.e("s_add_u32 s91, s91, s%d" % SNT); a.e("s_lshl_b32 s91, s91, 7")
    a.e("s_lshl_b32 s94, s%d, 3" % SW); a.e("s_add_u32 s91, s91, s94")
    a.e("v_mov_b32 v6, s91")
    a.e("v_cmp_eq_u32 vcc, 63, v1"); a.e("s_nop 1")
    a.e("s_and_saveexec_b64 s[90:91], vcc")
    a.e("buffer_store_dwordx2 v[4:5], v6, s[24:27], 0 offen sc1")
    a.e("s_mov_b64 exec, s[90:91]")

def gen_attn(a, name):
    a.e("s_cmp_lg_u32 s%d, 0" % SW); a.e("s_cbranch_scc1 %s_kvw" % name)
    check_cleared(a, name + "_clr")
    a.e("s_cmp_ge_u32 s%d, 2" % SNT); a.e("s_cbranch_scc1 %s_nokvsig" % name)
    a.e("s_lshl_b32 s28, s%d, 1" % SMT); a.e("s_add_u32 s28, s28, s%d" % SNT); a.e("s_lshl_b32 s28, s28, 2"); a.e("s_add_u32 s28, s28, %d" % F_KV)
    set_flag(a, 28, nrep=KVREP)
    a.label("%s_nokvsig" % name)
    if DIAG == "kv": a.stamp(4, force=True)
    a.e("s_and_b32 s28, s2, %d" % (KVREP - 1)); a.e("s_lshl_b32 s28, s28, 8"); a.e("s_add_u32 s28, s28, %d" % F_KV)
    if "nokvwait" not in EXP: wait_flags(a, name + "_kvp", 28, 31)
    if DIAG == "kv": a.stamp(5, force=True)
    a.label("%s_kvw" % name)
    a.e("s_barrier")
    a.e("s_setprio %d" % PRIO["attn"])
    a.e("s_lshl_b32 s38, s%d, 2" % SMT); a.e("s_add_u32 s38, s38, s%d" % SW); a.e("s_lshl_b32 s38, s38, 6")
    a.e("s_lshl_b32 s91, s%d, 2" % SNT); a.e("s_add_u32 s38, s38, s91"); a.e("s_lshl_b32 s38, s38, 10")
    a.e("s_lshl_b32 s30, s%d, 12" % SW)
    a.e("s_mov_b32 s39, 0")
    base(a, 8, WS, "0x%x" % WS_KV, 64 * 4096)
    base(a, 12, WS, "0x%x" % WS_O, 4 << 20)
    a.label("%s_pass" % name)
    a.e("s_sub_u32 s31, s30, 16384")
    kv_dma(a, 0)
    a.e("v_mov_b32 v4, 0x%x" % FLAG); a.e("v_mov_b32 v5, 0")
    a.e("ds_write_b32 v4, v5")
    if A.SMF:
        a.e("v_bfe_u32 v4, v1, 2, 1"); a.e("v_cmp_eq_u32 vcc, 0, v4")
        a.e("v_mov_b32 v6, 0x3f803f80"); a.e("v_mov_b32 v7, 0")
        a.e("v_cndmask_b32 v%d, v7, v6, vcc" % VSEL); a.e("v_cndmask_b32 v%d, v7, v6, vcc" % (VSEL + 1))
        a.e("v_cndmask_b32 v%d, v6, v7, vcc" % (VSEL + 2)); a.e("v_cndmask_b32 v%d, v6, v7, vcc" % (VSEL + 3))
        a.e("v_and_b32 v4, 1, v1"); a.e("v_cmp_eq_u32 vcc, 0, v4")
        a.e("v_mov_b32 v6, 0x44444444"); a.e("v_mov_b32 v7, 0xeeeeeeee")
        a.e("v_cndmask_b32 v%d, v7, v6, vcc" % A.VIDX)
        for k in range(4): a.e("v_mov_b32 v%d, 0" % (VP[1] + k))
    else:
        a.e("v_bfe_u32 v4, v1, 2, 1"); a.e("v_bfe_u32 v5, v1, 4, 1")
        a.e("v_cmp_eq_u32 vcc, v4, v5")
        a.e("v_mov_b32 v6, 0x3f803f80"); a.e("v_mov_b32 v7, 0")
        for k in range(4): a.e("v_cndmask_b32 v%d, v7, v6, vcc" % (VSEL + k))
    for c in range(2):
        for k in range(16): a.e("v_mov_b32 v%d, 0" % (VO[c] + k))
        for k in range(4): a.e("v_mov_b32 v%d, 0" % (VL[c] + k))
    for k in range(4): a.e("v_mov_b32 v%d, 0" % (VP[1] + 4 + k))
    for k in range(4): a.e("v_mov_b32 v%d, 0" % (VV + 4 + k))
    a.e("s_waitcnt vmcnt(0) lgkmcnt(0)")
    a.e("s_barrier")
    if DIAG == "kv": a.stamp(6, force=True); a.nostamp = True
    a.stamp(3)
    a.e("ds_read_b128 v[%d:%d], v2 offset:0" % (VK, VK + 3))
    a.e("ds_read_b128 v[%d:%d], v2 offset:1024" % (VK + 4, VK + 7))
    kv_dma(a, 1); kv_dma(a, 2)
    a.e("s_cmp_lg_u32 s39, 0")
    a.e("s_cbranch_scc1 %s_havemax" % name)
    base(a, 20, X, None, 2048 * 2048)
    base(a, 24, GW, None, 2048)
    a.e("s_lshl_b32 s91, s%d, 4" % SMT); a.e("s_add_u32 s91, s91, s%d" % SNT); a.e("s_lshl_b32 s91, s91, 2"); a.e("s_add_u32 s91, s91, s%d" % SW)
    a.e("s_lshl_b32 s28, s91, 12")
    a.e("v_lshlrev_b32 v3, 5, v1")
    G = GATE
    a.e("buffer_load_dwordx4 v[%d:%d], v3, s[24:27], 0 offen" % (G, G + 3))
    a.e("buffer_load_dwordx4 v[%d:%d], v3, s[24:27], 0 offen offset:16" % (G + 4, G + 7))
    a.e("buffer_load_dwordx4 v[%d:%d], v3, s[20:23], s28 offen" % (G + 8, G + 11))
    a.e("buffer_load_dwordx4 v[%d:%d], v3, s[20:23], s28 offen offset:16" % (G + 12, G + 15))
    a.e("buffer_load_dwordx4 v[%d:%d], v3, s[20:23], s28 offen offset:2048" % (G + 16, G + 19))
    a.e("buffer_load_dwordx4 v[%d:%d], v3, s[20:23], s28 offen offset:2064" % (G + 20, G + 23))
    a.e("s_waitcnt lgkmcnt(0)")
    for c in range(2):
        M32(a, VS[c], VK, VQ[c], "0")
        M32(a, VS[c], VK + 4, VQ[c] + 4, VS[c])
    a.e("s_nop 15")
    for c in range(2):
        rowmax(a, c); set_negm(a, c, 4)
    a.label("%s_havemax" % name)
    a.e("s_waitcnt lgkmcnt(0)")
    a.e("s_nop 0")
    M32(a, VS[0], VK, VQ[0], VNM[0])
    M32(a, VS[0], VK + 4, VQ[0] + 4, VS[0])
    a.e("ds_read_b128 v[%d:%d], v2 offset:%d" % (VV, VV + 3, 2048))
    a.e("s_nop 15")
    if PF_W2:
        a.e("s_lshl_b32 s91, s%d, 7" % SNT)
        base(a, 16, W2, "s91", 3584 * 2048)
        base(a, 40, WO, "s91", 1024 * 2048)
        a.e("s_and_b32 s91, s%d, 3" % SMT); a.e("s_lshl_b32 s91, s91, 4")
        a.e("v_lshrrev_b32 v3, 4, v1"); a.e("v_lshlrev_b32 v3, 6, v3"); a.e("v_and_b32 v4, 15, v1"); a.e("v_add_u32 v3, v3, v4"); a.e("v_add_u32 v3, s91, v3")
        a.e("v_lshlrev_b32 v215, 11, v3")
        a.e("s_mov_b32 s29, 0"); a.e("s_mov_b32 s32, 0")
    dbg_mark(a, name + "_m1", 5)
    a.e("s_mov_b32 s33, 4")
    a.label("%s_loop" % name)
    for i in range(16):
        ex = None
        if i % 4 == 3:
            a.e("s_waitcnt vmcnt(4)")
            a.e("s_barrier")
            slot = (i // 4 + 3) % 4
            ex = [["s_add_u32 m0, s30, %d" % (slot * 16384), "s_add_u32 s31, s31, 16384", "buffer_load_dwordx4 v2, s[8:11], s31 offen sc1 lds"]]
            ex += [["buffer_load_dwordx4 v2, s[8:11], s31 offen offset:%d sc1 lds" % (q * 1024)] for q in range(1, 4)]
        A.phase(a.e, 0, i, koff, extra=ex)
        if i % 4 == 0 and PF_W2:
            lab = "%s_pf2_%d" % (name, i)
            a.e("s_cmp_lg_u32 s%d, %d" % (SW, i // 4)); a.e("s_cbranch_scc1 %s" % lab)
            a.e("buffer_load_dword v216, v215, s[16:19], s29 offen")
            a.e("s_cmp_lg_u32 s33, 1"); a.e("s_cbranch_scc1 %s" % lab)
            a.e("buffer_load_dword v217, v215, s[40:43], s32 offen")
            a.label(lab)
            a.e("s_add_u32 s29, s29, %d" % (4 * 64 * 2048))
            a.e("s_cmp_lg_u32 s33, 1"); a.e("s_cbranch_scc1 %s_n" % lab)
            a.e("s_add_u32 s32, s32, %d" % (4 * 64 * 2048))
            a.label("%s_n" % lab)
        A.phase(a.e, 1, i, koff)
    a.e("s_cmp_lg_u32 s33, 4")
    a.e("s_cbranch_scc1 %s_nog2" % name)
    a.e("s_cmp_lg_u32 s39, 0")
    a.e("s_cbranch_scc1 %s_nog2" % name)
    gen_gate(a)
    a.label("%s_nog2" % name)
    a.e("s_sub_u32 s33, s33, 1")
    a.e("s_cmp_lg_u32 s33, 0")
    a.e("s_cbranch_scc1 %s_loop" % name)
    a.e("s_waitcnt vmcnt(0) lgkmcnt(0)")
    M32(a, VO[1], VV + 4, VP[1] + 4, VO[1])
    if A.SMF: A.LS(a.e, 1)
    else: M16(a, VL[1], VSEL, VP[1] + 4, VL[1])
    a.stamp(4)
    a.e("s_nop 15")
    a.e("v_mov_b32 v5, 0x%x" % f2u(2.0 ** 30))
    a.e("v_mov_b32 v7, 0")
    a.e("s_mov_b64 s[34:35], 0")
    if A.SMF:
        for c in range(2): a.e("v_add_f32 v%d, v%d, v%d" % (VL[c], VL[c], VL[c] + 1))
    for c in range(2):
        a.e("v_rcp_f32 v4, v%d" % VL[c])
        a.e("v_cmp_nle_f32 vcc, v%d, v5" % VL[c])
        a.e("s_or_b64 s[34:35], s[34:35], vcc")
        for k in range(16): a.e("v_mul_f32 v%d, v%d, v4" % (VO[c] + k, VO[c] + k))
        for k in range(16): a.e("v_fma_f32 v7, v%d, 0, v7" % (VO[c] + k))
    a.e("v_cmp_u_f32 vcc, v7, v7")
    a.e("s_or_b64 s[34:35], s[34:35], vcc")
    if "nofb" in EXP: a.e("s_mov_b64 s[34:35], 0")
    for c in range(2):
        for k in range(8): a.e("v_cvt_pk_bf16_f32 v%d, v%d, v%d" % (VT + 8 * c + k, VO[c] + 2 * k, VO[c] + 2 * k + 1))
    for c in range(2):
        for m in range(2):
            a.e("buffer_store_dwordx4 v[%d:%d], v2, s[12:15], s38 offen offset:%d sc1" % (VT + 8 * c + 4 * m, VT + 8 * c + 4 * m + 3, c * 2048 + m * 1024))
    a.e("s_cmp_lg_u32 s39, 0")
    a.e("s_cbranch_scc1 %s_ok" % name)
    a.e("s_cmp_eq_u64 s[34:35], 0")
    a.e("s_cbranch_scc1 %s_ok" % name)
    a.e("v_mov_b32 v4, 0x%x" % FLAG); a.e("v_mov_b32 v5, 1")
    a.e("ds_write_b32 v4, v5")
    a.label("%s_ok" % name)
    a.e("s_waitcnt vmcnt(0) lgkmcnt(0)")
    a.e("s_barrier")
    a.e("v_mov_b32 v4, 0x%x" % FLAG)
    a.e("ds_read_b32 v5, v4")
    a.e("s_waitcnt lgkmcnt(0)")
    a.e("v_readfirstlane_b32 s36, v5")
    a.e("s_nop 3")
    a.e("s_cmp_eq_u32 s36, 0")
    a.e("s_cbranch_scc1 %s_store" % name)
    a.e("s_cmp_lg_u32 s39, 0")
    a.e("s_cbranch_scc1 %s_store" % name)
    a.e("s_barrier")
    a.e("s_mov_b32 s39, 1")
    a.e("v_mov_b32 v%d, 0xff800000" % VT)
    a.e("v_mov_b32 v%d, 0xff800000" % (VT + 1))
    a.e("s_mov_b32 s37, 0")
    a.label("%s_mx" % name)
    a.e("buffer_load_dwordx4 v[%d:%d], v2, s[8:11], s37 offen sc1" % (VK, VK + 3))
    a.e("buffer_load_dwordx4 v[%d:%d], v2, s[8:11], s37 offen offset:1024 sc1" % (VK + 4, VK + 7))
    a.e("s_waitcnt vmcnt(0)")
    for c in range(2):
        M32(a, VS[c], VK, VQ[c], "0")
        M32(a, VS[c], VK + 4, VQ[c] + 4, VS[c])
    a.e("s_nop 15")
    for c in range(2):
        for k in range(0, 16, 2): a.e("v_max3_f32 v%d, v%d, v%d, v%d" % (VT + c, VT + c, VS[c] + k, VS[c] + k + 1))
    a.e("s_add_u32 s37, s37, 4096")
    a.e("s_cmp_lt_u32 s37, %d" % (64 * 4096))
    a.e("s_cbranch_scc1 %s_mx" % name)
    for c in range(2): set_negm(a, c, VT + c)
    a.e("s_branch %s_pass" % name)
    a.label("%s_store" % name)
    a.e("s_cmp_lg_u32 s%d, 0" % SW)
    a.e("s_cbranch_scc1 %s_nosig" % name)
    a.e("s_lshl_b32 s28, s%d, 8" % SMT); a.e("s_lshl_b32 s91, s%d, 2" % SNT); a.e("s_add_u32 s28, s28, s91"); a.e("s_add_u32 s28, s28, %d" % F_O)
    set_flag(a, 28, nrep=1)
    a.label("%s_nosig" % name)
    dbg_mark(a, name + "_m2", 6)
    a.stamp(5)
    a.stamp_flush(WS, WS + 1, WS_PROF, SW, 4)
    a.e("s_endpgm")

def gen_role_a(a, name):
    if PRIO["a1"]: a.e("s_setprio %d" % PRIO["a1"])
    a1_setup(a)
    a.e("s_mov_b32 s44, 0x%x" % f2u(QSCALE)); a.e("s_mov_b32 s45, s44")
    a.e("s_lshl_b32 s94, s%d, 7" % SNT)
    a.e("s_waitcnt lgkmcnt(0)")
    a.e("s_cmp_lg_u32 s2, 0"); a.e("s_cbranch_scc1 %s_noclr" % name)
    base(a, 52, WS, "0x%x" % WS_F, F_BYTES)
    a.e("s_lshl_b32 s91, s%d, 12" % SW)
    for k in range(4): a.e("v_mov_b32 v%d, 0" % (8 + k))
    for k in range(4): a.e("buffer_store_dwordx4 v[8:11], v2, s[52:55], s91 offen offset:%d sc1" % (k * 1024))
    a.label("%s_noclr" % name)
    base(a, 8, WQ, "s94", 1024 * 2048)
    base(a, 4, X, None, 2048 * 2048)
    if LAT_A1:
        lat_r(a, 59, LATN)
        a.e("s_mov_b32 s48, s8"); a.e("s_mov_b32 s49, s9")
        lat_base(a, 8, 48, 0, 59, LATN, LATC * 64 * 2048)
        lat_base(a, 4, X, 0, 59, LATN, LATC * 128)
    a.e("s_cmp_eq_u32 s%d, 0" % SNT); a.e("s_cbranch_scc1 %s_aK" % name)
    a.e("s_cmp_eq_u32 s%d, 1" % SNT); a.e("s_cbranch_scc1 %s_aV" % name)
    gen_a1(a, name + "_n", None)
    a.e("s_branch %s_attn" % name)
    a.label("%s_aK" % name); a.reset_counts()
    base(a, 12, WK, None, 1024 * 64)
    if LAT_A1:
        a.e("s_mov_b32 s50, s12"); a.e("s_mov_b32 s51, s13")
        lat_base(a, 12, 50, 0, 59, LATN, LATC * 64 * 64)
    gen_a1(a, name + "_k", "K")
    a.e("s_branch %s_attn" % name)
    a.label("%s_aV" % name); a.reset_counts()
    base(a, 12, WV, None, 1024 * 64)
    if LAT_A1:
        a.e("s_mov_b32 s50, s12"); a.e("s_mov_b32 s51, s13")
        lat_base(a, 12, 50, 0, 59, LATN, LATC * 64 * 64)
    gen_a1(a, name + "_v", "V")
    a.label("%s_attn" % name)
    gen_attn(a, name)

BW = [8, 36]
BX = [64, 80]
HAC = 100
HB = 212
B_XD, B_WD, B_XR, B_BI, B_WR = 240, 241, 243, 245, 246
LB_X, LB_W = 0, 32768
def hacc(j, tb): return HAC + 16 * j + 4 * tb

def b1_setup(a):
    a.e("v_lshrrev_b32 v3, 3, v1"); a.e("v_and_b32 v4, 6, v3"); a.e("v_and_b32 v5, 7, v1"); a.e("v_xor_b32 v4, v4, v5")
    a.e("v_lshlrev_b32 v4, 4, v4"); a.e("v_lshl_add_u32 v%d, v3, 11, v4" % B_XD)
    a.e("s_lshl_b32 s91, s%d, 7" % SMT); a.e("s_lshl_b32 s92, s%d, 5" % SW); a.e("s_add_u32 s91, s91, s92"); a.e("s_lshl_b32 s91, s91, 11")
    for q in range(4): a.e("s_add_u32 s%d, s91, %d" % (28 + q, q * (8 * 2048 - 1024)))
    a.e("s_lshl_b32 s35, s%d, 12" % SW); a.e("s_add_u32 s36, s35, %d" % LB_W)
    a.e("s_add_u32 s35, s35, %d" % LB_X)

def b1_setup_w(a):
    a.e("v_lshrrev_b32 v3, 5, v1"); a.e("v_bfe_u32 v4, v1, 1, 4"); a.e("v_and_b32 v9, 1, v1"); a.e("v_lshlrev_b32 v9, 4, v9")
    a.e("s_and_b32 s91, s%d, 1" % SW); a.e("s_lshl_b32 s91, s91, 2")
    a.e("v_or_b32 v5, s91, v3")
    a.e("v_mul_u32_u24 v8, 7168, v3"); a.e("v_add_u32 v8, v8, v9")
    a.e("v_mov_b32 v10, 0x40000000")
    for par in range(2):
        a.e("v_xor_b32 v6, %d, v5" % (2 * par))
        a.e("v_xor_b32 v6, v6, v4")
        a.e("v_lshl_add_u32 v7, v6, 5, v8")
        a.e("v_cmp_le_u32 vcc, 14, v6")
        a.e("s_nop 1")
        a.e("v_cndmask_b32 v%d, v7, v10, vcc" % (B_WD + par))

def b1_reads_setup(a):
    a.e("v_and_b32 v5, 15, v1"); a.e("v_lshrrev_b32 v6, 4, v1"); a.e("v_bfe_u32 v7, v1, 2, 2"); a.e("v_and_b32 v8, 3, v1")
    a.e("s_and_b32 s37, s%d, 1" % SW); a.e("s_lshr_b32 s38, s%d, 1" % SW)
    a.e("v_and_b32 v3, 6, v5"); a.e("v_xor_b32 v3, v3, v6"); a.e("v_lshlrev_b32 v4, 4, v3"); a.e("v_lshl_add_u32 v4, v5, 7, v4")
    a.e("s_lshl_b32 s91, s37, 13"); a.e("v_add_u32 v%d, s91, v4" % B_XR); a.e("v_xor_b32 v%d, 64, v%d" % (B_XR + 1, B_XR))
    a.e("v_and_b32 v3, 1, v6"); a.e("v_lshl_or_b32 v3, v3, 2, v7")
    a.e("v_lshl_add_u32 v4, v6, 3, v7"); a.e("v_lshlrev_b32 v4, 9, v4"); a.e("v_lshl_add_u32 v4, v8, 3, v4"); a.e("v_add_u32 v4, %d, v4" % LB_W)
    a.e("s_mul_i32 s91, s38, 7")
    for j in range(7):
        a.e("s_add_u32 s94, s91, %d" % j)
        a.e("v_xor_b32 v9, s94, v3")
        a.e("v_lshl_add_u32 v%d, v9, 5, v4" % (B_WR + j))
    a.e("v_lshlrev_b32 v%d, 3, v6" % B_BI)
    a.e("s_mul_i32 s39, s%d, 448" % SNT); a.e("s_mul_i32 s91, s38, 224"); a.e("s_add_u32 s39, s39, s91")

def b1_x0(a, xid):
    a.set_m0(35, 0)
    for q in range(4):
        xid[0] = a.vm("buffer_load_dwordx4 v%d, s[4:7], s%d offen offset:%d lds" % (B_XD, 28 + q, q * 1024))
    if LAT_B1 and LATC == 1: lat_base(a, 4, X, 1, 59, LATN, 128)
    elif ROT_B1: rot_adv(a, 4, X, 57, 128, 2048)
    else: add64(a, 4, 128)

def gen_b1(a, name, after_loop, xid):
    NH = 32
    wid = {}
    def wdma1(h, i):
        a.set_m0(36, (h % 3) * 16384)
        wid[h] = a.vm("buffer_load_dwordx4 v%d, s[8:11], s%d offen offset:%d lds" % (B_WD + (i & 1), 48 + i, i * 1024))
        if i == 3:
            if LAT_B1 and (h + 1) % (2 * LATC) == 0:
                if h + 1 < NH: lat_base(a, 8, 12, (h + 1) // (2 * LATC), 59, LATN, 2 * LATC * 32 * 7168)
            elif ROT_B1: rot_adv(a, 8, 12, 56, 32 * 7168, 1024 * 7168)
            else: add64(a, 8, 32 * 7168)
    def xdma1(s, q):
        a.set_m0(35, (s % 2) * 16384)
        xid[s] = a.vm("buffer_load_dwordx4 v%d, s[4:7], s%d offen offset:%d lds" % (B_XD, 28 + q, q * 1024))
        if q == 3:
            if LAT_B1 and (s + 1) % LATC == 0:
                if s + 1 < 16: lat_base(a, 4, X, (s + 1) // LATC, 59, LATN, LATC * 128)
            elif ROT_B1: rot_adv(a, 4, X, 57, 128, 2048)
            else: add64(a, 4, 128)
    def wdma(h):
        for i in range(4): wdma1(h, i)
    def xdma(s):
        for q in range(4): xdma1(s, q)
    wdma(0); wdma(1)
    b1_reads_setup(a)
    base(a, 24, B1P, None, 3584 * 2)
    bias = []
    for j in range(7):
        bias.append(a.vm("buffer_load_dwordx2 v[%d:%d], v%d, s[24:27], s39 offen offset:%d" % (HB + 4 * j, HB + 4 * j + 1, B_BI, 32 * j)))
    def pf(hh, wave):
        lab = "%s_pf%d" % (name, hh)
        a.e("s_cmp_lg_u32 s%d, %d" % (SW, wave)); a.e("s_cbranch_scc1 %s" % lab)
        a.e("buffer_load_dword v96, v97, s[16:19], s34 offen")
        a.label(lab)
        a.e("s_add_u32 s34, s34, %d" % (32 * 7168))
    def pfx(st, wave):
        lab = "%s_px%d" % (name, st)
        a.e("s_cmp_lg_u32 s%d, %d" % (SW, wave)); a.e("s_cbranch_scc1 %s" % lab)
        a.e("buffer_load_dword v96, v98, s[20:23], s39x offen".replace("s39x", "s58"))
        a.label(lab)
        a.e("s_add_u32 s58, s58, 128")
    if PF_BX:
        base(a, 20, X, None, 2048 * 2048)
        a.e("s_and_b32 s91, s%d, 7" % SNT); a.e("s_lshl_b32 s91, s91, 4"); a.e("s_lshl_b32 s94, s%d, 7" % SMT); a.e("s_add_u32 s91, s91, s94")
        a.e("v_add_u32 v3, s91, v1"); a.e("v_lshlrev_b32 v3, 11, v3"); a.e("v_mov_b32 v4, 0x40000000")
        a.e("v_cmp_le_u32 vcc, 16, v1"); a.e("s_nop 1"); a.e("v_cndmask_b32 v98, v3, v4, vcc")
        a.e("s_mov_b32 s58, %d" % (2 * 128))
    if PF_B1:
        a.e("s_mul_i32 s91, s%d, 448" % SNT); a.e("s_and_b32 s91, s91, 0xffffff80")
        base(a, 16, W1, "s91", 1024 * 7168)
        a.e("s_and_b32 s91, s%d, 3" % SMT); a.e("s_lshl_b32 s91, s91, 3")
        a.e("v_lshrrev_b32 v3, 2, v1"); a.e("v_add_u32 v3, s91, v3"); a.e("v_mul_u32_u24 v3, 7168, v3")
        a.e("v_and_b32 v4, 3, v1"); a.e("v_lshl_add_u32 v3, v4, 7, v3"); a.e("v_mov_b32 v4, 0x40000000")
        a.e("v_cmp_le_u32 vcc, 32, v1"); a.e("s_nop 1"); a.e("v_cndmask_b32 v97, v3, v4, vcc")
        a.e("s_mov_b32 s34, %d" % (3 * 32 * 7168))
    a.wait(vm=max(wid[0], xid[0])); a.e("s_barrier")
    a.stamp(1)
    if BPRO is not None: a.e("s_setprio %d" % PRIO["b1"])
    wdma(2); xdma(1)
    if BURST: burst(a)
    if PF_B1:
        for hh in range(3, PF_B1): pf(hh, hh & 3)
    if PF_BX:
        for st in range(2, PF_BX): pfx(st, st & 3)
    rd = {}
    def rlist(h):
        s, kk = h // 2, h % 2
        L = []
        for tb in range(4):
            r = BX[h % 2] + 4 * tb
            L.append("ds_read_b128 v[%d:%d], v%d offset:%d" % (r, r + 3, B_XR + kk, (s % 2) * 16384 + tb * 2048))
        for j in range(7):
            r = BW[h % 2] + 4 * j
            o = (h % 3) * 16384
            L.append("ds_read_b64_tr_b16 v[%d:%d], v%d offset:%d" % (r, r + 1, B_WR + j, o))
            L.append("ds_read_b64_tr_b16 v[%d:%d], v%d offset:%d" % (r + 2, r + 3, B_WR + j, o + 2048))
        return L
    for x in rlist(0): rd[0] = a.ds(x)
    a.wait(vm=bias[-1])
    for j in range(7):
        b = HB + 4 * j
        a.e("v_and_b32 v%d, 0xffff0000, v%d" % (b + 3, b + 1))
        a.e("v_lshlrev_b32 v%d, 16, v%d" % (b + 2, b + 1))
        a.e("v_and_b32 v%d, 0xffff0000, v%d" % (b + 1, b))
        a.e("v_lshlrev_b32 v%d, 16, v%d" % (b, b))
    for h in range(NH):
        if "b1short" in EXP and 4 <= h < NH - 4: continue
        s, kk = h // 2, h % 2
        need = None
        if h + 1 < NH:
            need = wid[h + 1]
            need = max(need, xid[(h + 1) // 2])
        a.wait(vm=need if "nowait" not in EXP else None, lg=rd[h])
        if "nobar" not in EXP: a.e("s_barrier")
        if DIAG == "b1" and h in (8, 16, 24): a.stamp(1 + h // 8, force=True)
        if B1SW and h == B1SW[0]: a.e("s_setprio %d" % B1SW[1])
        todo = rlist(h + 1) if h + 1 < NH else []
        if "nords" in EXP and todo: rd[h + 1] = a.lg_n - 1; todo = []
        dma = []
        if h + 3 < NH:
            if "now" in EXP: wid[h + 3] = a.vm_n - 1
            else: dma += [(wdma1, h + 3, i) for i in range(4)]
        if kk == 1 and s + 2 < 16:
            if "nox" in EXP: xid[s + 2] = a.vm_n - 1
            else: dma += [(xdma1, s + 2, q) for q in range(4)]
        if h == NH - 1: after_loop()
        if h == 16 and "noa" not in EXP: early_cleared(a, name + "_ec")
        n = 0
        for j in range(7):
            for tb in range(4):
                d = hacc(j, tb)
                c = "v[%d:%d]" % (HB + 4 * j, HB + 4 * j + 3) if h == 0 else "v[%d:%d]" % (d, d + 3)
                a.e("v_mfma_f32_16x16x32_bf16 v[%d:%d], v[%d:%d], v[%d:%d], %s" % (d, d + 3, BW[h % 2] + 4 * j, BW[h % 2] + 4 * j + 3, BX[h % 2] + 4 * tb, BX[h % 2] + 4 * tb + 3, c))
                n += 1
                if todo and n >= 1 and tb != 3:
                    rd[h + 1] = a.ds(todo.pop(0))
                if dma and (tb == 3 or (tb == 1 and j == 3)):
                    f, i0, i1 = dma.pop(0)
                    f(i0, i1)
                if tb == 3 and j == 4 and PF_B1 and h + PF_B1 < NH: pf(h + PF_B1, h & 3)
                if tb == 3 and j == 5 and PF_BX and kk == 0 and s + PF_BX < 16: pfx(s + PF_BX, s & 3)
        while todo: rd[h + 1] = a.ds(todo.pop(0))
        assert not dma
    a.stamp(5 if DIAG == "b1" else 2, force=True)
    if DIAG == "b1": a.nostamp = True

def b1_epilogue(a):
    a.e("s_mov_b32 s44, 0x%x" % f2u(LOG2E)); a.e("s_mov_b32 s45, s44")
    a.e("s_mov_b32 s46, 0x%x" % f2u(-2.0)); a.e("s_mov_b32 s47, s46")
    base(a, 20, WS, "0x%x" % WS_H, WS_H_BYTES)
    a.e("s_lshl_b32 s91, s%d, 2" % SMT); a.e("s_lshl_b32 s94, s37, 1"); a.e("s_add_u32 s91, s91, s94")
    a.e("s_mul_i32 s91, s91, 224"); a.e("s_mul_i32 s94, s%d, 14" % SNT); a.e("s_add_u32 s91, s91, s94")
    a.e("s_mul_i32 s94, s38, 7"); a.e("s_add_u32 s91, s91, s94"); a.e("s_lshl_b32 s56, s91, 10")
    a.e("s_add_u32 s57, s56, %d" % (224 * 1024))
    a.e("s_add_u32 s58, s56, 4096"); a.e("s_add_u32 s59, s57, 4096")
    a.e("s_nop 7")
    if MISH2:
        for j in range(7):
            P = [(hacc(j, 2 * p), HB + 16 * p) for p in range(2)]
            for Aa, t in P:
                for k in range(4): a.e("v_pk_mul_f32 v[%d:%d], v[%d:%d], s[44:45]" % (t + 2 * k, t + 2 * k + 1, Aa + 2 * k, Aa + 2 * k + 1))
            for Aa, t in P:
                for k in range(8): a.e("v_exp_f32 v%d, v%d" % (t + k, t + k))
            for Aa, t in P:
                for k in range(4): a.e("v_pk_add_f32 v[%d:%d], v[%d:%d], 2.0 op_sel_hi:[1,0]" % (t + 8 + 2 * k, t + 9 + 2 * k, t + 2 * k, t + 2 * k + 1))
            for Aa, t in P:
                for k in range(4): a.e("v_pk_fma_f32 v[%d:%d], v[%d:%d], v[%d:%d], 2.0 op_sel_hi:[1,1,0]" % (t + 2 * k, t + 2 * k + 1, t + 2 * k, t + 2 * k + 1, t + 8 + 2 * k, t + 9 + 2 * k))
            for Aa, t in P:
                for k in range(8): a.e("v_rcp_f32 v%d, v%d" % (t + k, t + k))
            for Aa, t in P:
                for k in range(4): a.e("v_pk_fma_f32 v[%d:%d], v[%d:%d], s[46:47], 1.0 op_sel_hi:[1,1,0]" % (t + 2 * k, t + 2 * k + 1, t + 2 * k, t + 2 * k + 1))
            for Aa, t in P:
                for k in range(4): a.e("v_pk_mul_f32 v[%d:%d], v[%d:%d], v[%d:%d]" % (t + 2 * k, t + 2 * k + 1, t + 2 * k, t + 2 * k + 1, Aa + 2 * k, Aa + 2 * k + 1))
            for Aa, t in P:
                for k in range(4): a.e("v_cvt_pk_bf16_f32 v%d, v%d, v%d" % (Aa + k, t + 2 * k, t + 2 * k + 1))
            a.e("s_nop 0")
            for Aa, t in P:
                a.e("v_permlane16_swap_b32 v%d, v%d" % (Aa, Aa + 2))
                a.e("v_permlane16_swap_b32 v%d, v%d" % (Aa + 1, Aa + 3))
            for p, (Aa, t) in enumerate(P):
                a.vm("buffer_store_dwordx4 v[%d:%d], v2, s[20:23], s%d offen offset:%d sc1" % (Aa, Aa + 3, (56 if j < 4 else 58) + p, (j % 4) * 1024))
        return
    cnt = 0
    for j in range(7):
        for pair in range(2):
            Aa = hacc(j, 2 * pair)
            t = HB + 16 * (cnt % 2); q = t + 12; cnt += 1
            if "nomish" in EXP:
                for k in range(8): a.e("v_mov_b32 v%d, v%d" % (t + k, Aa + k))
            elif PKMISH:
                for k in range(4): a.e("v_pk_mul_f32 v[%d:%d], v[%d:%d], s[44:45]" % (t + 2 * k, t + 2 * k + 1, Aa + 2 * k, Aa + 2 * k + 1))
                for k in range(8): a.e("v_exp_f32 v%d, v%d" % (t + k, t + k))
                for k in range(4): a.e("v_pk_add_f32 v[%d:%d], v[%d:%d], 2.0 op_sel_hi:[1,0]" % (t + 8 + 2 * k, t + 9 + 2 * k, t + 2 * k, t + 2 * k + 1))
                for k in range(4): a.e("v_pk_fma_f32 v[%d:%d], v[%d:%d], v[%d:%d], 2.0 op_sel_hi:[1,1,0]" % (t + 2 * k, t + 2 * k + 1, t + 2 * k, t + 2 * k + 1, t + 8 + 2 * k, t + 9 + 2 * k))
                for k in range(8): a.e("v_rcp_f32 v%d, v%d" % (t + k, t + k))
                for k in range(4): a.e("v_pk_fma_f32 v[%d:%d], v[%d:%d], s[46:47], 1.0 op_sel_hi:[1,1,0]" % (t + 2 * k, t + 2 * k + 1, t + 2 * k, t + 2 * k + 1))
                for k in range(4): a.e("v_pk_mul_f32 v[%d:%d], v[%d:%d], v[%d:%d]" % (t + 2 * k, t + 2 * k + 1, t + 2 * k, t + 2 * k + 1, Aa + 2 * k, Aa + 2 * k + 1))
            else:
                for k in range(8): a.e("v_mul_f32 v%d, s44, v%d" % (t + k, Aa + k))
                for k in range(8): a.e("v_exp_f32 v%d, v%d" % (t + k, t + k))
                for k in range(8): a.e("v_add_f32 v%d, 2.0, v%d" % (t + 8 + k, t + k))
                for k in range(8): a.e("v_fma_f32 v%d, v%d, v%d, 2.0" % (t + k, t + k, t + 8 + k))
                for k in range(8): a.e("v_rcp_f32 v%d, v%d" % (t + k, t + k))
                for k in range(8): a.e("v_fma_f32 v%d, v%d, -2.0, 1.0" % (t + k, t + k))
                for k in range(8): a.e("v_mul_f32 v%d, v%d, v%d" % (t + k, t + k, Aa + k))
            for k in range(4): a.e("v_cvt_pk_bf16_f32 v%d, v%d, v%d" % (q + k, t + 2 * k, t + 2 * k + 1))
            a.e("s_nop 1")
            a.e("v_permlane16_swap_b32 v%d, v%d" % (q, q + 2))
            a.e("v_permlane16_swap_b32 v%d, v%d" % (q + 1, q + 3))
            if "nohstore" not in EXP: a.vm("buffer_store_dwordx4 v[%d:%d], v2, s[20:23], s%d offen offset:%d%s" % (q, q + 3, (56 if j < 4 else 58) + pair, (j % 4) * 1024, " sc1" if "plainh" not in EXP else ""))

NHR = 20; NWU = 8
BH = 32; BA = 144; BAC = 168; AAC = 200
POLL_U = 55; OBURST = 4; BB = 1
BSW = None
def gen_role_b(a, name):
    a.e("s_setprio %d" % (BPRO if BPRO is not None else PRIO["b1"]))
    for e in EXP:
        if e.startswith("bdelay"):
            for k in range(int(e[6:])): a.e("s_sleep 32")
    b1_setup(a)
    a.e("s_waitcnt lgkmcnt(0)")
    base(a, 4, X, None, 2048 * 2048)
    if LAT_B1:
        lat_r(a, 59, LATN)
        lat_base(a, 4, X, 0, 59, LATN, LATC * 128)
    if ROT_B1:
        a.e("s_add_u32 s91, s%d, s%d" % (SMT, SNT)); a.e("s_and_b32 s91, s91, 3"); a.e("s_mul_i32 s91, s91, %d" % ROT_B1)
        a.e("s_lshl_b32 s57, s91, 6")
        a.e("s_mul_i32 s56, s91, %d" % (32 * 7168))
        a.e("s_add_u32 s4, s%d, s57" % X); a.e("s_addc_u32 s5, s%d, 0" % (X + 1))
    xid0 = {}
    b1_x0(a, xid0)
    b1_setup_w(a)
    a.e("s_mul_i32 s94, s%d, 448" % SNT)
    a.e("s_add_u32 s92, s%d, s94" % W1); a.e("s_addc_u32 s93, s%d, 0" % (W1 + 1))
    srd(a, 8, 92, 93, 1024 * 7168)
    if LAT_B1:
        a.e("s_mov_b32 s12, s92"); a.e("s_mov_b32 s13, s93")
        lat_base(a, 8, 12, 0, 59, LATN, 2 * LATC * 32 * 7168)
    if ROT_B1:
        a.e("s_mov_b32 s12, s92"); a.e("s_mov_b32 s13, s93")
        a.e("s_add_u32 s8, s12, s56"); a.e("s_addc_u32 s9, s13, 0")
    a.e("s_mul_i32 s91, s%d, %d" % (SW, 8 * 7168))
    for i in range(4): a.e("s_add_u32 s%d, s91, %d" % (48 + i, i * (2 * 7168 - 1024)))
    NG = 288; NU = 72; GB = 224; UB = 56
    uid = {}; hid = {}
    st = dict(nu=0)
    def wdma(u):
        if "nobw" in EXP and 8 <= u < UB:
            uid[u] = a.vm_n - 1
            return
        sb = 16 if u < UB else 40
        a.set_m0(35, (u % NWU) * 8192)
        a.vm("buffer_load_dwordx4 v10, s[%d:%d], s33 offen lds" % (sb, sb + 3))
        uid[u] = a.vm("buffer_load_dwordx4 v10, s[%d:%d], s32 offen offset:1024 lds" % (sb, sb + 3))
        if LAT_B and (u + 1) % LBC == 0:
            if u + 1 < UB: lat_base(a, 16, 12, (u + 1) // LBC, 36, LBN, LBC * 64 * 2048)
            elif UB < u + 1 < NU: lat_base(a, 40, 14, (u + 1 - UB) // LBC, 36, LBN, LBC * 64 * 2048)
        else: add64(a, sb, 64 * 2048)
    def after_loop():
        a.e("v_lshrrev_b32 v3, 3, v1"); a.e("v_bfe_u32 v4, v1, 4, 1"); a.e("v_lshlrev_b32 v4, 2, v4"); a.e("v_and_b32 v5, 7, v1")
        a.e("v_xor_b32 v4, v4, v5"); a.e("v_lshlrev_b32 v4, 4, v4"); a.e("v_lshl_add_u32 v10, v3, 11, v4")
        a.e("s_lshl_b32 s33, s%d, 15" % SW); a.e("s_add_u32 s32, s33, %d" % (8 * 2048 - 1024))
        a.e("s_lshl_b32 s35, s%d, 11" % SW)
        a.e("s_lshl_b32 s34, s%d, 7" % SNT)
        base(a, 16, W2, "s34", 3584 * 2048)
        base(a, 40, WO, "s34", 1024 * 2048)
        if LAT_B:
            lat_r(a, 36, LBN)
            a.e("s_mov_b32 s12, s16"); a.e("s_mov_b32 s13, s17"); a.e("s_mov_b32 s14, s40"); a.e("s_mov_b32 s15, s41")
            lat_base(a, 16, 12, 0, 36, LBN, LBC * 64 * 2048)
            lat_base(a, 40, 14, 0, 36, LBN, LBC * 64 * 2048)
        a.cur_m0 = None
        for u in range(4): wdma(u)
        st["nu"] = 4
    gen_b1(a, name + "_b1", after_loop, xid0)
    if "b1only" in EXP:
        a.e("s_waitcnt vmcnt(0)")
        a.stamp_flush(WS, WS + 1, WS_PROF, SW, 4)
        a.e("s_endpgm")
        return
    if PRIO["mish"] != PRIO["b1"]: a.e("s_setprio %d" % PRIO["mish"])
    b1_epilogue(a)
    for u in range(4, NWU - 1): wdma(u)
    st["nu"] = NWU - 1
    a.e("s_waitcnt vmcnt(0)"); a.vm_done = a.vm_n
    a.e("s_barrier")
    a.e("s_cmp_lg_u32 s%d, 0" % SW); a.e("s_cbranch_scc1 %s_hw" % name)
    check_cleared(a, name + "_clrb")
    a.e("s_lshl_b32 s28, s%d, 8" % SMT); a.e("s_add_u32 s29, s28, %d" % F_H)
    a.e("s_lshl_b32 s91, s%d, 2" % SNT); a.e("s_add_u32 s28, s29, s91")
    set_flag(a, 28, nrep=1)
    a.stamp(3)
    if "nohwait" not in EXP: wait_flags(a, name + "_hp", 29, 15)
    a.label("%s_hw" % name)
    a.e("s_lshl_b32 s90, s%d, 2" % SMT); a.e("s_add_u32 s56, s90, s%d" % SW)
    a.e("s_mul_i32 s31, s56, %d" % (224 * 1024))
    a.e("s_lshl_b32 s38, s56, 16")
    if LAT_B:
        a.e("s_mov_b32 s57, s31"); a.e("s_mov_b32 s58, s38")
        lat_off(a, 31, 57, 0, 36, LBN, LBC * 4096)
        lat_off(a, 38, 58, 0, 36, LBN, LBC * 4096)
    base(a, 8, WS, "0x%x" % WS_H, WS_H_BYTES)
    base(a, 4, WS, "0x%x" % WS_O, 4 << 20)
    base(a, 20, WS, "0x%x" % WS_G, 256 * 128)
    base(a, 24, OUT, None, 2048 * 2048)
    a.e("v_lshrrev_b32 v3, 5, v1"); a.e("v_bfe_u32 v4, v1, 2, 2"); a.e("v_bfe_u32 v5, v1, 4, 1"); a.e("v_and_b32 v6, 3, v1")
    a.e("v_lshrrev_b32 v7, 1, v4"); a.e("v_lshlrev_b32 v7, 6, v7"); a.e("v_lshl_add_u32 v7, v5, 5, v7"); a.e("v_lshl_add_u32 v7, v6, 3, v7")
    a.e("v_lshl_add_u32 v8, v3, 3, v4"); a.e("v_lshl_add_u32 v12, v8, 7, v7"); a.e("v_xor_b32 v13, 64, v12")
    a.e("v_lshl_add_u32 v8, v3, 2, v4"); a.e("v_lshl_add_u32 v14, v8, 7, v7"); a.e("v_xor_b32 v15, 64, v14")
    a.e("v_and_b32 v4, 31, v1"); a.e("s_lshl_b32 s91, s56, 5"); a.e("v_add_u32 v4, s91, v4")
    a.e("v_lshrrev_b32 v5, 3, v4"); a.e("v_and_b32 v6, 7, v4"); a.e("v_lshlrev_b32 v6, 2, v6"); a.e("v_lshl_add_u32 v16, v5, 7, v6")
    a.e("v_lshlrev_b32 v17, 11, v4"); a.e("v_lshl_add_u32 v17, v3, 4, v17")
    a.e("s_lshl_b32 s37, s%d, 8" % SMT); a.e("s_add_u32 s37, s37, %d" % F_O)
    a.e("s_barrier")
    a.stamp(4)
    a.e("s_setprio %d" % PRIO["b"])
    def hload(g):
        r = BH + 4 * (g % NHR)
        if "nohload" in EXP and 16 <= g < GB:
            hid[g] = a.vm_n - 1
            return
        if g < GB:
            hid[g] = a.vm("buffer_load_dwordx4 v[%d:%d], v2, s[8:11], s31 offen offset:%d sc1" % (r, r + 3, (g % 4) * 1024))
            if g % 4 == 3:
                if LAT_B and (g + 1) % (4 * LBC) == 0:
                    if g + 1 < GB: lat_off(a, 31, 57, (g + 1) // (4 * LBC), 36, LBN, LBC * 4096)
                else: a.e("s_add_u32 s31, s31, 4096")
        else:
            hid[g] = a.vm("buffer_load_dwordx4 v[%d:%d], v2, s[4:7], s38 offen offset:%d sc1" % (r, r + 3, (g % 4) * 1024))
            if g % 4 == 3:
                if LAT_B and (g + 1) % (4 * LBC) == 0:
                    if g + 1 < NG: lat_off(a, 38, 58, (g + 1 - GB) // (4 * LBC), 36, LBN, LBC * 4096)
                else: a.e("s_add_u32 s38, s38, 4096")
    dbg_mark(a, name + "_m3", 7)
    for g in range(8): hload(g)
    nh = 8
    fr = {}
    def reads(g):
        u, kk = g // 4, g % 4
        so = (u % NWU) * 8192 + kk * 2048
        f = g % 3
        va, d = (12, 512) if g < GB else (14, 1024)
        for ng in range(2):
            a.ds("ds_read_b64_tr_b16 v[%d:%d], v%d offset:%d" % (BA + 8 * f + 4 * ng, BA + 8 * f + 4 * ng + 1, va + ng, so))
            fr[g] = a.ds("ds_read_b64_tr_b16 v[%d:%d], v%d offset:%d" % (BA + 8 * f + 4 * ng + 2, BA + 8 * f + 4 * ng + 3, va + ng, so + d))
    reads(0); reads(1)
    polled = False
    nu = st["nu"]
    ubar_prev = -1
    for g in range(NG):
        u, kk = g // 4, g % 4
        f = g % 3
        if kk == 2 and u + 1 < NU and u % BB == 0:
            ubar = u
            un = min(u + BB, NU - 1)
            while un not in uid:
                assert nu < NWU or nu <= ubar_prev + NWU - 1
                wdma(nu); nu += 1
            if u == POLL_U:
                a.e("s_cmp_lg_u32 s%d, 0" % SW)
                a.e("s_cbranch_scc1 %s_polled" % name)
                if "noowait" not in EXP: wait_flags(a, name + "_op", 37, 15)
                a.label("%s_polled" % name)
                polled = True
            a.wait(vm=uid[un]); a.e("s_barrier")
            ubar_prev = u
            if u == POLL_U:
                gid = a.vm("buffer_load_dword v22, v16, s[20:23], 0 offen sc1")
                a.stamp(5)
        if BSW and g == BSW[0]: a.e("s_setprio %d" % BSW[1])
        if g + 2 < NG: reads(g + 2)
        assert g in hid
        a.wait(vm=hid[g], lg=fr[g])
        hb = BH + 4 * (g % NHR)
        acc = BAC if g < GB else AAC
        for ng in range(2):
            M32(a, acc + 16 * ng, BA + 8 * f + 4 * ng, hb, "0" if g in (0, GB) else acc + 16 * ng)
        cnt = 0
        while nh < min(g + 1 + NHR, NG) and cnt < (OBURST if polled else 2) and (nh < GB or polled):
            hload(nh); nh += 1; cnt += 1
        if nu < NU and (nu < NWU or nu <= ubar_prev + NWU - 1):
            wdma(nu); nu += 1
    a.stamp(6)
    a.wait(vm=gid)
    a.e("v_sub_f32 v23, 1.0, v22")
    for k in range(32): a.e("v_mul_f32 v%d, v%d, v23" % (BAC + k, BAC + k))
    for k in range(32): a.e("v_fmac_f32 v%d, v%d, v22" % (BAC + k, AAC + k))
    for k in range(16): a.e("v_cvt_pk_bf16_f32 v%d, v%d, v%d" % (BH + k, BAC + 2 * k, BAC + 2 * k + 1))
    a.e("s_nop 1")
    for q in range(4):
        b = BH + 4 * q
        a.e("v_permlane32_swap_b32 v%d, v%d" % (b, b + 2))
        a.e("v_permlane32_swap_b32 v%d, v%d" % (b + 1, b + 3))
    for q in range(4):
        b = BH + 4 * q
        a.vm("buffer_store_dwordx4 v[%d:%d], v17, s[24:27], s34 offen offset:%d%s" % (b, b + 3, 32 * q, OUT_FLAGS))
    if a.prof or DBGT: a.e("s_waitcnt vmcnt(0)")
    dbg_mark(a, name + "_m4", 8)
    a.stamp(7)
    a.stamp_flush(WS, WS + 1, WS_PROF, SW, 4)
    a.e("s_endpgm")

def gen_kernel(name, prof=False):
    a = Asm(); a.prof = prof; a.PROF_V = 254
    a.raw(kernel_header(name))
    a.e("s_cmp_ge_u32 s2, 512")
    a.e("s_cbranch_scc1 %s_exit" % name)
    if prof: a.e("v_mov_b32 v254, 0")
    a.stamp(0)
    a.e("s_load_dwordx8 s[60:67], s[0:1], 0")
    a.e("s_load_dwordx8 s[72:79], s[0:1], 48")
    a.e("s_load_dwordx2 s[68:69], s[0:1], 32")
    a.e("s_load_dwordx4 s[80:83], s[0:1], 80")
    a.e("s_load_dwordx2 s[84:85], s[0:1], 96")
    a.e("v_and_b32 v1, 63, v0")
    a.e("v_lshrrev_b32 v3, 6, v0")
    a.e("v_lshlrev_b32 v2, 4, v1")
    a.e("v_readfirstlane_b32 s%d, v3" % SW)
    a.e("s_and_b32 s%d, s2, 255" % SID)
    a.e("s_and_b32 s90, s%d, 7" % SID); a.e("s_lshr_b32 s91, s%d, 3" % SID)
    a.e("s_lshr_b32 s92, s90, 1"); a.e("s_lshl_b32 s92, s92, 2"); a.e("s_lshr_b32 s93, s91, 3"); a.e("s_add_u32 s%d, s92, s93" % SMT)
    a.e("s_and_b32 s92, s90, 1"); a.e("s_lshl_b32 s92, s92, 3"); a.e("s_and_b32 s93, s91, 7"); a.e("s_add_u32 s%d, s92, s93" % SNT)
    if DBGT:
        a.e("s_waitcnt lgkmcnt(0)")
        dbg_mark(a, name + "_m0", 4, neg=True)
    a.e("s_cmp_ge_u32 s2, 256")
    a.e("s_cbranch_scc1 %s_roleb" % name)
    if "noa" in EXP: a.e("s_endpgm")
    else: gen_role_a(a, name)
    a.label("%s_roleb" % name)
    a.nostamp = False
    a.reset_counts()
    gen_role_b(a, name)
    a.label("%s_exit" % name)
    a.e("s_endpgm")
    return a.text()
```
